```python
import torch

def _softmax(x, axis=-1):
    return torch.softmax(x, dim=axis)
def _gelu(x):
    return torch.nn.functional.gelu(x, approximate="tanh")
def _silu(x):
    return torch.nn.functional.silu(x)
def _sigmoid(x):
    return torch.sigmoid(x)
def _layernorm(x, axis=-1, eps=1e-5):
    m = x.mean(dim=axis, keepdim=True)
    v = x.var(dim=axis, keepdim=True, unbiased=False)
    return (x - m) / torch.sqrt(v + eps)
def _scatter_add(tgt, idx, src, axis=0):
    return tgt.clone().index_add_(axis, idx, src)
def _segment_sum(src, seg, n):
    out = torch.zeros((n,) + src.shape[1:], dtype=src.dtype)
    return out.index_add_(0, seg, src)
def _pad(x, pw):
    flat = tuple(v for pair in reversed(pw) for v in pair)
    return torch.nn.functional.pad(x, flat)

kernel_name = 'parallel_sum__mha_block__mixer_token_mlp__prompt'

def setup_inputs():

    _w = (lambda a: (lambda t: t.to(torch.bfloat16) if t.is_floating_point() else t)(torch.as_tensor(a)))
    def _A_setup():
        B, S, D, H = 1, 2048, 640, 32
        return {
            "x": _w((lambda *s: torch.randn(*s, dtype=torch.bfloat16) * 0.05)(B, S, D)),
            "wqkv": _w((lambda *s: torch.randn(*s, dtype=torch.bfloat16) * 0.05)(D, 3 * D)),
            "wo": _w((lambda *s: torch.randn(*s, dtype=torch.bfloat16) * 0.05)(D, D)),
        }
    _A_in = _A_setup()

    def _B_setup():
        B, S, D, F = 1, 2048, 640, 1728
        return {
            "x": _w((lambda *s: torch.randn(*s, dtype=torch.bfloat16) * 0.05)(B, S, D)),
            "w1": _w((lambda *s: torch.randn(*s, dtype=torch.bfloat16) * 1.6)(S, F) * (S ** -0.5)),
            "b1": _w((lambda *s: torch.randn(*s, dtype=torch.bfloat16) * 12.8)(F) * 0.02),
            "w2": _w((lambda *s: torch.randn(*s, dtype=torch.bfloat16) * 0.8)(F, S) * (F ** -0.5)),
            "b2": _w((lambda *s: torch.randn(*s, dtype=torch.bfloat16) * 12.8)(S) * 0.02),
        }
    _B_in = _B_setup()

    return {
        "A_x": _A_in["x"],
        "A_wqkv": _A_in["wqkv"],
        "A_wo": _A_in["wo"],
        "B_x": _B_in["x"],
        "B_w1": _B_in["w1"],
        "B_b1": _B_in["b1"],
        "B_w2": _B_in["w2"],
        "B_b2": _B_in["b2"],
    }

def reference(A_x, A_wqkv, A_wo, B_x, B_w1, B_b1, B_w2, B_b2):
    def _A_ref(x, wqkv, wo):
        B, S, D = x.shape
        H = 32
        Dh = D // H
        qkv = (lambda x, *d: x.permute(*d))((x @ wqkv).reshape(B, S, 3, H, Dh), 2, 0, 3, 1, 4)
        q, k, v = qkv[0], qkv[1], qkv[2]
        scores = torch.einsum("bhqd,bhkd->bhqk", q, k) * (Dh ** -0.5)
        p = _softmax(scores, axis=-1)
        o = torch.einsum("bhqk,bhkd->bhqd", p, v)
        return (lambda x, *d: x.permute(*d))(o, 0, 2, 1, 3).reshape(B, S, D) @ wo

    def _B_ref(x, w1, b1, w2, b2):
        B, S, D = x.shape
        h = _layernorm(x, axis=-1)
        u = torch.einsum("bsd,sf->bdf", h, w1) + b1
        u = _gelu(u)
        y = torch.einsum("bdf,fs->bds", u, w2) + b2
        return (lambda x, *d: x.permute(*d))(y, 0, 2, 1)

    x = A_x
    xn = _layernorm(x, axis=-1)
    return x + _A_ref(xn, A_wqkv, A_wo) + _B_ref(xn, B_w1, B_b1, B_w2, B_b2)
```

```python
import struct, math

QF_OFF = 0x000000
KV_OFF = 0x280000
HT_OFF = 0x780000
U_OFF  = 0xA00000
O_OFF  = 0xC20000
Z_OFF  = 0xEA0000
WS_USED = 0x1400000

def f2u(x):
    return struct.unpack("<I", struct.pack("<f", x))[0]
def fhex(x):
    return "0x%08x" % f2u(x)

class Em:
    def __init__(self):
        self.l = []
        self.vmq = []
    def __call__(self, s):
        for ln in s.split("\n"):
            ln = ln.strip()
            if not ln: continue
            self.l.append(ln if ln.endswith(":") or ln.startswith(".") else "    " + ln)
    def label(self, n): self.l.append(n + ":")
    def vm(self, s, tag):
        self(s); self.vmq.append(tag)
    def vmwait(self, tag, extra=""):
        tags = tag if isinstance(tag, (tuple, list, set)) else (tag,)
        idx = max([i for i, t in enumerate(self.vmq) if t in tags], default=-1)
        n = len(self.vmq) - 1 - idx
        self.vmq = self.vmq[idx + 1:]
        assert n <= 63, n
        self(f"s_waitcnt vmcnt({n}) {extra}".strip())
        return n
    def srd(self, d, lo, size):
        self(f"s_mov_b32 s{d}, s{lo}")
        self(f"s_and_b32 s{d+1}, s{lo+1}, 0xffff")
        self(f"s_mov_b32 s{d+2}, {size}")
        self(f"s_mov_b32 s{d+3}, 0x00020000")

def vr(a, n):
    return f"v[{a}:{a+n-1}]" if n > 1 else f"v{a}"

def kernel_header(name):
    return [f".globl {name}", ".p2align 8", f".type {name},@function", f"{name}:"]

def descriptor(name, vgpr, sgpr=102, agpr=0):
    acc = (vgpr + 3) // 4 * 4
    return f""".p2align 6
.amdhsa_kernel {name}
  .amdhsa_next_free_vgpr {acc + agpr if agpr else vgpr}
  .amdhsa_next_free_sgpr {sgpr}
  .amdhsa_accum_offset {acc}
  .amdhsa_group_segment_fixed_size 0
  .amdhsa_kernarg_size 88
  .amdhsa_user_sgpr_count 2
  .amdhsa_user_sgpr_kernarg_segment_ptr 1
  .amdhsa_system_sgpr_workgroup_id_x 1
.end_amdhsa_kernel"""

def red32(e, s, t):
    e(f"v_add_f32_dpp v{t}, v{s}, v{s} quad_perm:[1,0,3,2] row_mask:0xf bank_mask:0xf")
    e(f"v_add_f32_dpp v{s}, v{t}, v{t} quad_perm:[2,3,0,1] row_mask:0xf bank_mask:0xf")
    e(f"v_add_f32_dpp v{t}, v{s}, v{s} row_half_mirror row_mask:0xf bank_mask:0xf")
    e(f"v_add_f32_dpp v{s}, v{t}, v{t} row_mirror row_mask:0xf bank_mask:0xf")
    e(f"v_mov_b32 v{t}, v{s}")
    e(f"v_permlane16_swap_b32 v{s}, v{t}")
    e(f"v_add_f32 v{s}, v{s}, v{t}")

def xhalf(e, s, t, op="v_add_f32"):
    e(f"v_mov_b32 v{t}, v{s}")
    e(f"v_permlane32_swap_b32 v{s}, v{t}")
    e(f"{op} v{s}, v{s}, v{t}")
```

```python
import re

TRANS = ("v_exp_", "v_log_", "v_rcp_", "v_rsq_", "v_sqrt_", "v_sin_", "v_cos_")

def regs(tok):
    tok = tok.strip()
    if tok.startswith("-"): tok = tok[1:]
    if tok.startswith("abs(") : tok = tok[4:-1]
    if tok.startswith("|"): tok = tok.strip("|")
    m = re.fullmatch(r"([vas])(\d+)", tok)
    if m: return {(m.group(1), int(m.group(2)))}
    m = re.fullmatch(r"([vas])\[(\d+):(\d+)\]", tok)
    if m: return {(m.group(1), i) for i in range(int(m.group(2)), int(m.group(3)) + 1)}
    if tok == "vcc": return {("s", 106), ("s", 107)}
    if tok == "exec": return {("x", 0)}
    if tok == "m0": return {("m", 0)}
    return set()

class Ins:
    def __init__(self, text):
        self.text = text
        t = text.split(";")[0].strip()
        self.label = None
        self.op = None
        if not t or t.startswith("."):
            return
        if t.endswith(":"):
            self.label = t[:-1]; return
        parts = t.split(None, 1)
        self.op = op = parts[0]
        rest = parts[1] if len(parts) > 1 else ""
        ops = [o.strip() for o in re.split(r",(?![^\[]*\])", rest)] if rest else []
        mods = ""
        if ops:
            last = ops[-1].split(None, 1)
            ops[-1] = last[0]
            mods = last[1] if len(last) > 1 else ""
        self.ops, self.mods = ops, mods
        R = [regs(o) for o in ops]
        self.w, self.r = set(), set()
        self.mfma = op.startswith("v_mfma")
        self.valu = op.startswith("v_") and not self.mfma
        self.trans = op.startswith(TRANS)
        self.dot = op.startswith("v_dot")
        self.dpp = "_dpp" in op or "quad_perm" in mods or "row_" in mods
        self.perm = op.startswith("v_permlane")
        self.rdlane = op.startswith(("v_readfirstlane", "v_readlane"))
        self.vmem = op.startswith(("buffer_", "global_"))
        self.ds = op.startswith("ds_")
        self.salu = op.startswith("s_")
        self.ldsdma = self.vmem and re.search(r"\blds\b", mods + " " + op.replace("_", " ")) is not None
        self.store_data = set()
        self.passes = 0
        if self.mfma:
            self.w = R[0]; self.A, self.B, self.C = R[1], R[2], R[3]
            self.r = R[1] | R[2] | R[3]
            self.passes = 8 if "32x32" in op else (2 if "4x4x4" in op else 4)
        elif self.valu:
            if self.perm:
                self.w = R[0] | R[1]; self.r = R[0] | R[1]
            elif re.match(r"v_(add|sub|subrev)_co_u32", op):
                self.w = R[0] | R[1]; self.r = set().union(*R[2:])
            elif re.match(r"v_(addc|subb)_co_u32", op):
                self.w = R[0] | R[1]; self.r = set().union(*R[2:])
            else:
                self.w = R[0]; self.r = set().union(*R[1:]) if len(R) > 1 else set()
                if op.startswith(("v_fmac", "v_dot2c", "v_pk_fmac", "v_writelane")): self.r |= R[0]
                if self.dpp: self.r |= R[0]
        elif self.ds:
            if op.startswith(("ds_read", "ds_bpermute", "ds_permute", "ds_swizzle")) or "_rtn" in op:
                self.w = R[0]; self.r = set().union(*R[1:])
            else:
                self.r = set().union(*R)
        elif self.vmem:
            if "load" in op:
                if self.ldsdma: self.r = set().union(*R) | {("m", 0)}
                else: self.w = R[0]; self.r = set().union(*R[1:])
            else:
                self.r = set().union(*R)
                if op.startswith("buffer_"): data = R[0]
                else: data = R[1]
                if "x3" in op or "x4" in op: self.store_data = data
                if "atomic" in op and "sc0" in mods:
                    self.w = R[0]
        elif self.salu:
            if op.startswith(("s_cmp", "s_waitcnt", "s_nop", "s_barrier", "s_branch", "s_cbranch", "s_endpgm", "s_setprio", "s_sleep", "s_bitcmp")):
                self.r = set().union(*R) if R else set()
            else:
                self.w = R[0] if R else set(); self.r = set().union(*R[1:]) if len(R) > 1 else set()
                if "saveexec" in op: self.w |= {("x", 0)}
    def states(self):
        if self.op == "s_nop": return int(self.ops[0], 0) + 1
        return 1

def vg(s): return {x for x in s if x[0] in "va"}
def sg(s): return {x for x in s if x[0] == "s"}

def need(p, c):
    n = 0
    if p.valu:
        wv = vg(p.w); ws = sg(p.w)
        if c.mfma and wv & c.r: n = max(n, 3 if p.dot else 2)
        if p.trans and c.valu and not c.trans and wv & c.r: n = max(n, 1)
        if p.trans and (c.vmem or c.ds) and wv & c.r: n = max(n, 1)
        if c.valu and (c.perm or c.dpp) and wv & c.r: n = max(n, 2)
        if c.valu and c.rdlane and wv & c.r: n = max(n, 1)
        if ws:
            if c.valu and ws & c.r: n = max(n, 4 if c.op.startswith(("v_readlane", "v_writelane")) else 2)
            if c.vmem and ws & c.r: n = max(n, 5)
            if c.salu and ws & c.r: n = max(n, 1)
            if c.op in ("s_cbranch_vccz", "s_cbranch_vccnz") and ("s", 106) in ws: n = max(n, 5)
        if p.dot and (c.valu or c.vmem or c.ds):
            if c.op == p.op:
                srcab = set().union(*[regs(o) for o in c.ops[1:3]])
                if wv & srcab: n = max(n, 3)
            elif wv & (c.r | c.w): n = max(n, 3)
        if ("x", 0) in p.w: n = max(n, 5)
    if p.mfma:
        big = p.passes == 8
        if c.mfma:
            if p.w & (c.A | c.B): n = max(n, 12 if big else 8)
            if p.w & c.C and not (p.w == c.C and p.passes == c.passes): n = max(n, 10 if big else 6)
            if p.w == c.C and p.passes == 2: n = max(n, 2)
            if p.w & c.w and not (p.w == c.w): n = max(n, 10 if big else 6)
        elif c.valu or c.vmem or c.ds:
            if p.w & (c.r | c.w): n = max(n, 12 if big else 8)
            if c.valu and p.C & c.w: n = max(n, 7 if big else 3)
    if p.salu and ("m", 0) in p.w and c.op and c.ldsdma: n = max(n, 1)
    if p.store_data:
        if c.valu and p.store_data & c.w: n = max(n, 2)
        elif p.store_data & c.w: n = max(n, 1)
    return n

WIN = 14
def required_pad(hist, c):
    dist = 0; pad = 0
    for p in reversed(hist):
        if p.op is None: continue
        n = need(p, c)
        if n > dist: pad = max(pad, n - dist)
        dist += p.states()
        if dist >= WIN: break
    return pad

def fix(lines):
    out = []
    npad = 0
    for ln in lines:
        i = Ins(ln)
        if i.op is not None:
            pad = required_pad(out[-40:], i)
            if pad:
                out.append(Ins(f"    s_nop {pad-1}")); npad += 1
        out.append(i)
    labels = {i.label: k for k, i in enumerate(out) if i.label}
    problems = []
    for k, i in enumerate(out):
        if i.op and i.op.startswith(("s_branch", "s_cbranch")):
            tgt = labels.get(i.ops[0])
            if tgt is None: problems.append(f"unknown label {i.ops[0]}"); continue
            hist = out[max(0, k - 40):k + 1]
            n = 0
            for c in out[tgt:tgt + 40]:
                if c.op is None: continue
                pad = required_pad(hist, c)
                if pad: problems.append(f"edge hazard: branch '{i.text.strip()}' -> '{c.text.strip()}' needs {pad} more")
                hist = hist + [c]
                n += c.states()
                if n >= WIN or c.op in ("s_branch", "s_endpgm"): break
    if problems:
        raise RuntimeError("\n".join(problems))
    return [i.text for i in out], npad
```

```python
from common import *
K1_LDS = 4 * 32768 + 8 * 1344 + 3 * 512
HB = 131072
ST_M = HB + 8 * 1344
ST_R = ST_M + 512
ST_C = ST_R + 512
EPS = 1e-5

def gen_k1(name, cfg):
    e = Em()
    ST = cfg.get("k1_store", "")
    sX, sW, sWS = 8, 12, 16
    sWave, sRow, sCol, sXo, sWo, sM0, sT, sOnes, sWr, sWc = 20, 21, 22, 23, 24, 25, 26, 27, 28, 29
    sScale, sStride, sBase, sT2, sT3 = 30, 31, 32, 33, 34
    vL, vR, vH = 1, 2, 3
    vXs = 4
    vWs = 8
    vXa = 12
    vWa = 28
    vSum, vSq, vCs = 32, 33, 34
    vT = 36
    ACC = 64
    XF = 128
    WF = 144
    HX = 160
    SO = 192
    e("s_cmp_ge_u32 s2, 256")
    e(f"s_cbranch_scc1 {name}_end")
    e("s_load_dwordx4 s[4:7], s[0:1], 0")
    e("s_load_dwordx2 s[36:37], s[0:1], 80")
    e(f"v_and_b32 v{vL}, 63, v0")
    e(f"v_lshrrev_b32 v{vT}, 6, v0")
    e(f"v_and_b32 v{vR}, 31, v0")
    e(f"v_readfirstlane_b32 s{sWave}, v{vT}")
    e(f"v_lshrrev_b32 v{vH}, 5, v{vL}")
    e("s_and_b32 s3, s2, 7")
    e(f"s_lshr_b32 s{sT}, s2, 3")
    e(f"s_lshr_b32 s{sRow}, s3, 1")
    e(f"s_lshl_b32 s{sRow}, s{sRow}, 2")
    e(f"s_and_b32 s{sT2}, s{sT}, 3")
    e(f"s_add_u32 s{sRow}, s{sRow}, s{sT2}")
    e(f"s_and_b32 s{sCol}, s3, 1")
    e(f"s_lshl_b32 s{sCol}, s{sCol}, 3")
    e(f"s_lshr_b32 s{sT2}, s{sT}, 2")
    e(f"s_add_u32 s{sCol}, s{sCol}, s{sT2}")
    e(f"s_lshr_b32 s{sWr}, s{sWave}, 1")
    e(f"s_and_b32 s{sWc}, s{sWave}, 1")
    e(f"s_mov_b32 s{sOnes}, 0x3f803f80")
    e(f"s_lshl_b32 s{sT}, s2, 3")
    e(f"s_lshl_b32 s{sT2}, s{sWave}, 1")
    e(f"s_add_u32 s{sT}, s{sT}, s{sT2}")
    e(f"s_mul_i32 s{sT}, s{sT}, 1280")
    e(f"v_mul_u32_u24 v{vT}, 1280, v{vH}")
    e(f"v_lshl_add_u32 v{vT+1}, v{vR}, 4, v{vT}")
    e(f"v_lshl_add_u32 v{vT+2}, v{vR}, 3, v{vT}")
    e("s_waitcnt lgkmcnt(0)")
    e.srd(sX, 4, 2048 * 1280)
    e.srd(sW, 6, 640 * 3840)
    e.srd(sWS, 36, WS_USED)
    e.vm(f"buffer_load_dwordx4 {vr(HX,4)}, v{vT+1}, s[{sX}:{sX+3}], s{sT} offen", "h")
    e.vm(f"buffer_load_dwordx4 {vr(HX+4,4)}, v{vT+1}, s[{sX}:{sX+3}], s{sT} offen offset:512", "h")
    e.vm(f"buffer_load_dwordx2 {vr(HX+8,2)}, v{vT+2}, s[{sX}:{sX+3}], s{sT} offen offset:1024", "h")
    e(f"v_lshrrev_b32 v{vT}, 3, v{vL}")
    e(f"s_lshl_b32 s{sT}, s{sWave}, 3")
    e(f"v_add_u32 v{vT}, s{sT}, v{vT}")
    e(f"v_mul_u32_u24 v{vT}, 1280, v{vT}")
    e(f"v_lshrrev_b32 v{vT+1}, 4, v{vL}")
    e(f"s_lshl_b32 s{sT}, s{sWc}, 2")
    e(f"v_add_u32 v{vT+2}, s{sT}, v{vT+1}")
    e(f"v_and_b32 v{vT+3}, 7, v{vL}")
    e(f"v_xor_b32 v{vT+2}, v{vT+2}, v{vT+3}")
    e(f"v_lshl_add_u32 v{vXs}, v{vT+2}, 4, v{vT}")
    for n in range(1, 4):
        e(f"v_add_u32 v{vXs+n}, {n*32*1280}, v{vXs}")
    e(f"s_lshl_b32 s{sT}, s{sWave}, 2")
    e(f"v_add_u32 v{vT}, s{sT}, v{vT+1}")
    e(f"v_mul_u32_u24 v{vT}, 3840, v{vT}")
    e(f"v_bfe_u32 v{vT+2}, v{vL}, 2, 2")
    e(f"v_xor_b32 v{vT+2}, v{vT+2}, v{vT+1}")
    e(f"v_lshl_add_u32 v{vT}, v{vT+2}, 6, v{vT}")
    e(f"v_and_b32 v{vT+2}, 3, v{vL}")
    e(f"v_lshl_add_u32 v{vWs}, v{vT+2}, 4, v{vT}")
    for n in range(1, 4):
        e(f"v_add_u32 v{vWs+n}, {n*16*3840}, v{vWs}")
    e(f"s_mul_i32 s{sXo}, s{sRow}, {128*1280}")
    e(f"s_lshl_b32 s{sWo}, s{sCol}, 8")
    e(f"s_lshl_b32 s{sM0}, s{sWave}, 10")

    def dma(stage):
        slot = (stage % 4) * 32768
        g = []
        for n in range(4):
            g.append((f"s_add_u32 m0, s{sM0}, {slot + n*4096}",
                      f"buffer_load_dwordx4 v{vXs+n}, s[{sX}:{sX+3}], s{sXo} offen lds"))
        for n in range(4):
            g.append((f"s_add_u32 m0, s{sM0}, {slot + 16384 + n*4096}",
                      f"buffer_load_dwordx4 v{vWs+n}, s[{sW}:{sW+3}], s{sWo} offen lds"))
        return g
    def dma_adv():
        e(f"s_add_u32 s{sXo}, s{sXo}, 128")
        e(f"s_add_u32 s{sWo}, s{sWo}, {64*3840}")

    e(f"s_cmp_eq_u32 s{sCol}, 15")
    e(f"s_cbranch_scc0 {name}_dma")
    e("s_waitcnt vmcnt(0)")
    e(f"s_branch {name}_hpart")
    e.label(f"{name}_dma")
    for st in range(3):
        for a, b in dma(st):
            e(a); e.vm(b, ("st", st))
        dma_adv()
    e.label(f"{name}_hpart")
    e(f"v_bfe_u32 v{vT}, v{vR}, 1, 3")
    e(f"v_xor_b32 v{vT}, v{vT}, v{vH}")
    e(f"v_lshlrev_b32 v{vT}, 4, v{vT}")
    e(f"v_lshl_add_u32 v{vT}, v{vR}, 7, v{vT}")
    e(f"s_lshl_b32 s{sT}, s{sWr}, 13")
    e(f"s_lshl_b32 s{sT2}, s{sWc}, 12")
    e(f"s_add_u32 s{sT}, s{sT}, s{sT2}")
    e(f"v_add_u32 v{vT}, s{sT}, v{vT}")
    for tt in range(2):
        for kk in range(4):
            e(f"v_xor_b32 v{vXa + tt*4 + kk}, {tt*4096 + kk*32}, v{vT}")
            e(f"v_add_u32 v{vXa + 8 + tt*4 + kk}, 0x10000, v{vXa + tt*4 + kk}")
    e(f"v_bfe_u32 v{vT}, v{vL}, 2, 2")
    e(f"v_lshl_add_u32 v{vT+1}, v{vH}, 3, v{vT}")
    e(f"v_lshlrev_b32 v{vT+1}, 8, v{vT+1}")
    e(f"s_lshl_b32 s{sT}, s{sWc}, 1")
    e(f"s_add_u32 s{sT}, s{sT}, s{sWr}")
    e(f"v_xor_b32 v{vT}, s{sT}, v{vT}")
    e(f"v_lshl_add_u32 v{vT+1}, v{vT}, 6, v{vT+1}")
    e(f"v_bfe_u32 v{vT}, v{vL}, 4, 1")
    e(f"v_lshl_add_u32 v{vT+1}, v{vT}, 5, v{vT+1}")
    e(f"v_and_b32 v{vT}, 3, v{vL}")
    e(f"v_lshl_add_u32 v{vT+1}, v{vT}, 3, v{vT+1}")
    e(f"v_add_u32 v{vWa}, 16384, v{vT+1}")
    e(f"v_xor_b32 v{vWa+1}, 64, v{vWa}")
    e(f"v_add_u32 v{vWa+2}, 0x10000, v{vWa}")
    e(f"v_add_u32 v{vWa+3}, 0x10000, v{vWa+1}")
    for i in range(64):
        e(f"v_mov_b32 v{ACC+i}, 0")
    e(f"v_mov_b32 v{vSum}, 0"); e(f"v_mov_b32 v{vSq}, 0"); e(f"v_mov_b32 v{vCs}, 0")
    e.vmwait("h")
    F = HX + 10
    def unpack():
        for i in range(10):
            e(f"v_lshlrev_b32 v{F+2*i}, 16, v{HX+i}")
            e(f"v_and_b32 v{F+2*i+1}, 0xffff0000, v{HX+i}")
    def ln_pass():
        e(f"v_add_f32 v{vT}, v{F}, v{F+1}")
        for i in range(2, 20):
            e(f"v_add_f32 v{vT}, v{vT}, v{F+i}")
        red32(e, vT, vT + 1)
        e(f"v_mul_f32 v{vT}, {fhex(1/640)}, v{vT}")
        for i in range(20):
            e(f"v_sub_f32 v{F+i}, v{F+i}, v{vT}")
        e(f"v_mul_f32 v{vT}, v{F}, v{F}")
        for i in range(1, 20):
            e(f"v_fmac_f32 v{vT}, v{F+i}, v{F+i}")
        red32(e, vT, vT + 1)
        e(f"v_mov_b32 v{vT+1}, {fhex(EPS)}")
        e(f"v_fmac_f32 v{vT+1}, {fhex(1/640)}, v{vT}")
        e(f"v_rsq_f32 v{vT}, v{vT+1}")
        for i in range(20):
            e(f"v_mul_f32 v{F+i}, v{F+i}, v{vT}")
        for i in range(10):
            e(f"v_cvt_pk_bf16_f32 v{HX+i}, v{F+2*i}, v{F+2*i+1}")
    unpack(); ln_pass(); unpack(); ln_pass()
    e(f"s_lshl_b32 s{sT}, s{sWave}, 1")
    e(f"v_add_u32 v{vT}, s{sT}, v{vH}")
    e(f"v_mul_u32_u24 v{vT}, 1344, v{vT}")
    e(f"v_add_u32 v{vT}, {HB}, v{vT}")
    e(f"v_lshl_add_u32 v{vT+1}, v{vR}, 4, v{vT}")
    e(f"v_lshl_add_u32 v{vT+2}, v{vR}, 3, v{vT}")
    e(f"ds_write_b128 v{vT+1}, {vr(HX,4)}")
    e(f"ds_write_b128 v{vT+1}, {vr(HX+4,4)} offset:512")
    e(f"ds_write_b64 v{vT+2}, {vr(HX+8,2)} offset:1024")
    e(f"v_bfe_u32 v{vT}, v{vL}, 2, 2")
    e(f"v_mul_u32_u24 v{vT}, 1344, v{vT}")
    e(f"v_lshrrev_b32 v{vT+1}, 4, v{vL}")
    e(f"v_lshl_add_u32 v{vT}, v{vT+1}, 5, v{vT}")
    e(f"v_and_b32 v{vT+1}, 3, v{vL}")
    e(f"v_lshl_add_u32 v{vT}, v{vT+1}, 3, v{vT}")
    e(f"v_add_u32 v{vT}, {HB}, v{vT}")
    e(f"v_lshlrev_b32 v{vT+4}, 4, v{vL}")
    e("s_waitcnt lgkmcnt(0)")
    e("s_barrier")
    for j in range(3):
        e(f"s_add_u32 s{sT}, s{sWave}, {4*j}")
        e(f"s_min_u32 s{sT}, s{sT}, 9")
        e(f"s_lshl_b32 s{sT2}, s{sT}, 7")
        e(f"v_add_u32 v{vT+1+j}, s{sT2}, v{vT}")
        e(f"ds_read_b64_tr_b16 {vr(F+4*j,2)}, v{vT+1+j}")
        e(f"ds_read_b64_tr_b16 {vr(F+4*j+2,2)}, v{vT+1+j} offset:{4*1344}")
    e(f"s_mul_i32 s{sT3}, s2, 10240")
    e(f"s_add_u32 s{sT3}, s{sT3}, {HT_OFF}")
    e("s_waitcnt lgkmcnt(0)")
    for j in range(3):
        e(f"s_add_u32 s{sT}, s{sWave}, {4*j}")
        e(f"s_min_u32 s{sT}, s{sT}, 9")
        e(f"s_lshl_b32 s{sT2}, s{sT}, 10")
        e(f"s_add_u32 s{sT2}, s{sT2}, s{sT3}")
        e.vm(f"buffer_store_dwordx4 {vr(F+4*j,4)}, v{vT+4}, s[{sWS}:{sWS+3}], s{sT2} offen {ST}", "hs")
    e(f"s_cmp_eq_u32 s{sCol}, 15")
    e(f"s_cbranch_scc1 {name}_end")
    e(f"s_cmp_ge_u32 s{sCol}, 10")
    e(f"s_cbranch_scc1 {name}_v")
    q0 = list(e.vmq)

    def mainloop(isV):
        e.vmq = list(q0)
        def reads(stage, kk, buf):
            slot = (stage % 4) * 32768
            hi = slot >= 65536
            off = slot - (65536 if hi else 0)
            r = []
            for tt in range(2):
                r.append(f"ds_read_b128 {vr(XF + buf*8 + tt*4, 4)}, v{vXa + (8 if hi else 0) + tt*4 + kk} offset:{off}")
            for ct in range(2):
                for s in range(2):
                    r.append(f"ds_read_b64_tr_b16 {vr(WF + buf*8 + ct*4 + 2*s, 2)}, v{vWa + (2 if hi else 0) + ct} offset:{off + kk*4096 + s*1024}")
            return r
        def compute(buf, fill):
            m = []
            for a in range(2):
                for b in range(2):
                    tt, ct = a, b
                    acc = ACC + (tt*2 + ct) * 16
                    x = vr(XF + buf*8 + tt*4, 4); w = vr(WF + buf*8 + ct*4, 4)
                    A, B = (x, w) if isV else (w, x)
                    m.append(f"v_mfma_f32_32x32x16_bf16 {vr(acc,16)}, {A}, {B}, {vr(acc,16)}")
            d = []
            for i in range(4):
                d.append(f"v_dot2_f32_bf16 v{vSq}, v{XF+buf*8+i}, v{XF+buf*8+i}, v{vSq}")
                d.append(f"v_dot2_f32_bf16 v{vSum}, v{XF+buf*8+i}, s{sOnes}, v{vSum}")
                d.append(f"v_dot2_f32_bf16 v{vCs}, v{WF+buf*8+i}, s{sOnes}, v{vCs}")
            for i in range(4):
                e(m[i])
                for x in d[3*i:3*i+3]: e(x)
                if fill:
                    a, b, tag = fill.pop(0)
                    e(a); e("s_nop 0"); e.vm(b, tag)
        for st in range(10):
            e.vmwait(("st", st), "lgkmcnt(0)")
            e("s_barrier")
            fill = [(a, b, ("st", st+3)) for a, b in dma(st + 3)] if st + 3 < 10 else []
            for x in reads(st, 0, 0): e(x)
            if st > 0:
                compute(1, fill[:0])
            for kk in range(3):
                for x in reads(st, kk + 1, (kk + 1) % 2): e(x)
                e("s_waitcnt lgkmcnt(6)")
                compute(kk % 2, fill)
            assert not fill
            if st + 3 < 10: dma_adv()
        e("s_waitcnt lgkmcnt(0)")
        compute(1, [])
    _vmwait = e.vmwait
    e.vmwait = lambda tag, extra="": _vmwait([tag], extra)

    def stats():
        xhalf(e, vSum, vT); xhalf(e, vSq, vT); xhalf(e, vCs, vT)
        e(f"v_mul_f32 v{vSum}, {fhex(1/640)}, v{vSum}")
        e(f"v_mul_f32 v{vSq}, {fhex(1/640)}, v{vSq}")
        e(f"v_fma_f32 v{vSq}, -v{vSum}, v{vSum}, v{vSq}")
        e(f"v_max_f32 v{vSq}, 0, v{vSq}")
        e(f"v_add_f32 v{vSq}, {fhex(EPS)}, v{vSq}")
        e(f"v_rsq_f32 v{vSq}, v{vSq}")
        e(f"s_lshl_b32 s{sT}, s{sWr}, 8")
        e(f"s_lshl_b32 s{sT2}, s{sWc}, 7")
        e(f"s_add_u32 s{sT}, s{sT}, s{sT2}")
        e(f"s_add_u32 s{sT}, s{sT}, {ST_M}")
        e(f"v_lshl_add_u32 v{vT}, v{vR}, 2, s{sT}")
        e(f"s_lshl_b32 s{sT}, s{sWc}, 8")
        e(f"s_lshl_b32 s{sT2}, s{sWr}, 7")
        e(f"s_add_u32 s{sT}, s{sT}, s{sT2}")
        e(f"s_add_u32 s{sT}, s{sT}, {ST_C}")
        e(f"v_lshl_add_u32 v{vT+1}, v{vR}, 2, s{sT}")
        e(f"ds_write_b32 v{vT}, v{vSum}")
        e(f"ds_write_b32 v{vT}, v{vSq} offset:512")
        e(f"ds_write_b32 v{vT+1}, v{vCs}")
        e("s_waitcnt lgkmcnt(0)")
        e("s_barrier")

    e(f"s_cmp_ge_u32 s{sCol}, 5")
    e(f"s_cselect_b32 s{sScale}, 1.0, {fhex(math.log2(math.e) / math.sqrt(20.0))}")
    e(f"s_movk_i32 s{sStride}, 1280")
    e(f"s_cselect_b32 s{sStride}, 2560, s{sStride}")
    e(f"s_cselect_b32 s{sBase}, {KV_OFF}, {QF_OFF}")
    e(f"s_cselect_b32 s{sT}, 5, 0")
    e(f"s_sub_u32 s{sT}, s{sCol}, s{sT}")
    e(f"s_lshl_b32 s{sT}, s{sT}, 5")
    e(f"s_lshl_b32 s{sT2}, s{sWc}, 4")
    e(f"s_add_u32 s{sT}, s{sT}, s{sT2}")
    e(f"s_lshl_b32 s{sT3}, s{sStride}, 6")
    for ct in range(2):
        e(f"s_xor_b32 s{sT2}, s{sWr}, {ct}")
        e(f"s_lshl_b32 s{sT2}, s{sT2}, 3")
        e(f"s_add_u32 s{sT2}, s{sT2}, s{sT}")
        for q in range(4):
            o = SO + ct*4 + q
            e(f"v_add_u32 v{vT}, s{sT2}, v{vH}")
            e(f"v_add_u32 v{vT}, {2*q}, v{vT}")
            e(f"v_mul_u32_u24 v{vT+1}, 0xcccd, v{vT}")
            e(f"v_lshrrev_b32 v{vT+1}, 18, v{vT+1}")
            e(f"v_mul_u32_u24 v{vT+2}, 5, v{vT+1}")
            e(f"v_sub_u32 v{vT+2}, v{vT}, v{vT+2}")
            e(f"v_mul_lo_u32 v{o}, v{vT+1}, s{sT3}")
            e(f"v_lshrrev_b32 v{vT+3}, 1, v{vT+2}")
            e(f"v_lshl_add_u32 v{o}, v{vT+3}, 9, v{o}")
            e(f"v_and_b32 v{vT+3}, 1, v{vT+2}")
            e(f"v_lshl_add_u32 v{o}, v{vT+3}, 3, v{o}")
            e(f"v_lshrrev_b32 v{vT+3}, 2, v{vT+2}")
            e(f"v_sub_u32 v{vT+3}, 4, v{vT+3}")
            e(f"v_lshlrev_b32 v{vT+3}, v{vT+3}, v{vR}")
            e(f"v_add_u32 v{o}, v{o}, v{vT+3}")
    mainloop(False)
    stats()
    CS = XF
    e(f"v_xor_b32 v{vT+2}, 128, v{vT}")
    e(f"ds_read_b32 v{vT+4}, v{vT}"); e(f"ds_read_b32 v{vT+5}, v{vT} offset:512")
    e(f"ds_read_b32 v{vT+6}, v{vT+2}"); e(f"ds_read_b32 v{vT+7}, v{vT+2} offset:512")
    e(f"v_lshl_add_u32 v{vT+1}, v{vH}, 4, s{sT}")
    e(f"v_xor_b32 v{vT+3}, 128, v{vT+1}")
    for ct in range(2):
        for q in range(4):
            e(f"ds_read_b128 {vr(CS + ct*16 + q*4, 4)}, v{vT+1+2*ct} offset:{q*32}")
    e("s_waitcnt lgkmcnt(0)")
    e(f"v_mul_f32 v{vT+5}, s{sScale}, v{vT+5}")
    e(f"v_mul_f32 v{vT+7}, s{sScale}, v{vT+7}")
    for tt in range(2):
        e(f"s_xor_b32 s{sT}, s{sWc}, {tt}")
        e(f"s_lshl_b32 s{sT2}, s{sWr}, 1")
        e(f"s_add_u32 s{sT}, s{sT}, s{sT2}")
        e(f"s_lshl_b32 s{sT2}, s{sRow}, 2")
        e(f"s_add_u32 s{sT}, s{sT}, s{sT2}")
        e(f"s_mul_i32 s{sT}, s{sT}, s{sStride}")
        e(f"s_add_u32 s{sT}, s{sT}, s{sBase}")
        for ct in range(2):
            acc = ACC + (tt*2 + ct) * 16
            for i in range(16):
                e(f"v_fma_f32 v{acc+i}, -v{vT+4+2*tt}, v{CS+ct*16+i}, v{acc+i}")
                e(f"v_mul_f32 v{acc+i}, v{acc+i}, v{vT+5+2*tt}")
            for q in range(4):
                e(f"v_cvt_pk_bf16_f32 v{acc+4*q}, v{acc+4*q}, v{acc+4*q+1}")
                e(f"v_cvt_pk_bf16_f32 v{acc+4*q+1}, v{acc+4*q+2}, v{acc+4*q+3}")
                e(f"buffer_store_dwordx2 {vr(acc+4*q,2)}, v{SO+ct*4+q}, s[{sWS}:{sWS+3}], s{sT} offen {ST}")
    e("s_endpgm")

    e.label(f"{name}_v")
    e(f"s_sub_u32 s{sT}, s{sCol}, 10")
    e(f"s_lshl_b32 s{sT}, s{sT}, 7")
    e(f"s_lshl_b32 s{sT2}, s{sWc}, 6")
    e(f"s_add_u32 s{sT}, s{sT}, s{sT2}")
    e(f"s_mov_b32 s{sT3}, {64*2560}")
    for ct in range(2):
        e(f"s_xor_b32 s{sT2}, s{sWr}, {ct}")
        e(f"s_lshl_b32 s{sT2}, s{sT2}, 5")
        e(f"s_add_u32 s{sT2}, s{sT2}, s{sT}")
        o = SO + ct
        e(f"v_add_u32 v{vT}, s{sT2}, v{vR}")
        e(f"v_mul_u32_u24 v{vT+1}, 0xcccd, v{vT}")
        e(f"v_lshrrev_b32 v{vT+1}, 20, v{vT+1}")
        e(f"v_mul_u32_u24 v{vT+2}, 20, v{vT+1}")
        e(f"v_sub_u32 v{vT+2}, v{vT}, v{vT+2}")
        e(f"v_mul_lo_u32 v{o}, v{vT+1}, s{sT3}")
        e(f"v_lshl_add_u32 v{o}, v{vT+2}, 4, v{o}")
        e(f"v_mul_u32_u24 v{vT+2}, 320, v{vH}")
        e(f"v_add_u32 v{o}, v{o}, v{vT+2}")
    mainloop(True)
    stats()
    RM = XF; RR = HX
    e(f"v_xor_b32 v{vT+3}, 128, v{vT+1}")
    e(f"ds_read_b32 v{vT+4}, v{vT+1}"); e(f"ds_read_b32 v{vT+5}, v{vT+3}")
    e(f"s_lshl_b32 s{sT}, s{sWr}, 8")
    e(f"s_lshl_b32 s{sT2}, s{sWc}, 7")
    e(f"s_add_u32 s{sT}, s{sT}, s{sT2}")
    e(f"s_add_u32 s{sT}, s{sT}, {ST_M}")
    e(f"v_lshl_add_u32 v{vT}, v{vH}, 4, s{sT}")
    e(f"v_xor_b32 v{vT+2}, 128, v{vT}")
    for tt in range(2):
        for q in range(4):
            e(f"ds_read_b128 {vr(RM + tt*16 + q*4, 4)}, v{vT+2*tt} offset:{q*32}")
            e(f"ds_read_b128 {vr(RR + tt*16 + q*4, 4)}, v{vT+2*tt} offset:{512 + q*32}")
        if tt == 0: e("s_waitcnt lgkmcnt(4)")
    e("s_waitcnt lgkmcnt(0)")
    for tt in range(2):
        e(f"s_xor_b32 s{sT}, s{sWc}, {tt}")
        e(f"s_lshl_b32 s{sT2}, s{sWr}, 1")
        e(f"s_add_u32 s{sT}, s{sT}, s{sT2}")
        e(f"s_lshl_b32 s{sT2}, s{sRow}, 2")
        e(f"s_add_u32 s{sT}, s{sT}, s{sT2}")
        e(f"s_mul_i32 s{sT}, s{sT}, 2560")
        e(f"s_add_u32 s{sT}, s{sT}, {KV_OFF + 1280}")
        for ct in range(2):
            acc = ACC + (tt*2 + ct) * 16
            for i in range(16):
                e(f"v_fma_f32 v{acc+i}, -v{RM+tt*16+i}, v{vT+4+ct}, v{acc+i}")
                e(f"v_mul_f32 v{acc+i}, v{acc+i}, v{RR+tt*16+i}")
            for p in range(2):
                for j in range(4):
                    e(f"v_cvt_pk_bf16_f32 v{acc+8*p+j}, v{acc+8*p+2*j}, v{acc+8*p+2*j+1}")
                e(f"buffer_store_dwordx4 {vr(acc+8*p,4)}, v{SO+ct}, s[{sWS}:{sWS+3}], s{sT} offen offset:{640*p} {ST}")
    e.label(f"{name}_end")
    e("s_endpgm")
    return e.l, dict(vgpr=200, grid=256, block=256, lds=K1_LDS)
```

```python
from common import *
K2_LDS = 49152 + 64
NATT = 512
NMLP1 = 180

def gen_attn(e, name, cfg):
    ST = cfg.get("k2_store", "")
    sWS = 8
    sWave, sHead, sQb, sKV, sT, sT2, sIt, sCur, sMode = 20, 21, 22, 23, 24, 25, 26, 27, 28
    sMV, sML, sMH = 30, 32, 34
    sKoff, sVoff, sRot = 36, 37, 38
    vL, vR, vH = 1, 2, 3
    vK0, vK1, vV = 4, 5, 6
    vT = 7
    Q0 = 12
    Q1 = 28
    O = 36
    S = 100
    KV = 132
    def K0(b): return KV + 14*b
    def V0(b): return KV + 14*b + 4
    def V1(b): return KV + 14*b + 8
    def K1(b): return KV + 14*b + 12
    M = 160
    e(f"v_and_b32 v{vL}, 63, v0")
    e(f"v_lshrrev_b32 v{vT}, 6, v0")
    e(f"v_and_b32 v{vR}, 31, v0")
    e(f"v_readfirstlane_b32 s{sWave}, v{vT}")
    e(f"v_lshrrev_b32 v{vH}, 5, v{vL}")
    e(f"s_and_b32 s{sHead}, s2, 7")
    e(f"s_lshl_b32 s{sHead}, s{sHead}, 2")
    e(f"s_bfe_u32 s{sT}, s2, 0x20003")
    e(f"s_add_u32 s{sHead}, s{sHead}, s{sT}")
    e(f"s_lshr_b32 s{sQb}, s2, 5")
    e(f"s_mov_b32 s{sMV}, 0x000fffff"); e(f"s_mov_b32 s{sMV+1}, 0x000fffff")
    e(f"s_mov_b32 s{sML}, -1"); e(f"s_mov_b32 s{sML+1}, 0")
    e(f"s_mov_b32 s{sMH}, 0"); e(f"s_mov_b32 s{sMH+1}, -1")
    e(f"v_lshlrev_b32 v{vK0}, 4, v{vL}")
    e(f"v_lshlrev_b32 v{vK1}, 3, v{vR}")
    e(f"v_mul_u32_u24 v{vV}, 320, v{vH}")
    e(f"v_lshl_add_u32 v{vV}, v{vR}, 4, v{vV}")
    e(f"s_lshl_b32 s{sT}, s{sHead}, 6")
    e(f"s_lshl_b32 s{sT2}, s{sQb}, 2")
    e(f"s_add_u32 s{sT2}, s{sT2}, s{sT}")
    e(f"s_mul_i32 s{sT2}, s{sT2}, 1280")
    e(f"s_mul_i32 s{sCur}, s{sT}, 2560")
    e(f"s_add_u32 s{sCur}, s{sCur}, {KV_OFF}")
    e(f"s_mul_i32 s{sT}, s{sWave}, {16*2560}")
    e(f"s_add_u32 s{sKV}, s{sCur}, s{sT}")
    e(f"s_mul_i32 s{sT}, s{sQb}, 2560")
    e(f"s_add_u32 s{sCur}, s{sCur}, s{sT}")
    for t in range(4):
        e(f"v_mov_b32 v{Q1+2*t}, 0"); e(f"v_mov_b32 v{Q1+2*t+1}, 0")
    e(f"v_cmp_eq_u32 vcc, 20, v{vR}")
    e(f"v_mov_b32 v{vT}, 0x3f803f80")
    for b in range(2):
        e(f"v_mov_b32 v{K1(b)}, 0x3f803f80"); e(f"v_mov_b32 v{K1(b)+1}, 0x3f80")
        for i in range(8):
            e(f"v_cndmask_b32 v{V0(b)+i}, 0, v{vT}, vcc")
    e("s_waitcnt lgkmcnt(0)")
    e.srd(sWS, 4, WS_USED)
    srd = f"s[{sWS}:{sWS+3}]"
    def loadK(b, soff, tag):
        e.vm(f"buffer_load_dwordx4 {vr(K0(b),4)}, v{vK0}, {srd}, s{soff} offen", tag)
        e(f"s_mov_b64 exec, s[{sML}:{sML+1}]")
        e.vm(f"buffer_load_dwordx2 {vr(K1(b),2)}, v{vK1}, {srd}, s{soff} offen offset:1024", tag)
        e("s_mov_b64 exec, -1")
    def loadV(b, soff, tag):
        e(f"s_mov_b64 exec, s[{sMV}:{sMV+1}]")
        e.vm(f"buffer_load_dwordx4 {vr(V0(b),4)}, v{vV}, {srd}, s{soff} offen offset:1280", tag)
        e.vm(f"buffer_load_dwordx4 {vr(V1(b),4)}, v{vV}, {srd}, s{soff} offen offset:1920", tag)
        e("s_mov_b64 exec, -1")
    def QK1(sb, t, kb): return f"v_mfma_f32_32x32x16_bf16 {vr(S+16*sb,16)}, {vr(K0(kb),4)}, {vr(Q0+4*t,4)}, 0"
    def QK2(sb, t, kb): return f"v_mfma_f32_32x32x8bf16_1k {vr(S+16*sb,16)}, {vr(K1(kb),2)}, {vr(Q1+2*t,2)}, {vr(S+16*sb,16)}"
    def PV1(sb, t, kb): return f"v_mfma_f32_32x32x16_bf16 {vr(O+16*t,16)}, {vr(V0(kb),4)}, {vr(S+16*sb,4)}, {vr(O+16*t,16)}"
    def PV2(sb, t, kb): return f"v_mfma_f32_32x32x16_bf16 {vr(O+16*t,16)}, {vr(V1(kb),4)}, {vr(S+16*sb+8,4)}, {vr(O+16*t,16)}"
    def tilemax(sb, dst, first):
        s = S + 16*sb
        if first:
            e(f"v_max3_f32 v{dst}, v{s}, v{s+1}, v{s+2}"); rest = list(range(3, 16))
        else:
            rest = list(range(16))
        while len(rest) >= 2:
            e(f"v_max3_f32 v{dst}, v{dst}, v{s+rest[0]}, v{s+rest[1]}"); rest = rest[2:]
        if rest: e(f"v_max_f32 v{dst}, v{dst}, v{s+rest[0]}")
    loadK(1, sCur, "kc")
    for t in range(4):
        e.vm(f"buffer_load_dwordx4 {vr(Q0+4*t,4)}, v{vK0}, {srd}, s{sT2} offen offset:{1280*t}" if 1280*t < 4096 else "", "q")
    e(f"s_mov_b64 exec, s[{sML}:{sML+1}]")
    e(f"s_add_u32 s{sT}, s{sT2}, 1024")
    for t in range(4):
        e.vm(f"buffer_load_dwordx2 {vr(Q1+2*t,2)}, v{vK1}, {srd}, s{sT} offen offset:{1280*t}", "q")
    e("s_mov_b64 exec, -1")
    e(f"s_mov_b32 s{sMode}, 0")
    e.vmwait("q")
    for t in range(4):
        e(QK1(t % 2, t, 1)); e(QK2(t % 2, t, 1))
        if t > 0: tilemax((t - 1) % 2, M + t - 1, True)
    tilemax(1, M + 3, True)
    for t in range(4):
        xhalf(e, M + t, vT, "v_max_f32")
    e.label(f"{name}_setm")
    e(f"s_mov_b32 s{sRot}, s{sQb}")
    def adv(dst):
        e(f"s_mul_i32 s{dst}, s{sRot}, 2560")
        e(f"s_add_u32 s{dst}, s{dst}, s{sKV}")
    e.vmq = []
    adv(sVoff)
    loadK(0, sVoff, "k0"); loadV(0, sVoff, "v0")
    e(f"s_add_u32 s{sRot}, s{sRot}, 1"); e(f"s_and_b32 s{sRot}, s{sRot}, 15")
    adv(sVoff)
    loadK(1, sVoff, "k1")
    e(f"s_mov_b64 exec, s[{sMH}:{sMH+1}]")
    for t in range(4):
        e(f"v_sub_f32 v{vT}, 0, v{M+t}")
        e(f"v_cvt_pk_bf16_f32 v{vT+1}, v{vT}, v{vT}")
        e(f"v_and_b32 v{vT+2}, 0xffff0000, v{vT+1}")
        e(f"v_sub_f32 v{vT}, v{vT}, v{vT+2}")
        e(f"v_cvt_pk_bf16_f32 v{Q1+2*t}, v{vT+2}, v{vT}")
        e(f"v_and_b32 v{vT+2}, 0xffff0000, v{Q1+2*t}")
        e(f"v_sub_f32 v{vT}, v{vT}, v{vT+2}")
        e(f"v_cvt_pk_bf16_f32 v{Q1+2*t+1}, v{vT}, 0")
    e("s_mov_b64 exec, -1")
    for i in range(64):
        e(f"v_mov_b32 v{O+i}, 0")
    for i in range(4):
        e(f"v_mov_b32 v{S+16+8+i}, 0")
    e.vmwait("k0")
    e(QK1(0, 0, 0)); e(QK2(0, 0, 0))
    e(f"s_mov_b32 s{sIt}, 8")
    e("s_nop 7")
    e("s_nop 1")
    e(".p2align 6")
    e.label(f"{name}_loop")
    for kt in range(2):
        for q in range(4):
            sb = q % 2; s = S + 16*sb
            ex = lambda i: f"v_exp_f32 v{s+i}, v{s+i}"
            cv = lambda i: f"v_cvt_pk_bf16_f32 v{s+(i//4)*8+i%4}, v{s+2*i}, v{s+2*i+1}"
            pq, pkb = (q - 1, kt) if q > 0 else (3, 1 - kt)
            nq, nkb = (q + 1, kt) if q < 3 else (0, 1 - kt)
            e(ex(0)); e(ex(1)); e(PV2(1 - sb, pq, pkb))
            if q == 0:
                e(f"s_mov_b64 exec, s[{sMV}:{sMV+1}]")
                e(f"buffer_load_dwordx4 {vr(V0(1-kt),4)}, v{vV}, {srd}, s{sVoff} offen offset:1280")
                e(f"buffer_load_dwordx4 {vr(V1(1-kt),4)}, v{vV}, {srd}, s{sVoff} offen offset:1920")
                e("s_mov_b64 exec, -1")
            e(ex(2)); e(ex(3)); e(cv(0)); e(cv(1)); e(ex(4))
            if q == 3:
                e("s_waitcnt vmcnt(2)")
            e(QK1(1 - sb, nq, nkb))
            if q == 3:
                e(f"s_add_u32 s{sRot}, s{sRot}, 1"); e(f"s_and_b32 s{sRot}, s{sRot}, 15")
                e(f"s_mul_i32 s{sVoff}, s{sRot}, 2560")
                e(f"s_add_u32 s{sVoff}, s{sVoff}, s{sKV}")
                e(f"buffer_load_dwordx4 {vr(K0(kt),4)}, v{vK0}, {srd}, s{sVoff} offen")
                e(f"s_mov_b64 exec, s[{sML}:{sML+1}]")
                e(f"buffer_load_dwordx2 {vr(K1(kt),2)}, v{vK1}, {srd}, s{sVoff} offen offset:1024")
                e("s_mov_b64 exec, -1")
            e(ex(5)); e(ex(6)); e(ex(7)); e(cv(2)); e(cv(3)); e(ex(8))
            e(QK2(1 - sb, nq, nkb))
            e(ex(9)); e(ex(10)); e(ex(11)); e(cv(4)); e(cv(5)); e(ex(12)); e(ex(13))
            if q == 0:
                e("s_waitcnt vmcnt(4)")
            e(PV1(sb, q, kt))
            if kt == 1 and q == 3:
                e(f"s_sub_u32 s{sIt}, s{sIt}, 1")
                e(f"s_cmp_lg_u32 s{sIt}, 0")
            e(ex(14)); e(ex(15)); e(cv(6)); e(cv(7))
    e(f"s_cbranch_scc1 {name}_loop")
    e(PV2(1, 3, 1))
    e("s_waitcnt vmcnt(0)")
    e(f"s_mul_i32 s{sT}, s{sWave}, 3072")
    e(f"v_add_u32 v{vT}, s{sT}, v{vK0}")
    e(f"s_mul_i32 s{sT}, s{sWave}, 12288")
    e(f"v_add_u32 v{vT+1}, s{sT}, v{vK0}")
    for t in range(4):
        for j in range(3):
            e(f"ds_write_b128 v{vT}, {vr(O+16*t+4*j,4)} offset:{t*12288 + j*1024}")
    e("s_waitcnt lgkmcnt(0)")
    e("s_barrier")
    for w in range(4):
        for j in range(3):
            e(f"ds_read_b128 {vr(O+16*w+4*j,4)}, v{vT+1} offset:{w*3072 + j*1024}")
    e("s_waitcnt lgkmcnt(0)")
    for i in range(12):
        e(f"v_add_f32 v{O+i}, v{O+i}, v{O+16+i}")
        e(f"v_add_f32 v{O+32+i}, v{O+32+i}, v{O+48+i}")
    for i in range(12):
        e(f"v_add_f32 v{O+i}, v{O+i}, v{O+32+i}")
    e(f"v_mov_b32 v{vT+2}, v{O+8}")
    e(f"v_mov_b32 v{vT+3}, v{O+8}")
    e(f"v_permlane32_swap_b32 v{vT+2}, v{vT+3}")
    e(f"v_add_f32 v{vT+2}, |v{O}|, |v{O+1}|")
    for i in range(2, 12):
        e(f"v_add_f32 v{vT+2}, v{vT+2}, |v{O+i}|")
    e(f"v_mov_b32 v{vT+4}, 0x7f000000")
    e(f"v_cmp_nlt_f32 vcc, v{vT+2}, v{vT+4}")
    e(f"s_mov_b64 s[40:41], vcc")
    e(f"v_mov_b32 v{vT+4}, 0x5f800000")
    e(f"v_cmp_nle_f32 vcc, v{vT+3}, v{vT+4}")
    e(f"s_or_b64 s[40:41], s[40:41], vcc")
    e(f"v_cmp_nge_f32 vcc, v{vT+3}, 0.5")
    e(f"s_or_b64 s[40:41], s[40:41], vcc")
    e(f"s_cmp_lg_u64 s[40:41], 0")
    e(f"s_cselect_b32 s{sT}, 1, 0")
    if cfg.get("force_fallback"): e(f"s_mov_b32 s{sT}, 1")
    e(f"v_mov_b32 v{vT+4}, s{sT}")
    e(f"s_lshl_b32 s{sT}, s{sWave}, 2")
    e(f"v_mov_b32 v{vT+2}, s{sT}")
    e(f"ds_write_b32 v{vT+2}, v{vT+4} offset:49152")
    e(f"v_mov_b32 v{vT+2}, 0")
    e("s_waitcnt lgkmcnt(0)")
    e("s_barrier")
    e(f"ds_read_b128 {vr(S,4)}, v{vT+2} offset:49152")
    e(f"v_rcp_f32 v{vT+3}, v{vT+3}")
    e("s_waitcnt lgkmcnt(0)")
    e(f"v_or3_b32 v{S}, v{S}, v{S+1}, v{S+2}")
    e(f"v_or_b32 v{S}, v{S}, v{S+3}")
    e(f"v_readfirstlane_b32 s{sT}, v{S}")
    e(f"s_andn2_b32 s{sT}, s{sT}, s{sMode}")
    e(f"s_cmp_lg_u32 s{sT}, 0")
    e(f"s_cbranch_scc1 {name}_fallback")
    for i in range(12):
        e(f"v_mul_f32 v{O+i}, v{O+i}, v{vT+3}")
    for i in range(6):
        e(f"v_cvt_pk_bf16_f32 v{O+i}, v{O+2*i}, v{O+2*i+1}")
    e(f"s_lshr_b32 s{sT}, s{sHead}, 2")
    e(f"s_mul_i32 s{sT}, s{sT}, 5")
    e(f"s_and_b32 s{sT2}, s{sHead}, 3")
    e(f"s_add_u32 s{sCur}, s{sT}, s{sT2}")
    e(f"s_lshl_b32 s{sCur}, s{sCur}, 16")
    e(f"s_lshl_b32 s{sIt}, s{sQb}, 2")
    e(f"s_add_u32 s{sIt}, s{sIt}, s{sWave}")
    e(f"s_lshl_b32 s{sIt}, s{sIt}, 9")
    e(f"s_add_u32 s{sIt}, s{sIt}, {O_OFF}")
    e(f"s_add_u32 s{sCur}, s{sCur}, s{sIt}")
    e(f"v_lshlrev_b32 v{vT}, 4, v{vR}")
    e(f"v_lshl_add_u32 v{vT+1}, v{vH}, 15, v{vT}")
    e(f"buffer_store_dwordx4 {vr(O,4)}, v{vT+1}, {srd}, s{sCur} offen {ST}")
    e(f"s_add_u32 s{sT}, s{sT}, 4")
    e(f"s_lshl_b32 s{sT}, s{sT}, 16")
    e(f"s_add_u32 s{sT}, s{sT}, s{sIt}")
    e(f"s_and_b32 s{sCur}, s{sT2}, 1")
    e(f"s_lshl_b32 s{sCur}, s{sCur}, 15")
    e(f"s_add_u32 s{sT}, s{sT}, s{sCur}")
    e(f"s_lshr_b32 s{sCur}, s{sT2}, 1")
    e(f"s_lshl_b32 s{sCur}, s{sCur}, 3")
    e(f"s_add_u32 s{sT}, s{sT}, s{sCur}")
    e(f"s_mov_b64 exec, s[{sML}:{sML+1}]")
    e(f"buffer_store_dwordx2 {vr(O+4,2)}, v{vT}, {srd}, s{sT} offen {ST}")
    e("s_endpgm")
    e.label(f"{name}_fallback")
    e(f"s_mov_b32 s{sMode}, 1")
    e(f"s_mov_b64 exec, s[{sMH}:{sMH+1}]")
    for t in range(4):
        e(f"v_mov_b32 v{Q1+2*t}, 0"); e(f"v_mov_b32 v{Q1+2*t+1}, 0")
    e("s_mov_b64 exec, -1")
    for t in range(4):
        e(f"v_mov_b32 v{M+t}, 0xff800000")
    e(f"s_mov_b32 s{sKoff}, s{sKV}")
    e(f"s_mov_b32 s{sIt}, 16")
    e.label(f"{name}_mloop")
    loadK(0, sKoff, "x")
    e("s_waitcnt vmcnt(0)")
    for t in range(4):
        e(QK1(t % 2, t, 0)); e(QK2(t % 2, t, 0))
        if t > 0: tilemax((t - 1) % 2, M + t - 1, False)
    tilemax(1, M + 3, False)
    e(f"s_add_u32 s{sKoff}, s{sKoff}, 2560")
    e(f"s_sub_u32 s{sIt}, s{sIt}, 1")
    e(f"s_cmp_lg_u32 s{sIt}, 0")
    e(f"s_cbranch_scc1 {name}_mloop")
    for t in range(4):
        xhalf(e, M + t, vT, "v_max_f32")
    e(f"s_lshl_b32 s{sT}, s{sWave}, 10")
    e(f"v_add_u32 v{vT}, s{sT}, v{vK0}")
    e("s_barrier")
    e(f"ds_write_b128 v{vT}, {vr(M,4)} offset:1024")
    e("s_waitcnt lgkmcnt(0)")
    e("s_barrier")
    for w in range(4):
        e(f"ds_read_b128 {vr(S+4*w,4)}, v{vK0} offset:{1024 + w*1024}")
    e("s_waitcnt lgkmcnt(0)")
    for t in range(4):
        e(f"v_max3_f32 v{M+t}, v{S+t}, v{S+4+t}, v{S+8+t}")
        e(f"v_max_f32 v{M+t}, v{M+t}, v{S+12+t}")
    e("s_barrier")
    e(f"s_branch {name}_setm")

def gen_mlp1(e, name, cfg):
    ST = cfg.get("k2_store", "")
    sWS, sW1, sB1 = 8, 12, 16
    sWave, sDt, sFt, sT, sT2, sIt, sPo, sWo, sM0 = 20, 21, 22, 23, 24, 25, 26, 27, 28
    vL, vR, vH = 1, 2, 3
    vP, vWs, vWa, vT = 4, 5, 8, 9
    ACC = 12
    PF = 108
    WF = 140
    e(f"v_and_b32 v{vL}, 63, v0")
    e(f"v_lshrrev_b32 v{vT}, 6, v0")
    e(f"v_and_b32 v{vR}, 31, v0")
    e(f"v_readfirstlane_b32 s{sWave}, v{vT}")
    e(f"v_lshrrev_b32 v{vH}, 5, v{vL}")
    e(f"s_sub_u32 s{sT}, s2, {NATT}")
    e(f"s_and_b32 s{sT2}, s{sT}, 7")
    e(f"s_lshr_b32 s{sT}, s{sT}, 3")
    e(f"s_mul_i32 s{sDt}, s{sT2}, 22")
    e(f"s_min_u32 s{sT2}, s{sT2}, 4")
    e(f"s_add_u32 s{sT}, s{sT}, s{sT2}")
    e(f"s_add_u32 s{sT}, s{sT}, s{sDt}")
    e(f"s_mul_i32 s{sFt}, s{sT}, 0xcccd")
    e(f"s_lshr_b32 s{sFt}, s{sFt}, 19")
    e(f"s_mul_i32 s{sT2}, s{sFt}, 10")
    e(f"s_sub_u32 s{sDt}, s{sT}, s{sT2}")
    e(f"v_mul_u32_u24 v{vP}, 10240, v{vH}")
    e(f"v_lshl_add_u32 v{vP}, v{vR}, 4, v{vP}")
    e(f"s_mul_i32 s{sPo}, s{sWave}, {64*10240}")
    e(f"s_lshl_b32 s{sT}, s{sDt}, 10")
    e(f"s_add_u32 s{sPo}, s{sPo}, s{sT}")
    e(f"s_add_u32 s{sPo}, s{sPo}, {HT_OFF}")
    for n in range(3):
        e(f"v_add_u32 v{vT}, {64*n}, v{vL}")
        e(f"v_mul_u32_u24 v{vT+1}, 0xaaab, v{vT}")
        e(f"v_lshrrev_b32 v{vT+1}, 19, v{vT+1}")
        e(f"v_mul_u32_u24 v{vT+2}, 12, v{vT+1}")
        e(f"v_sub_u32 v{vT+2}, v{vT}, v{vT+2}")
        e(f"v_mul_u32_u24 v{vT+1}, 3456, v{vT+1}")
        e(f"v_lshl_add_u32 v{vWs+n}, v{vT+2}, 4, v{vT+1}")
    e(f"s_mul_i32 s{sWo}, s{sWave}, {512*3456}")
    e(f"s_mul_i32 s{sT}, s{sFt}, 192")
    e(f"s_add_u32 s{sWo}, s{sWo}, s{sT}")
    e(f"s_mul_i32 s{sM0}, s{sWave}, 12288")
    e(f"v_bfe_u32 v{vT}, v{vL}, 2, 2")
    e(f"v_lshl_add_u32 v{vT}, v{vH}, 3, v{vT}")
    e(f"v_mul_u32_u24 v{vT}, 192, v{vT}")
    e(f"v_bfe_u32 v{vT+1}, v{vL}, 4, 1")
    e(f"v_lshl_add_u32 v{vT}, v{vT+1}, 5, v{vT}")
    e(f"v_and_b32 v{vT+1}, 3, v{vL}")
    e(f"v_lshl_add_u32 v{vT}, v{vT+1}, 3, v{vT}")
    e(f"v_add_u32 v{vWa}, s{sM0}, v{vT}")
    e("s_waitcnt lgkmcnt(0)")
    e.srd(sWS, 4, WS_USED)
    e.srd(sW1, 6, 2048 * 3456)
    e.srd(sB1, 38, 1728 * 2)
    def issue(slot):
        for n in range(3):
            e(f"s_add_u32 m0, s{sM0}, {slot*3072 + n*1024}")
            e(f"buffer_load_dwordx4 v{vWs+n}, s[{sW1}:{sW1+3}], s{sWo} offen lds")
        for dt in range(2):
            e(f"buffer_load_dwordx4 {vr(PF+slot*8+dt*4,4)}, v{vP}, s[{sWS}:{sWS+3}], s{sPo} offen offset:{dt*512}")
        e(f"s_add_u32 s{sWo}, s{sWo}, {16*3456}")
        e(f"s_add_u32 s{sPo}, s{sPo}, 20480")
    def reads(slot, buf):
        for ft in range(3):
            for s in range(2):
                e(f"ds_read_b64_tr_b16 {vr(WF+buf*12+ft*4+2*s,2)}, v{vWa} offset:{slot*3072 + ft*64 + s*768}")
    def mfmas(slot, buf):
        for ft in range(3):
            for dt in range(2):
                a = ACC + (ft*2 + dt)*16
                e(f"v_mfma_f32_32x32x16_bf16 {vr(a,16)}, {vr(WF+buf*12+ft*4,4)}, {vr(PF+slot*8+dt*4,4)}, {vr(a,16)}")
    for s in range(4): issue(s)
    for i in range(96): e(f"v_mov_b32 v{ACC+i}, 0")
    e("s_waitcnt vmcnt(15)")
    reads(0, 0)
    e(f"s_mov_b32 s{sIt}, 7")
    e.label(f"{name}_loop")
    for s in range(4):
        e("s_waitcnt vmcnt(10)")
        reads((s + 1) % 4, (s + 1) % 2)
        e("s_waitcnt lgkmcnt(6)")
        mfmas(s, s % 2)
        issue(s)
    e(f"s_sub_u32 s{sIt}, s{sIt}, 1")
    e(f"s_cmp_lg_u32 s{sIt}, 0")
    e(f"s_cbranch_scc1 {name}_loop")
    for s in range(4):
        if s < 3:
            e(f"s_waitcnt vmcnt({10 - 5*s})")
            reads(s + 1, (s + 1) % 2)
            e("s_waitcnt lgkmcnt(6)")
        else:
            e("s_waitcnt lgkmcnt(0)")
        mfmas(s, s % 2)
    B = PF
    e(f"s_and_b32 s{sT}, s{sWave}, 1")
    e(f"s_lshl_b32 s{sT}, s{sT}, 5")
    e(f"s_mul_i32 s{sT2}, s{sFt}, 192")
    e(f"s_add_u32 s{sT}, s{sT}, s{sT2}")
    e(f"v_lshlrev_b32 v{vT}, 3, v{vH}")
    for ft in range(3):
        e(f"buffer_load_dwordx2 {vr(B+4*ft,2)}, v{vT}, s[{sB1}:{sB1+3}], s{sT} offen offset:{ft*64}")
        e(f"buffer_load_dwordx2 {vr(B+4*ft+2,2)}, v{vT}, s[{sB1}:{sB1+3}], s{sT} offen offset:{ft*64+16}")
    e(f"v_lshlrev_b32 v{vT+1}, 4, v{vL}")
    e(f"s_lshl_b32 s{sT}, s{sWave}, 11")
    e(f"v_add_u32 v{vT+1}, s{sT}, v{vT+1}")
    e(f"v_lshlrev_b32 v{vT+2}, 4, v{vL}")
    e(f"s_lshl_b32 s{sT}, s{sWave}, 13")
    e(f"v_add_u32 v{vT+2}, s{sT}, v{vT+2}")
    R = WF
    for ft in range(3):
        e("s_barrier")
        for own in range(4):
            dt, p = own >> 1, own & 1
            a = ACC + (ft*2 + dt)*16 + 8*p
            e(f"ds_write_b128 v{vT+1}, {vr(a,4)} offset:{own*8192}")
            e(f"ds_write_b128 v{vT+1}, {vr(a+4,4)} offset:{own*8192 + 1024}")
        e("s_waitcnt lgkmcnt(0)")
        e("s_barrier")
        a = ACC + ft*32
        for src in range(4):
            e(f"ds_read_b128 {vr(a+8*src,4)}, v{vT+2} offset:{src*2048}")
            e(f"ds_read_b128 {vr(a+8*src+4,4)}, v{vT+2} offset:{src*2048 + 1024}")
        e("s_waitcnt lgkmcnt(0)")
        for i in range(8):
            e(f"v_add_f32 v{a+i}, v{a+i}, v{a+8+i}")
            e(f"v_add_f32 v{a+16+i}, v{a+16+i}, v{a+24+i}")
        for i in range(8):
            e(f"v_add_f32 v{R+8*ft+i}, v{a+i}, v{a+16+i}")
    e("s_waitcnt vmcnt(0)")
    c0 = -2.0 * math.log2(math.e) * math.sqrt(2.0 / math.pi)
    c1 = c0 * 0.044715
    e(f"s_mov_b32 s{sIt}, {fhex(c1)}")
    e(f"v_mov_b32 v{vT}, {fhex(c0)}")
    T = ACC
    for ft in range(3):
        for j in range(4):
            e(f"v_lshlrev_b32 v{T+2*j}, 16, v{B+4*ft+j}")
            e(f"v_and_b32 v{T+2*j+1}, 0xffff0000, v{B+4*ft+j}")
        for i in range(8): e(f"v_add_f32 v{R+8*ft+i}, v{R+8*ft+i}, v{T+i}")
        for i in range(8): e(f"v_mul_f32 v{T+i}, v{R+8*ft+i}, v{R+8*ft+i}")
        for i in range(8): e(f"v_fma_f32 v{T+i}, v{T+i}, s{sIt}, v{vT}")
        for i in range(8): e(f"v_mul_f32 v{T+i}, v{T+i}, v{R+8*ft+i}")
        for i in range(8): e(f"v_exp_f32 v{T+i}, v{T+i}")
        for i in range(8): e(f"v_add_f32 v{T+i}, 1.0, v{T+i}")
        for i in range(8): e(f"v_rcp_f32 v{T+i}, v{T+i}")
        for i in range(8): e(f"v_mul_f32 v{R+8*ft+i}, v{R+8*ft+i}, v{T+i}")
        for j in range(4): e(f"v_cvt_pk_bf16_f32 v{R+8*ft+j}, v{R+8*ft+2*j}, v{R+8*ft+2*j+1}")
    e(f"s_mul_i32 s{sT}, s{sFt}, {6*20480}")
    e(f"s_and_b32 s{sT2}, s{sWave}, 1")
    e(f"s_mul_i32 s{sT2}, s{sT2}, 20480")
    e(f"s_add_u32 s{sT}, s{sT}, s{sT2}")
    e(f"s_lshl_b32 s{sT2}, s{sDt}, 10")
    e(f"s_add_u32 s{sT}, s{sT}, s{sT2}")
    e(f"s_lshr_b32 s{sT2}, s{sWave}, 1")
    e(f"s_lshl_b32 s{sT2}, s{sT2}, 9")
    e(f"s_add_u32 s{sT}, s{sT}, s{sT2}")
    e(f"s_add_u32 s{sT}, s{sT}, {U_OFF}")
    for ft in range(3):
        e(f"buffer_store_dwordx4 {vr(R+8*ft,4)}, v{vP}, s[{sWS}:{sWS+3}], s{sT} offen {ST}")
        if ft < 2: e(f"s_add_u32 s{sT}, s{sT}, 40960")
    e("s_endpgm")

def gen_k2(name, cfg):
    e = Em()
    e(f"s_cmp_ge_u32 s2, {NATT + NMLP1}")
    e(f"s_cbranch_scc1 {name}_end")
    e("s_load_dwordx2 s[4:5], s[0:1], 80")
    e(f"s_cmp_ge_u32 s2, {NATT}")
    e(f"s_cbranch_scc1 {name}_mlp")
    gen_attn(e, name + "_a", cfg)
    e.label(f"{name}_mlp")
    e("s_load_dwordx2 s[6:7], s[0:1], 32")
    e("s_load_dwordx2 s[38:39], s[0:1], 40")
    gen_mlp1(e, name + "_m", cfg)
    e.label(f"{name}_end")
    e("s_endpgm")
    return e.l, dict(vgpr=168, grid=NATT + NMLP1, block=256, lds=K2_LDS)
```

```python
from common import *
NS = 7
WREG = 25600 + NS * 2048
K3_LDS = 4 * WREG

def ar(a, n): return f"a[{a}:{a+n-1}]"

def gen_k3(name, cfg):
    e = Em()
    ST = cfg.get("k3_store", "")
    sWS, sWO, sW2, sX, sB2, sOUT = 8, 12, 16, 40, 44, 48
    sWave, sSt, sDt, sT, sT2, sM0, sWOo, sOo, sW2o, sUo, sXo = 20, 21, 22, 23, 24, 25, 26, 27, 28, 29, 30
    sMk = 32
    vL, vR, vH = 1, 2, 3
    vWOs = 4
    vW2s = 9
    vOp, vUp = 11, 12
    vAm, vAr, vB0, vB1 = 13, 14, 15, 16
    vXo = 17
    vLa = 20
    vB2 = 23
    vT = 26
    XR = 32
    OF = 44
    UF = 124
    WF = 208
    e("s_cmp_ge_u32 s2, 256")
    e(f"s_cbranch_scc1 {name}_end")
    e("s_load_dwordx2 s[4:5], s[0:1], 80")
    e("s_load_dwordx2 s[6:7], s[0:1], 16")
    e("s_load_dwordx4 s[52:55], s[0:1], 48")
    e("s_load_dwordx2 s[56:57], s[0:1], 0")
    e("s_load_dwordx2 s[58:59], s[0:1], 64")
    e(f"v_and_b32 v{vL}, 63, v0")
    e(f"v_lshrrev_b32 v{vT}, 6, v0")
    e(f"v_and_b32 v{vR}, 31, v0")
    e(f"v_readfirstlane_b32 s{sWave}, v{vT}")
    e(f"v_lshrrev_b32 v{vH}, 5, v{vL}")
    e("s_and_b32 s3, s2, 7")
    e(f"s_lshr_b32 s{sT}, s2, 3")
    e(f"s_lshr_b32 s{sSt}, s3, 1")
    e(f"s_lshl_b32 s{sSt}, s{sSt}, 3")
    e(f"s_and_b32 s{sT2}, s{sT}, 7")
    e(f"s_add_u32 s{sSt}, s{sSt}, s{sT2}")
    e(f"s_and_b32 s{sDt}, s3, 1")
    e(f"s_lshl_b32 s{sDt}, s{sDt}, 2")
    e(f"s_lshr_b32 s{sT2}, s{sT}, 3")
    e(f"s_add_u32 s{sDt}, s{sDt}, s{sT2}")
    e(f"s_mov_b32 s{sMk}, 0xffff"); e(f"s_mov_b32 s{sMk+1}, 0xffff")
    e(f"s_mul_i32 s{sM0}, s{sWave}, {WREG}")
    for n in range(5):
        e(f"v_add_u32 v{vT}, {64*n}, v{vL}")
        e(f"v_mul_u32_u24 v{vT+1}, 0xcccd, v{vT}")
        e(f"v_lshrrev_b32 v{vT+1}, 19, v{vT+1}")
        e(f"v_mul_u32_u24 v{vT+2}, 10, v{vT+1}")
        e(f"v_sub_u32 v{vT+2}, v{vT}, v{vT+2}")
        e(f"v_mul_u32_u24 v{vT+1}, 1280, v{vT+1}")
        e(f"v_lshl_add_u32 v{vWOs+n}, v{vT+2}, 4, v{vT+1}")
    e(f"s_mul_i32 s{sWOo}, s{sWave}, {160*1280}")
    e(f"s_mul_i32 s{sT}, s{sDt}, 160")
    e(f"s_add_u32 s{sWOo}, s{sWOo}, s{sT}")
    e(f"v_lshlrev_b32 v{vOp}, 4, v{vR}")
    e(f"v_lshl_add_u32 v{vOp}, v{vH}, 15, v{vOp}")
    e(f"s_mul_i32 s{sOo}, s{sWave}, {10*65536}")
    e(f"s_lshl_b32 s{sT}, s{sSt}, 10")
    e(f"s_add_u32 s{sOo}, s{sOo}, s{sT}")
    e(f"s_add_u32 s{sOo}, s{sOo}, {O_OFF}")
    e(f"v_lshrrev_b32 v{vT}, 3, v{vL}")
    e(f"v_lshlrev_b32 v{vT}, 12, v{vT}")
    e(f"v_bfe_u32 v{vT+1}, v{vL}, 4, 1")
    e(f"v_lshlrev_b32 v{vT+1}, 2, v{vT+1}")
    e(f"v_and_b32 v{vT+2}, 7, v{vL}")
    e(f"v_xor_b32 v{vT+1}, v{vT+1}, v{vT+2}")
    e(f"v_lshl_add_u32 v{vW2s}, v{vT+1}, 4, v{vT}")
    e(f"v_add_u32 v{vW2s+1}, {8*4096}, v{vW2s}")
    e(f"s_mul_i32 s{sW2o}, s{sWave}, {27*16*4096}")
    e(f"s_lshl_b32 s{sT}, s{sSt}, 7")
    e(f"s_add_u32 s{sW2o}, s{sW2o}, s{sT}")
    e(f"v_mul_u32_u24 v{vUp}, 10240, v{vH}")
    e(f"v_lshl_add_u32 v{vUp}, v{vR}, 4, v{vUp}")
    e(f"s_mul_i32 s{sUo}, s{sWave}, {27*20480}")
    e(f"s_mul_i32 s{sT}, s{sDt}, 1280")
    e(f"s_add_u32 s{sUo}, s{sUo}, s{sT}")
    e(f"s_add_u32 s{sUo}, s{sUo}, {U_OFF}")
    e("s_waitcnt lgkmcnt(0)")
    e.srd(sWS, 4, WS_USED)
    e.srd(sWO, 6, 640 * 1280)
    e.srd(sW2, 52, 1728 * 4096)
    e.srd(sB2, 54, 4096)
    e.srd(sX, 56, 2048 * 1280)
    e.srd(sOUT, 58, 2048 * 1280)
    def issue_wo(blk):
        for n in range(5):
            e(f"s_add_u32 m0, s{sM0}, {(blk*5 + n)*1024}")
            e.vm(f"buffer_load_dwordx4 v{vWOs+n}, s[{sWO}:{sWO+3}], s{sWOo} offen lds", f"wo{blk}")
        e(f"s_add_u32 s{sWOo}, s{sWOo}, {32*1280}")
    def issue_o(k):
        for ts in range(2):
            e.vm(f"buffer_load_dwordx4 {vr(OF+k*8+ts*4,4)}, v{vOp}, s[{sWS}:{sWS+3}], s{sOo} offen offset:{ts*512}", f"o{k}")
        e(f"s_add_u32 s{sOo}, s{sOo}, 65536")
    def issue_m(i):
        slot = i % NS
        for n in range(2):
            e(f"s_add_u32 m0, s{sM0}, {25600 + slot*2048 + n*1024}")
            e.vm(f"buffer_load_dwordx4 v{vW2s+n}, s[{sW2}:{sW2+3}], s{sW2o} offen lds", f"m{i}")
        for td in range(3):
            if td == 2: e(f"s_mov_b64 exec, s[{sMk}:{sMk+1}]")
            e.vm(f"buffer_load_dwordx4 {vr(UF+slot*12+td*4,4)}, v{vUp}, s[{sWS}:{sWS+3}], s{sUo} offen offset:{td*512}", f"m{i}")
        e("s_mov_b64 exec, -1")
        e(f"s_add_u32 s{sW2o}, s{sW2o}, {16*4096}")
        e(f"s_add_u32 s{sUo}, s{sUo}, 20480")
    issue_wo(0); issue_o(0); issue_wo(1); issue_o(1); issue_o(2); issue_wo(2); issue_o(3); issue_o(4)
    issue_o(5); issue_wo(3); issue_o(6); issue_wo(4); issue_o(7); issue_o(8); issue_o(9)
    issue_m(0); issue_m(1)
    e(f"v_bfe_u32 v{vT}, v{vL}, 2, 2")
    e(f"v_bfe_u32 v{vT+1}, v{vL}, 4, 1")
    e(f"v_lshlrev_b32 v{vT+1}, 5, v{vT+1}")
    e(f"v_and_b32 v{vT+2}, 3, v{vL}")
    e(f"v_lshl_add_u32 v{vT+1}, v{vT+2}, 3, v{vT+1}")
    e(f"v_add_u32 v{vT+1}, s{sM0}, v{vT+1}")
    e(f"v_lshl_add_u32 v{vT+2}, v{vH}, 2, v{vT}")
    e(f"v_mul_u32_u24 v{vAm}, 160, v{vT+2}")
    e(f"v_add_u32 v{vAm}, v{vAm}, v{vT+1}")
    e(f"v_mul_u32_u24 v{vAr}, 20, v{vH}")
    e(f"v_add3_u32 v{vAr}, v{vAr}, v{vT}, 16")
    e(f"v_mul_u32_u24 v{vAr}, 160, v{vAr}")
    e(f"v_add_u32 v{vAr}, v{vAr}, v{vT+1}")
    e(f"v_lshl_add_u32 v{vB0}, v{vT+2}, 7, v{vT+1}")
    e(f"v_lshrrev_b32 v{vT}, 1, v{vT}")
    e(f"v_lshlrev_b32 v{vT+2}, 6, v{vT}")
    e(f"v_xor_b32 v{vT+3}, 64, v{vT+2}")
    e(f"v_add_u32 v{vB1}, v{vB0}, v{vT+3}")
    e(f"v_add_u32 v{vB0}, v{vB0}, v{vT+2}")
    for n in range(3):
        e(f"v_add_u32 v{vT}, {256*n}, v0")
        e(f"v_mul_u32_u24 v{vT+1}, 0xcccd, v{vT}")
        e(f"v_lshrrev_b32 v{vT+1}, 19, v{vT+1}")
        e(f"v_mul_u32_u24 v{vT+2}, 10, v{vT+1}")
        e(f"v_sub_u32 v{vT+2}, v{vT}, v{vT+2}")
        e(f"v_min_u32 v{vT+1}, 63, v{vT+1}")
        e(f"v_mul_u32_u24 v{vXo+n}, 1280, v{vT+1}")
        e(f"v_lshl_add_u32 v{vXo+n}, v{vT+2}, 4, v{vXo+n}")
        e(f"v_mul_u32_u24 v{vLa+n}, 336, v{vT+1}")
        e(f"v_lshl_add_u32 v{vLa+n}, v{vT+2}, 5, v{vLa+n}")
        e(f"v_lshlrev_b32 v{vB2+n}, 1, v{vT+1}")
    e(f"s_mul_i32 s{sXo}, s{sSt}, {64*1280}")
    e(f"s_mul_i32 s{sT}, s{sDt}, 160")
    e(f"s_add_u32 s{sXo}, s{sXo}, s{sT}")
    for i in range(96): e(f"v_accvgpr_write_b32 a{i}, 0")
    steps = [("w", k) for k in range(10)] + [("m", i) for i in range(27)]
    def need(st):
        if st[0] == "w":
            k = st[1]; gq, a = divmod(k, 5)
            last = 80*gq + (79 if a == 4 else 20*a + 15)
            return [f"wo{b}" for b in range(last // 32 + 1)] + [f"o{k}"]
        return [f"m{st[1]}"]
    def reads(st, buf):
        n = 0
        if st[0] == "w":
            gq, a = divmod(st[1], 5)
            for td in range(3):
                for s in range(2):
                    if a < 4: e(f"ds_read_b64_tr_b16 {vr(WF+buf*12+td*4+2*s,2)}, v{vAm} offset:{(80*gq+20*a)*160 + td*64 + s*1280}")
                    else:     e(f"ds_read_b64_tr_b16 {vr(WF+buf*12+td*4+2*s,2)}, v{vAr} offset:{80*gq*160 + td*64 + s*6400}")
                    n += 1
        else:
            slot = st[1] % NS
            for ts in range(2):
                for s in range(2):
                    e(f"ds_read_b64_tr_b16 {vr(WF+buf*12+ts*4+2*s,2)}, v{vB0+ts} offset:{25600 + slot*2048 + s*1024}")
                    n += 1
        return n
    def mfmas(st, buf):
        for td in range(3):
            for ts in range(2):
                a = (td*2 + ts)*16
                if st[0] == "w": A, B = vr(WF+buf*12+td*4, 4), vr(OF+st[1]*8+ts*4, 4)
                else:            A, B = vr(UF+(st[1] % NS)*12+td*4, 4), vr(WF+buf*12+ts*4, 4)
                e(f"v_mfma_f32_32x32x16_bf16 {ar(a,16)}, {A}, {B}, {ar(a,16)}")
    nxt_m = 2
    e.vmwait(need(steps[0]))
    reads(steps[0], 0)
    for idx, st in enumerate(steps):
        if idx + 1 < len(steps):
            e.vmwait(need(steps[idx + 1]))
            n = reads(steps[idx + 1], (idx + 1) % 2)
            e(f"s_waitcnt lgkmcnt({n})")
        else:
            e("s_waitcnt lgkmcnt(0)")
        mfmas(st, idx % 2)
        done_m = st[1] if st[0] == "m" else -1
        if nxt_m < 27 and nxt_m - NS <= done_m and len(e.vmq) + 5 <= 60:
            issue_m(nxt_m); nxt_m += 1
        if idx == 30:
            for n in range(3):
                e.vm(f"buffer_load_dwordx4 {vr(XR+4*n,4)}, v{vXo+n}, s[{sX}:{sX+3}], s{sXo} offen", "x")
            e(f"s_lshl_b32 s{sT}, s{sSt}, 7")
            for n in range(3):
                e.vm(f"buffer_load_ushort v{vB2+n}, v{vB2+n}, s[{sB2}:{sB2+3}], s{sT} offen", "x")
    assert nxt_m == 27
    e(f"v_mul_u32_u24 v{vT}, 336, v{vR}")
    e(f"v_lshl_add_u32 v{vT}, v{vH}, 4, v{vT}")
    e(f"s_mul_i32 s{sT}, s{sWave}, 21504")
    e(f"v_add_u32 v{vT}, s{sT}, v{vT}")
    e("s_barrier")
    for td in range(3):
        for ts in range(2):
            for q in range(4 if td < 2 else 2):
                e(f"ds_write_b128 v{vT}, {ar((td*2+ts)*16 + 4*q, 4)} offset:{ts*32*336 + td*128 + q*32}")
    e("s_waitcnt lgkmcnt(0)")
    e("s_barrier")
    e("s_waitcnt vmcnt(0)")
    for n in range(3):
        if n == 2:
            e(f"s_cmp_ge_u32 s{sWave}, 2")
            e(f"s_cbranch_scc1 {name}_end")
        P = OF + (n % 2) * 32
        for w in range(4):
            e(f"ds_read_b128 {vr(P+8*w,4)}, v{vLa+n} offset:{w*21504}")
            e(f"ds_read_b128 {vr(P+8*w+4,4)}, v{vLa+n} offset:{w*21504 + 16}")
        e(f"v_lshlrev_b32 v{vB2+n}, 16, v{vB2+n}")
        for j in range(4):
            e(f"v_lshlrev_b32 v{UF+2*j}, 16, v{XR+4*n+j}")
            e(f"v_and_b32 v{UF+2*j+1}, 0xffff0000, v{XR+4*n+j}")
        for i in range(8): e(f"v_add_f32 v{UF+i}, v{UF+i}, v{vB2+n}")
        e("s_waitcnt lgkmcnt(0)")
        for i in range(8):
            e(f"v_add_f32 v{P+i}, v{P+i}, v{P+8+i}")
            e(f"v_add_f32 v{P+16+i}, v{P+16+i}, v{P+24+i}")
        for i in range(8): e(f"v_add_f32 v{P+i}, v{P+i}, v{UF+i}")
        for i in range(8): e(f"v_add_f32 v{P+i}, v{P+i}, v{P+16+i}")
        for j in range(4): e(f"v_cvt_pk_bf16_f32 v{P+j}, v{P+2*j}, v{P+2*j+1}")
        e(f"buffer_store_dwordx4 {vr(P,4)}, v{vXo+n}, s[{sOUT}:{sOUT+3}], s{sXo} offen {ST}")
    e.label(f"{name}_end")
    e("s_endpgm")
    return e.l, dict(vgpr=232, agpr=96, grid=256, block=256, lds=K3_LDS)
```

```python
import sys, json
sys.path.insert(0, "gen")
from common import *
import hazard, k1, k2, f2
BASE = "parallel_sum__mha_block__mixer_token_mlp__prompt"
def build(cfg, out):
    ref = open(f"cdna_kernels/{BASE}.s.ref").read().split("\n")
    head = [l for l in ref[:ref.index(next(x for x in ref if "@launch" in x and x.startswith("; @launch")))] if not l.startswith("; Override") and "Harness parses" not in l]
    ks = [("qkv_kernel", k1.gen_k1), ("attn_kernel", k2.gen_k2)]
    if cfg.get("fused", 1): ks = [(BASE + "_kernel", f2.gen_fused)]
    text, desc, launch = [], [], []
    for name, g in ks:
        lines, info = g(name, cfg)
        lines, npad = hazard.fix(lines)
        text += kernel_header(name) + lines
        desc.append(descriptor(name, info["vgpr"], 102 if cfg.get("stamp") else info.get("sgpr", 64), info.get("agpr", 0)))
        launch.append(f"; @launch {'kernel=' + name + ' ' if len(ks) > 1 or cfg.get('aslist') else ''}grid=({info['grid']},1,1) block=({info['block']},1,1) lds={info['lds']}")
        print(f"{name}: {len(lines)} lines, {npad} hazard pads, {info}")
    s = "\n".join(head + launch + ['.amdgcn_target "amdgcn-amd-amdhsa--gfx950"', ".text"] + text + ["code_end:", "    s_endpgm"] + ['.section .rodata,"a"'] + desc) + "\n"
    open(out, "w").write(s)
if __name__ == "__main__":
    cfg = json.loads(sys.argv[1]) if len(sys.argv) > 1 else {}
    out = sys.argv[2] if len(sys.argv) > 2 else f"cdna_kernels/{BASE}.s"
    build(cfg, out)
```

```python
import struct, math

QF_OFF = 0x000000
KV_OFF = 0x280000
HT_OFF = 0x780000
U_OFF  = 0xA00000
O_OFF  = 0xC20000
Z_OFF  = 0xEA0000
WOT_OFF = 0x13C0000
CNT_OFF = 0x14C0000
WS_USED = 0x1700000
STAMP_OFF = 0x1500000

def f2u(x):
    return struct.unpack("<I", struct.pack("<f", x))[0]
def fhex(x):
    return "0x%08x" % f2u(x)

class Em:
    def __init__(self, cfg={}):
        self.stamps = cfg.get('stamp', False)
        self.l = []
        self.vmq = []
    def __call__(self, s):
        for ln in s.split("\n"):
            ln = ln.strip()
            if not ln: continue
            self.l.append(ln if ln.endswith(":") or ln.startswith(".") else "    " + ln)
    def label(self, n): self.l.append(n + ":")
    def vm(self, s, tag):
        self(s); self.vmq.append(tag)
    def vmwait(self, tag, extra=""):
        tags = tag if isinstance(tag, (tuple, list, set)) else (tag,)
        idx = max([i for i, t in enumerate(self.vmq) if t in tags], default=-1)
        n = len(self.vmq) - 1 - idx
        self.vmq = self.vmq[idx + 1:]
        assert n <= 63, n
        self(f"s_waitcnt vmcnt({n}) {extra}".strip())
        return n
    def stamp(self, i):
        if not self.stamps: return
        self(f"s_memrealtime s[{60+4*i}:{61+4*i}]")
        self(f"s_memtime s[{62+4*i}:{63+4*i}]")
        self("s_waitcnt lgkmcnt(0)")
    def stamp_out(self, n, kidx, srd, swave):
        if not self.stamps: return
        self("s_waitcnt vmcnt(0)")
        self.stamp(n)
        self("s_mov_b64 exec, 1")
        self(f"s_lshl_b32 s100, s2, 2")
        self(f"s_add_u32 s100, s100, s{swave}")
        self(f"s_lshl_b32 s100, s100, 7")
        self(f"s_add_u32 s100, s100, {STAMP_OFF + kidx * 1024 * 512}")
        self("v_mov_b32 v1, 0")
        for i in range(n + 1):
            self(f"v_mov_b32 v2, s{60+4*i}")
            self(f"buffer_store_dword v2, v1, s[{srd}:{srd+3}], s100 offen offset:{4*i}")
            self(f"v_mov_b32 v3, s{62+4*i}")
            self(f"buffer_store_dword v3, v1, s[{srd}:{srd+3}], s100 offen offset:{64+4*i}")
    def srd(self, d, lo, size):
        self(f"s_mov_b32 s{d}, s{lo}")
        self(f"s_and_b32 s{d+1}, s{lo+1}, 0xffff")
        self(f"s_mov_b32 s{d+2}, {size}")
        self(f"s_mov_b32 s{d+3}, 0x00020000")

def vr(a, n):
    return f"v[{a}:{a+n-1}]" if n > 1 else f"v{a}"

def kernel_header(name):
    return [f".globl {name}", ".p2align 8", f".type {name},@function", f"{name}:"]

def descriptor(name, vgpr, sgpr=102, agpr=0):
    acc = (vgpr + 3) // 4 * 4
    return f""".p2align 6
.amdhsa_kernel {name}
  .amdhsa_next_free_vgpr {acc + agpr if agpr else vgpr}
  .amdhsa_next_free_sgpr {sgpr}
  .amdhsa_accum_offset {acc}
  .amdhsa_group_segment_fixed_size 0
  .amdhsa_kernarg_size 88
  .amdhsa_user_sgpr_count 2
  .amdhsa_user_sgpr_kernarg_segment_ptr 1
  .amdhsa_system_sgpr_workgroup_id_x 1
.end_amdhsa_kernel"""

def red32(e, s, t):
    e(f"v_add_f32_dpp v{t}, v{s}, v{s} quad_perm:[1,0,3,2] row_mask:0xf bank_mask:0xf")
    e(f"v_add_f32_dpp v{s}, v{t}, v{t} quad_perm:[2,3,0,1] row_mask:0xf bank_mask:0xf")
    e(f"v_add_f32_dpp v{t}, v{s}, v{s} row_half_mirror row_mask:0xf bank_mask:0xf")
    e(f"v_add_f32_dpp v{s}, v{t}, v{t} row_mirror row_mask:0xf bank_mask:0xf")
    e(f"v_mov_b32 v{t}, v{s}")
    e(f"v_permlane16_swap_b32 v{s}, v{t}")
    e(f"v_add_f32 v{s}, v{s}, v{t}")

def xhalf(e, s, t, op="v_add_f32"):
    e(f"v_mov_b32 v{t}, v{s}")
    e(f"v_permlane32_swap_b32 v{s}, v{t}")
    e(f"{op} v{s}, v{s}, v{t}")
```

```python
from common import *
OOB = 0x7f000000

class G16:
    def __init__(g, e, ACC, WF, PF, vP, vWs, vB, vT, sWave, sM0, sT):
        g.e, g.ACC, g.WF, g.PF, g.vP, g.vWs, g.vB, g.vT, g.sWave, g.sM0, g.sT = e, ACC, WF, PF, vP, vWs, vB, vT, sWave, sM0, sT
    def acc(g, t, td): return g.ACC + (t*5 + td)*4
    def setup_p(g, octstride):
        e, vT = g.e, g.vT
        e(f"v_bfe_u32 v{vT}, v0, 4, 2")
        e(f"v_mul_u32_u24 v{g.vP}, {octstride}, v{vT}")
        e(f"v_and_b32 v{vT}, 15, v0")
        e(f"v_lshl_add_u32 v{g.vP}, v{vT}, 4, v{g.vP}")
    def setup_w(g, rowstride):
        e, vT = g.e, g.vT
        e(f"v_bfe_u32 v{vT}, v0, 5, 1")
        e(f"v_bfe_u32 v{vT+1}, v0, 3, 2")
        e(f"v_lshl_add_u32 v{vT}, v{vT}, 3, v{vT+1}")
        e(f"v_mul_u32_u24 v{g.vWs}, {rowstride}, v{vT}")
        e(f"v_bfe_u32 v{vT}, v0, 4, 2")
        e(f"v_lshlrev_b32 v{vT}, 1, v{vT}")
        e(f"v_and_b32 v{vT+1}, 7, v0")
        e(f"v_xor_b32 v{vT}, v{vT}, v{vT+1}")
        e(f"v_lshl_add_u32 v{g.vWs}, v{vT}, 4, v{g.vWs}")
    def setup_tr(g):
        e, vT, vB = g.e, g.vT, g.vB
        e(f"v_bfe_u32 v{vT}, v0, 2, 4")
        e(f"v_lshlrev_b32 v{vB}, 7, v{vT}")
        e(f"v_bfe_u32 v{vT}, v0, 3, 2")
        e(f"v_xor_b32 v{vT}, s{g.sWave}, v{vT}")
        e(f"v_lshl_add_u32 v{vB}, v{vT}, 5, v{vB}")
        e(f"v_and_b32 v{vT}, 3, v0")
        e(f"v_lshl_add_u32 v{vB}, v{vT}, 3, v{vB}")
        e(f"v_add_u32 v{vB}, s{g.sM0}, v{vB}")
        for t in range(1, 4): e(f"v_xor_b32 v{vB+t}, {32*t}, v{vB}")
    def reduce(g, region=12288):
        e, vT, vB, sT = g.e, g.vT, g.vB, g.sT
        e(f"v_and_b32 v{vT}, 63, v0")
        e(f"v_lshlrev_b32 v{vT}, 4, v{vT}")
        e(f"v_add_u32 v{vB}, s{g.sM0}, v{vT}")
        e(f"s_xor_b32 s{sT}, s{g.sWave}, 1")
        e(f"s_mul_i32 s{sT}, s{sT}, {region}")
        e(f"v_add_u32 v{vB+1}, s{sT}, v{vT}")
        e(f"s_xor_b32 s{sT}, s{g.sWave}, 3")
        e(f"s_mul_i32 s{sT}, s{sT}, {region}")
        e(f"v_add_u32 v{vB+2}, s{sT}, v{vT}")
        for k, t in enumerate((1, 3)):
            for td in range(5):
                e(f"ds_write_b128 v{vB}, {vr(g.acc(t,td),4)} offset:{(k*5+td)*1024}")
        e("s_waitcnt lgkmcnt(0)")
        e("s_barrier")
        for k, t in ((1, 3), (0, 1)):
            for td in range(5):
                e(f"ds_read_b128 {vr(g.acc(t,td),4)}, v{vB+1} offset:{(k*5+td)*1024}")
        e("s_waitcnt lgkmcnt(5)")
        for i in range(20): e(f"v_add_f32 v{g.acc(2,0)+i}, v{g.acc(2,0)+i}, v{g.acc(3,0)+i}")
        e("s_waitcnt lgkmcnt(0)")
        for td in range(5):
            e(f"ds_write_b128 v{vB+1}, {vr(g.acc(2,td),4)} offset:{td*1024}")
        for i in range(20): e(f"v_add_f32 v{g.acc(0,0)+i}, v{g.acc(0,0)+i}, v{g.acc(1,0)+i}")
        e("s_waitcnt lgkmcnt(0)")
        e("s_barrier")
        for td in range(5):
            e(f"ds_read_b128 {vr(g.acc(1,td),4)}, v{vB+2} offset:{td*1024}")
        e("s_waitcnt lgkmcnt(0)")
        for i in range(20): e(f"v_add_f32 v{g.acc(0,0)+i}, v{g.acc(0,0)+i}, v{g.acc(1,0)+i}")

class Stream:
    def __init__(c, g, n, srdW, srdP, rowstride, pstep, pflags, w_is_A, sKw, sKp, sN, sWb, sPb, sWo, sPo, sW2, maybe_short):
        c.__dict__.update(locals()); c.e = g.e
    def _adv(c, sK, sO, sB, step, idx):
        e = c.e
        e(f"s_mul_i32 s{sO}, s{sK}, {step}")
        e(f"s_add_u32 s{sO}, s{sO}, s{sB}")
        if c.maybe_short and idx == c.n - 1:
            e(f"s_cmp_lt_u32 s{c.sN}, {c.n}")
            e(f"s_cselect_b32 s{sO}, {OOB}, s{sO}")
        e(f"s_add_u32 s{sK}, s{sK}, 1")
        e(f"s_cmp_eq_u32 s{sK}, s{c.sN}")
        e(f"s_cselect_b32 s{sK}, 0, s{sK}")
    def advW(c, i): c._adv(c.sKw, c.sWo, c.sWb, 32*c.rowstride, i)
    def advP(c, i): c._adv(c.sKp, c.sPo, c.sPb, c.pstep, i)
    def dmaW(c, i, n):
        e, g = c.e, c.g
        e(f"s_add_u32 m0, s{g.sM0}, {(i % 3)*4096 + n*1024}")
        row = 16*(n & 1) + 4*(n >> 1)
        so = c.sWo
        if row: e(f"s_add_u32 s{c.sW2}, s{c.sWo}, {row*c.rowstride}"); so = c.sW2
        e.vm(f"buffer_load_dwordx4 v{g.vWs}, s[{c.srdW}:{c.srdW+3}], s{so} offen lds", f"w{i}")
    def ldP(c, i, td):
        g = c.g
        c.e.vm(f"buffer_load_dwordx4 {vr(g.PF+(i%2)*20+td*4,4)}, v{g.vP}, s[{c.srdP}:{c.srdP+3}], s{c.sPo} offen offset:{td*256} {c.pflags}", f"p{i}_{td}")
    def reads(c, i):
        g = c.g
        return [f"ds_read_b64_tr_b16 {vr(g.WF+(i%2)*16+t*4+2*s,2)}, v{g.vB+t} offset:{(i%3)*4096 + s*2048}" for t in range(4) for s in range(2)]
    def preW(c):
        for i in range(3):
            c.advW(i)
            for n in range(4): c.dmaW(i, n)
    def preP(c):
        for i in range(2):
            c.advP(i)
            for td in range(5): c.ldP(i, td)
    def run(c):
        e, g = c.e, c.g
        e.vmwait("w0")
        for x in c.reads(0): e(x)
        if 3 < c.n:
            e("s_waitcnt lgkmcnt(0)")
            c.advW(3)
            for n in range(4): c.dmaW(3, n)
        for i in range(c.n):
            rd = []
            if i + 1 < c.n:
                e.vmwait([f"w{i+1}", f"p{i}_0"], "lgkmcnt(0)")
                rd = c.reads(i + 1)
            else:
                e.vmwait(f"p{i}_0", "lgkmcnt(0)")
            doP, doW = i + 2 < c.n, i + 4 < c.n
            if doP: c.advP(i + 2)
            for td in range(5):
                if td: e.vmwait(f"p{i}_{td}")
                if td == 2 and doW:
                    e("s_waitcnt lgkmcnt(0)")
                    c.advW(i + 4)
                for t in range(4):
                    w, p, a = vr(g.WF+(i%2)*16+t*4, 4), vr(g.PF+(i%2)*20+td*4, 4), vr(g.acc(t, td), 4)
                    A, B = (w, p) if c.w_is_A else (p, w)
                    e(f"v_mfma_f32_16x16x32_bf16 {a}, {A}, {B}, {a if i else 0}")
                    if td == 0 and rd:
                        e(rd.pop(0)); e(rd.pop(0))
                    if doW and ((td == 2 and t == 1) or (td == 3 and t in (0, 2)) or (td == 4 and t == 1)):
                        c.dmaW(i + 4, {(2,1):0, (3,0):1, (3,2):2, (4,1):3}[(td, t)])
                if doP: c.ldP(i + 2, td)
```

```python
from common import *
K1_LDS = 4 * 32768 + 8 * 1344 + 3 * 512
HB = 131072
ST_M = HB + 8 * 1344
ST_R = ST_M + 512
ST_C = ST_R + 512
EPS = 1e-5

def gen_k1(name, cfg):
    e = Em(cfg)
    ST = cfg.get("k1_store", "")
    sX, sW, sWS = 8, 12, 16
    sWave, sRow, sCol, sXo, sWo, sM0, sT, sOnes, sWr, sWc = 20, 21, 22, 23, 24, 25, 26, 27, 28, 29
    sScale, sStride, sBase, sT2, sT3, sRot, sR1, sR2 = 30, 31, 32, 33, 34, 35, 38, 39
    vL, vR, vH = 1, 2, 3
    vXs = 4
    vWs = 8
    vXa = 12
    vWa = 28
    vSum, vSq, vCs = 32, 33, 34
    vT = 36
    ACC = 64
    XF = 128
    WF = 144
    HX = 220
    CSA, vOne = 200, 216
    FR = 128
    SO = 192
    e("s_cmp_ge_u32 s2, 256")
    e(f"s_cbranch_scc1 {name}_end")
    e.stamp(0)
    e("s_load_dwordx4 s[4:7], s[0:1], 0")
    e("s_load_dwordx2 s[36:37], s[0:1], 80")
    e(f"v_and_b32 v{vL}, 63, v0")
    e(f"v_lshrrev_b32 v{vT}, 6, v0")
    e(f"v_and_b32 v{vR}, 31, v0")
    e(f"v_readfirstlane_b32 s{sWave}, v{vT}")
    e(f"v_lshrrev_b32 v{vH}, 5, v{vL}")
    e("s_and_b32 s3, s2, 7")
    e(f"s_lshr_b32 s{sT}, s2, 3")
    e(f"s_lshr_b32 s{sRow}, s3, 1")
    e(f"s_lshl_b32 s{sRow}, s{sRow}, 2")
    e(f"s_and_b32 s{sT2}, s{sT}, 3")
    e(f"s_add_u32 s{sRow}, s{sRow}, s{sT2}")
    e(f"s_and_b32 s{sCol}, s3, 1")
    e(f"s_lshl_b32 s{sCol}, s{sCol}, 3")
    e(f"s_lshr_b32 s{sT2}, s{sT}, 2")
    e(f"s_add_u32 s{sCol}, s{sCol}, s{sT2}")
    e(f"s_lshr_b32 s{sWr}, s{sWave}, 1")
    e(f"s_and_b32 s{sWc}, s{sWave}, 1")
    e(f"s_mov_b32 s{sOnes}, 0x3f803f80")
    e(f"s_cmp_ge_u32 s{sWave}, 4")
    e(f"s_cbranch_scc1 {name}_loader")
    e(f"s_lshl_b32 s{sT}, s2, 3")
    e(f"s_lshl_b32 s{sT2}, s{sWave}, 1")
    e(f"s_add_u32 s{sT}, s{sT}, s{sT2}")
    e(f"s_mul_i32 s{sT}, s{sT}, 1280")
    e(f"v_mul_u32_u24 v{vT}, 1280, v{vH}")
    e(f"v_lshl_add_u32 v{vT+1}, v{vR}, 4, v{vT}")
    e(f"v_lshl_add_u32 v{vT+2}, v{vR}, 3, v{vT}")
    e("s_waitcnt lgkmcnt(0)")
    e.srd(sX, 4, 2048 * 1280)
    e.srd(sWS, 36, WS_USED)
    e.vm(f"buffer_load_dwordx4 {vr(HX,4)}, v{vT+1}, s[{sX}:{sX+3}], s{sT} offen", "h")
    e.vm(f"buffer_load_dwordx4 {vr(HX+4,4)}, v{vT+1}, s[{sX}:{sX+3}], s{sT} offen offset:512", "h")
    e.vm(f"buffer_load_dwordx2 {vr(HX+8,2)}, v{vT+2}, s[{sX}:{sX+3}], s{sT} offen offset:1024", "h")

    def gen_loader():
        e.label(f"{name}_loader")
        e(f"s_sub_u32 s{sWave}, s{sWave}, 4")
        e("s_load_dwordx2 s[40:41], s[0:1], 32")
        def prefetch_w1(D=100):
            if not cfg.get("pf_w1", 0): return
            e.srd(44, 40, 2048 * 3456)
            e(f"s_lshr_b32 s{sT}, s3, 1")
            e(f"s_mul_i32 s{sT}, s{sT}, 27")
            e(f"s_lshr_b32 s{sT}, s{sT}, 2")
            e(f"s_lshl_b32 s{sT}, s{sT}, 7")
            e(f"s_lshr_b32 s{sT2}, s2, 3")
            e(f"s_lshl_b32 s{sT2}, s{sT2}, 2")
            e(f"s_add_u32 s{sT2}, s{sT2}, s{sWave}")
            e(f"s_mul_i32 s{sT2}, s{sT2}, {16*3456}")
            e(f"s_add_u32 s{sT}, s{sT}, s{sT2}")
            e(f"v_lshlrev_b32 v{vT+4}, 4, v{vL}")
            for n in range(16):
                e.vm(f"buffer_load_dwordx4 {vr(D+4*(n%4),4)}, v{vT+4}, s[44:47], s{sT} offen", "pf")
                e(f"s_add_u32 s{sT}, s{sT}, 3456")
        e(f"s_cmp_lg_u32 s{sCol}, 15")
        e(f"s_cbranch_scc1 {name}_ld2")
        e("s_load_dwordx2 s[42:43], s[0:1], 16")
        e(f"v_lshlrev_b32 v{vT+4}, 4, v{vL}")
        e(f"s_mul_i32 s{sT}, s{sRow}, {40*1280}")
        e(f"s_lshl_b32 s{sM0}, s{sWave}, 10")
        e(f"s_add_u32 s{sT}, s{sT}, s{sM0}")
        e("s_waitcnt lgkmcnt(0)")
        e.srd(48, 42, 640 * 1280)
        e.srd(sWS, 36, WS_USED)
        for n in range(13):
            e(f"s_add_u32 m0, s{sM0}, {n*4096}")
            e(f"buffer_load_dwordx4 v{vT+4}, s[48:51], s{sT} offen lds")
            e(f"s_add_u32 s{sT}, s{sT}, 4096")
        e(f"v_bfe_u32 v{vT}, v{vL}, 2, 2")
        e(f"v_mul_u32_u24 v{vT}, 1280, v{vT}")
        e(f"v_lshrrev_b32 v{vT+1}, 4, v{vL}")
        e(f"v_lshl_add_u32 v{vT}, v{vT+1}, 5, v{vT}")
        e(f"v_and_b32 v{vT+1}, 3, v{vL}")
        e(f"v_lshl_add_u32 v{vT}, v{vT+1}, 3, v{vT}")
        e(f"s_lshr_b32 s{sT}, s{sRow}, 2")
        e(f"s_mul_i32 s{sT}, s{sT}, 20")
        e(f"s_and_b32 s{sT2}, s{sRow}, 3")
        e(f"s_add_u32 s{sR1}, s{sT}, s{sT2}")
        e(f"s_add_u32 s{sR1}, s{sR1}, 16")
        e(f"s_mul_i32 s{sR1}, s{sR1}, 10240")
        e(f"s_lshl_b32 s{sT2}, s{sT2}, 2")
        e(f"s_add_u32 s{sR2}, s{sT}, s{sT2}")
        e(f"s_mul_i32 s{sR2}, s{sR2}, 10240")
        e("s_waitcnt vmcnt(0)")
        e("s_barrier")
        for j in range(3):
            e(f"s_add_u32 s{sT}, s{sWave}, {4*j}")
            e(f"s_min_u32 s{sT}, s{sT}, 9")
            e(f"s_lshl_b32 s{sT2}, s{sT}, 7")
            e(f"v_add_u32 v{vT+1}, s{sT2}, v{vT}")
            for o in range(5):
                r0, r1 = (20*(o >> 1) + 4*(o & 1), 20*(o >> 1) + 4*(o & 1) + 8) if o < 4 else (16, 36)
                e(f"ds_read_b64_tr_b16 {vr(64+20*j+4*o,2)}, v{vT+1} offset:{r0*1280}")
                e(f"ds_read_b64_tr_b16 {vr(64+20*j+4*o+2,2)}, v{vT+1} offset:{r1*1280}")
            e(f"s_lshl_b32 s{sT}, s{sT}, 10")
            e(f"s_add_u32 s{sT}, s{sT}, {WOT_OFF}")
            e("s_waitcnt lgkmcnt(0)")
            for o in range(5):
                if o < 4: e(f"s_add_u32 s{sT2}, s{sR2}, {o*10240}")
                else: e(f"s_mov_b32 s{sT2}, s{sR1}")
                e(f"s_add_u32 s{sT2}, s{sT2}, s{sT}")
                e(f"buffer_store_dwordx4 {vr(64+20*j+4*o,4)}, v{vT+4}, s[{sWS}:{sWS+3}], s{sT2} offen sc1")
        prefetch_w1(128)
        e("s_endpgm")
        e.label(f"{name}_ld2")
        e(f"s_setprio {cfg.get('k1_lprio', 0)}")
        e(f"v_lshrrev_b32 v{vT}, 3, v{vL}")
        e(f"s_lshl_b32 s{sT}, s{sWave}, 3")
        e(f"v_add_u32 v{vT}, s{sT}, v{vT}")
        e(f"v_mul_u32_u24 v{vT}, 1280, v{vT}")
        e(f"v_lshrrev_b32 v{vT+1}, 4, v{vL}")
        e(f"s_lshl_b32 s{sT}, s{sWc}, 2")
        e(f"v_add_u32 v{vT+2}, s{sT}, v{vT+1}")
        e(f"v_and_b32 v{vT+3}, 7, v{vL}")
        e(f"v_xor_b32 v{vT+2}, v{vT+2}, v{vT+3}")
        e(f"v_lshl_add_u32 v{vXs}, v{vT+2}, 4, v{vT}")
        for n in range(1, 4):
            e(f"v_add_u32 v{vXs+n}, {n*32*1280}, v{vXs}")
        e(f"s_lshl_b32 s{sT}, s{sWave}, 2")
        e(f"v_add_u32 v{vT}, s{sT}, v{vT+1}")
        e(f"v_mul_u32_u24 v{vT}, 3840, v{vT}")
        e(f"v_bfe_u32 v{vT+2}, v{vL}, 2, 2")
        e(f"v_xor_b32 v{vT+2}, v{vT+2}, v{vT+1}")
        e(f"v_lshl_add_u32 v{vT}, v{vT+2}, 6, v{vT}")
        e(f"v_and_b32 v{vT+2}, 3, v{vL}")
        e(f"v_lshl_add_u32 v{vWs}, v{vT+2}, 4, v{vT}")
        for n in range(1, 4):
            e(f"v_add_u32 v{vWs+n}, {n*16*3840}, v{vWs}")
        e(f"s_mul_i32 s{sXo}, s{sRow}, {128*1280}")
        e(f"s_lshl_b32 s{sWo}, s{sCol}, 8")
        e(f"s_lshl_b32 s{sM0}, s{sWave}, 10")
        e(f"s_and_b32 s{sT}, s{sRow}, 3")
        e(f"s_mul_i32 s{sT}, s{sT}, 5")
        e(f"s_lshr_b32 s{sT}, s{sT}, 1")
        e(f"s_lshl_b32 s{sT2}, s{sCol}, 2")
        e(f"s_add_u32 s{sT}, s{sT}, s{sT2}")
        e(f"s_mul_i32 s{sT2}, s{sT}, 0xcccd")
        e(f"s_lshr_b32 s{sT2}, s{sT2}, 19")
        e(f"s_mul_i32 s{sT2}, s{sT2}, 10")
        e(f"s_sub_u32 s{sRot}, s{sT}, s{sT2}")
        if not cfg.get("k1_rot", 1): e(f"s_mov_b32 s{sRot}, 0")
        e(f"s_lshl_b32 s{sT}, s{sRot}, 7")
        e(f"s_add_u32 s{sXo}, s{sXo}, s{sT}")
        e(f"s_mul_i32 s{sT}, s{sRot}, {64*3840}")
        e(f"s_add_u32 s{sWo}, s{sWo}, s{sT}")
        e("s_waitcnt lgkmcnt(0)")
        e.srd(sX, 4, 2048 * 1280)
        e.srd(sW, 6, 640 * 3840)
        e.vmq = []
        def dma(stage, fill=None):
            slot = (stage % 4) * 32768
            fill = fill or []
            per = (len(fill) + 6) // 7
            k = 0
            for n in range(4):
                for (o, v, srd, so) in ((0, vXs, sX, sXo), (16384, vWs, sW, sWo)):
                    e(f"s_add_u32 m0, s{sM0}, {slot + o + n*4096}")
                    e.vm(f"buffer_load_dwordx4 v{v+n}, s[{srd}:{srd+3}], s{so} offen lds", f"st{stage}")
                    if k >= 1:
                        for x in fill[(k-1)*per:k*per]: e(x)
                    k += 1
            e(f"s_add_u32 s{sRot}, s{sRot}, 1")
            e(f"s_cmp_eq_u32 s{sRot}, 10")
            e(f"s_cselect_b32 s{sR1}, 1280, 0")
            e(f"s_cselect_b32 s{sR2}, {640*3840}, 0")
            e(f"s_add_u32 s{sXo}, s{sXo}, 128")
            e(f"s_add_u32 s{sWo}, s{sWo}, {64*3840}")
            e(f"s_sub_u32 s{sXo}, s{sXo}, s{sR1}")
            e(f"s_sub_u32 s{sWo}, s{sWo}, s{sR2}")
        dma(0); dma(1)
        RX, RS, RU = 64, 80, 88
        e(f"v_lshlrev_b32 v{vT}, 4, v{vL}")
        e(f"v_add_u32 v{vT}, s{sM0}, v{vT}")
        e(f"v_add_u32 v{vT+1}, 0x10000, v{vT}")
        for i in range(8): e(f"v_mov_b32 v{RS+i}, 0")
        for st in range(10):
            e.vmwait(f"st{st}")
            e("s_barrier")
            slot = (st % 4) * 32768
            for n in range(4):
                e(f"ds_read_b128 {vr(RX+4*n,4)}, v{vT + (slot >= 65536)} offset:{slot % 65536 + n*4096}")
            f = ["s_waitcnt lgkmcnt(0)"]
            if cfg.get("k1_stats", "group") in ("group", "row"):
                for i in range(4):
                    for n in range(4):
                        f.append(f"v_lshlrev_b32 v{RU+2*n}, 16, v{RX+4*n+i}")
                        f.append(f"v_and_b32 v{RU+2*n+1}, 0xffff0000, v{RX+4*n+i}")
                    for n in range(4):
                        f.append(f"v_add_f32 v{RS+n}, v{RS+n}, v{RU+2*n}")
                        f.append(f"v_fmac_f32 v{RS+4+n}, v{RU+2*n}, v{RU+2*n}")
                    for n in range(4):
                        f.append(f"v_add_f32 v{RS+n}, v{RS+n}, v{RU+2*n+1}")
                        f.append(f"v_fmac_f32 v{RS+4+n}, v{RU+2*n+1}, v{RU+2*n+1}")
            if st + 2 < 10: dma(st + 2, f)
            else:
                for x in f: e(x)
            if st == cfg.get("pf_w1_at", 10): prefetch_w1()
        for mod in ("quad_perm:[1,0,3,2]", "quad_perm:[2,3,0,1]", "row_half_mirror"):
            for i in range(8):
                e(f"v_add_f32_dpp v{RS+i}, v{RS+i}, v{RS+i} {mod} row_mask:0xf bank_mask:0xf")
        for n in range(4): e(f"v_mul_f32 v{RS+n}, {fhex(1/640)}, v{RS+n}")
        for n in range(4): e(f"v_mul_f32 v{RS+4+n}, {fhex(1/640)}, v{RS+4+n}")
        for n in range(4): e(f"v_fma_f32 v{RS+4+n}, -v{RS+n}, v{RS+n}, v{RS+4+n}")
        for n in range(4): e(f"v_max_f32 v{RS+4+n}, 0, v{RS+4+n}")
        for n in range(4): e(f"v_add_f32 v{RS+4+n}, {fhex(EPS)}, v{RS+4+n}")
        for n in range(4): e(f"v_rsq_f32 v{RS+4+n}, v{RS+4+n}")
        e(f"v_lshrrev_b32 v{vT}, 3, v{vL}")
        e(f"s_lshl_b32 s{sT}, s{sWave}, 5")
        e(f"s_add_u32 s{sT}, s{sT}, {ST_M}")
        e(f"v_lshl_add_u32 v{vT}, v{vT}, 2, s{sT}")
        for n in range(4):
            e(f"ds_write_b32 v{vT}, v{RS+n} offset:{n*128}")
            e(f"ds_write_b32 v{vT}, v{RS+4+n} offset:{512 + n*128}")
        e("s_waitcnt lgkmcnt(0)")
        e("s_barrier")
        if cfg.get("pf_w1_at", 10) == 10: prefetch_w1()
        e("s_endpgm")

    e(f"v_bfe_u32 v{vT}, v{vR}, 1, 3")
    e(f"v_xor_b32 v{vT}, v{vT}, v{vH}")
    e(f"v_lshlrev_b32 v{vT}, 4, v{vT}")
    e(f"v_lshl_add_u32 v{vT}, v{vR}, 7, v{vT}")
    e(f"s_lshl_b32 s{sT}, s{sWr}, 13")
    e(f"s_lshl_b32 s{sT2}, s{sWc}, 12")
    e(f"s_add_u32 s{sT}, s{sT}, s{sT2}")
    e(f"v_add_u32 v{vT}, s{sT}, v{vT}")
    for tt in range(2):
        for kk in range(4):
            e(f"v_xor_b32 v{vXa + tt*4 + kk}, {tt*4096 + kk*32}, v{vT}")
            e(f"v_add_u32 v{vXa + 8 + tt*4 + kk}, 0x10000, v{vXa + tt*4 + kk}")
    e(f"v_bfe_u32 v{vT}, v{vL}, 2, 2")
    e(f"v_lshl_add_u32 v{vT+1}, v{vH}, 3, v{vT}")
    e(f"v_lshlrev_b32 v{vT+1}, 8, v{vT+1}")
    e(f"s_lshl_b32 s{sT}, s{sWc}, 1")
    e(f"s_add_u32 s{sT}, s{sT}, s{sWr}")
    e(f"v_xor_b32 v{vT}, s{sT}, v{vT}")
    e(f"v_lshl_add_u32 v{vT+1}, v{vT}, 6, v{vT+1}")
    e(f"v_bfe_u32 v{vT}, v{vL}, 4, 1")
    e(f"v_lshl_add_u32 v{vT+1}, v{vT}, 5, v{vT+1}")
    e(f"v_and_b32 v{vT}, 3, v{vL}")
    e(f"v_lshl_add_u32 v{vT+1}, v{vT}, 3, v{vT+1}")
    e(f"v_add_u32 v{vWa}, 16384, v{vT+1}")
    e(f"v_xor_b32 v{vWa+1}, 64, v{vWa}")
    e(f"v_add_u32 v{vWa+2}, 0x10000, v{vWa}")
    e(f"v_add_u32 v{vWa+3}, 0x10000, v{vWa+1}")
    for i in range(64):
        e(f"v_mov_b32 v{ACC+i}, 0")
    for i in range(16): e(f"v_mov_b32 v{CSA+i}, 0")
    for i in range(4): e(f"v_mov_b32 v{vOne+i}, s{sOnes}")
    e(f"s_cmp_ge_u32 s{sCol}, 10")
    e(f"s_cbranch_scc1 {name}_sov")
    e(f"s_cmp_ge_u32 s{sCol}, 5")
    e(f"s_cselect_b32 s{sScale}, 1.0, {fhex(math.log2(math.e) / math.sqrt(20.0))}")
    e(f"s_movk_i32 s{sStride}, 1280")
    e(f"s_cselect_b32 s{sStride}, 2560, s{sStride}")
    e(f"s_cselect_b32 s{sBase}, {KV_OFF}, {QF_OFF}")
    e(f"s_cselect_b32 s{sT}, 5, 0")
    e(f"s_sub_u32 s{sT}, s{sCol}, s{sT}")
    e(f"s_lshl_b32 s{sT}, s{sT}, 5")
    e(f"s_lshl_b32 s{sT2}, s{sWc}, 4")
    e(f"s_add_u32 s{sT}, s{sT}, s{sT2}")
    e(f"s_lshl_b32 s{sT3}, s{sStride}, 6")
    for ct in range(2):
        e(f"s_xor_b32 s{sT2}, s{sWr}, {ct}")
        e(f"s_lshl_b32 s{sT2}, s{sT2}, 3")
        e(f"s_add_u32 s{sT2}, s{sT2}, s{sT}")
        for q in range(4):
            o = SO + ct*4 + q
            e(f"v_add_u32 v{vT}, s{sT2}, v{vH}")
            e(f"v_add_u32 v{vT}, {2*q}, v{vT}")
            e(f"v_mul_u32_u24 v{vT+1}, 0xcccd, v{vT}")
            e(f"v_lshrrev_b32 v{vT+1}, 18, v{vT+1}")
            e(f"v_mul_u32_u24 v{vT+2}, 5, v{vT+1}")
            e(f"v_sub_u32 v{vT+2}, v{vT}, v{vT+2}")
            e(f"v_mul_lo_u32 v{o}, v{vT+1}, s{sT3}")
            e(f"v_lshrrev_b32 v{vT+3}, 1, v{vT+2}")
            e(f"v_lshl_add_u32 v{o}, v{vT+3}, 9, v{o}")
            e(f"v_and_b32 v{vT+3}, 1, v{vT+2}")
            e(f"v_lshl_add_u32 v{o}, v{vT+3}, 3, v{o}")
            e(f"v_lshrrev_b32 v{vT+3}, 2, v{vT+2}")
            e(f"v_sub_u32 v{vT+3}, 4, v{vT+3}")
            e(f"v_lshlrev_b32 v{vT+3}, v{vT+3}, v{vR}")
            e(f"v_add_u32 v{o}, v{o}, v{vT+3}")
    e(f"s_branch {name}_sod")
    e.label(f"{name}_sov")
    for i in range(2, 8): e(f"v_mov_b32 v{SO+i}, 0")
    e(f"s_sub_u32 s{sT}, s{sCol}, 10")
    e(f"s_lshl_b32 s{sT}, s{sT}, 7")
    e(f"s_lshl_b32 s{sT2}, s{sWc}, 6")
    e(f"s_add_u32 s{sT}, s{sT}, s{sT2}")
    e(f"s_mov_b32 s{sT3}, {64*2560}")
    for ct in range(2):
        e(f"s_xor_b32 s{sT2}, s{sWr}, {ct}")
        e(f"s_lshl_b32 s{sT2}, s{sT2}, 5")
        e(f"s_add_u32 s{sT2}, s{sT2}, s{sT}")
        o = SO + ct
        e(f"v_add_u32 v{vT}, s{sT2}, v{vR}")
        e(f"v_mul_u32_u24 v{vT+1}, 0xcccd, v{vT}")
        e(f"v_lshrrev_b32 v{vT+1}, 20, v{vT+1}")
        e(f"v_mul_u32_u24 v{vT+2}, 20, v{vT+1}")
        e(f"v_sub_u32 v{vT+2}, v{vT}, v{vT+2}")
        e(f"v_mul_lo_u32 v{o}, v{vT+1}, s{sT3}")
        e(f"v_lshl_add_u32 v{o}, v{vT+2}, 4, v{o}")
        e(f"v_mul_u32_u24 v{vT+2}, 320, v{vH}")
        e(f"v_add_u32 v{o}, v{o}, v{vT+2}")
    e.label(f"{name}_sod")
    e.stamp(1)
    e.vmwait("h")
    e.stamp(2)
    F = HX + 10
    def ln_pass():
        e(f"v_mov_b32 v{vT}, 0"); e(f"v_mov_b32 v{vT+2}, 0")
        for i in range(10):
            e(f"v_dot2_f32_bf16 v{vT}, v{HX+i}, s{sOnes}, v{vT}")
            e(f"v_dot2_f32_bf16 v{vT+2}, v{HX+i}, v{HX+i}, v{vT+2}")
        a, b = Em(), Em()
        red32(a, vT, vT + 1); red32(b, vT + 2, vT + 3)
        un = []
        for i in range(10):
            un.append(f"v_lshlrev_b32 v{F+2*i}, 16, v{HX+i}")
            un.append(f"v_and_b32 v{F+2*i+1}, 0xffff0000, v{HX+i}")
        for k in range(7):
            for x in un[3*k:3*k+3]: e(x)
            e(a.l[k]); e(b.l[k])
        e(f"v_mul_f32 v{vT}, {fhex(1/640)}, v{vT}")
        e(f"v_mul_f32 v{vT+2}, {fhex(1/640)}, v{vT+2}")
        e(f"v_fma_f32 v{vT+2}, -v{vT}, v{vT}, v{vT+2}")
        e(f"v_max_f32 v{vT+2}, 0, v{vT+2}")
        e(f"v_add_f32 v{vT+2}, {fhex(EPS)}, v{vT+2}")
        e(f"v_rsq_f32 v{vT+2}, v{vT+2}")
        for i in range(10):
            e(f"v_pk_add_f32 {vr(F+2*i,2)}, {vr(F+2*i,2)}, {vr(vT,2)} op_sel_hi:[1,0] neg_lo:[0,1] neg_hi:[0,1]")
        for i in range(10):
            e(f"v_pk_mul_f32 {vr(F+2*i,2)}, {vr(F+2*i,2)}, {vr(vT+2,2)} op_sel_hi:[1,0]")
        for i in range(10):
            e(f"v_cvt_pk_bf16_f32 v{HX+i}, v{F+2*i}, v{F+2*i+1}")
    ln_pass(); ln_pass()
    e(f"s_lshl_b32 s{sT}, s{sWave}, 1")
    e(f"v_add_u32 v{vT}, s{sT}, v{vH}")
    e(f"v_mul_u32_u24 v{vT}, 1344, v{vT}")
    e(f"v_add_u32 v{vT}, {HB}, v{vT}")
    e(f"v_lshl_add_u32 v{vT+1}, v{vR}, 4, v{vT}")
    e(f"v_lshl_add_u32 v{vT+2}, v{vR}, 3, v{vT}")
    e(f"ds_write_b128 v{vT+1}, {vr(HX,4)}")
    e(f"ds_write_b128 v{vT+1}, {vr(HX+4,4)} offset:512")
    e(f"ds_write_b64 v{vT+2}, {vr(HX+8,2)} offset:1024")
    e(f"v_bfe_u32 v{vT}, v{vL}, 2, 2")
    e(f"v_mul_u32_u24 v{vT}, 1344, v{vT}")
    e(f"v_lshrrev_b32 v{vT+1}, 4, v{vL}")
    e(f"v_lshl_add_u32 v{vT}, v{vT+1}, 5, v{vT}")
    e(f"v_and_b32 v{vT+1}, 3, v{vL}")
    e(f"v_lshl_add_u32 v{vT}, v{vT+1}, 3, v{vT}")
    e(f"v_add_u32 v{vT}, {HB}, v{vT}")
    e(f"v_lshlrev_b32 v{vT+4}, 4, v{vL}")
    e.stamp(3)
    e("s_waitcnt lgkmcnt(0)")
    e("s_barrier")
    for j in range(3):
        e(f"s_add_u32 s{sT}, s{sWave}, {4*j}")
        e(f"s_min_u32 s{sT}, s{sT}, 9")
        e(f"s_lshl_b32 s{sT2}, s{sT}, 7")
        e(f"v_add_u32 v{vT+1+j}, s{sT2}, v{vT}")
        e(f"ds_read_b64_tr_b16 {vr(F+4*j,2)}, v{vT+1+j}")
        e(f"ds_read_b64_tr_b16 {vr(F+4*j+2,2)}, v{vT+1+j} offset:{4*1344}")
    e(f"s_cmp_eq_u32 s2, 0")
    e(f"s_mov_b32 s{sT3}, 0x7f000000")
    e(f"s_cselect_b32 s{sT3}, {CNT_OFF}, s{sT3}")
    e(f"v_mov_b32 v{vT+5}, 0")
    e(f"buffer_store_dword v{vT+5}, v{vT+4}, s[{sWS}:{sWS+3}], s{sT3} offen")
    e(f"s_mul_i32 s{sT3}, s2, 10240")
    e(f"s_add_u32 s{sT3}, s{sT3}, {HT_OFF}")
    e("s_waitcnt lgkmcnt(0)")
    for j in range(3):
        e(f"s_add_u32 s{sT}, s{sWave}, {4*j}")
        e(f"s_min_u32 s{sT}, s{sT}, 9")
        e(f"s_lshl_b32 s{sT2}, s{sT}, 10")
        e(f"s_add_u32 s{sT2}, s{sT2}, s{sT3}")
        e.vm(f"buffer_store_dwordx4 {vr(F+4*j,4)}, v{vT+4}, s[{sWS}:{sWS+3}], s{sT2} offen sc1", "hs")
    e(f"s_cmp_eq_u32 s{sCol}, 15")
    e(f"s_cbranch_scc1 {name}_end")
    e(f"s_cmp_ge_u32 s{sCol}, 10")
    e(f"s_cbranch_scc1 {name}_v")
    def mainloop(isV):
        NB = 3
        def reads(j):
            if j >= 40: return [[], [], []]
            stage, kk, buf = j // 4, j % 4, j % NB
            slot = (stage % 4) * 32768
            hi = slot >= 65536
            off = slot - (65536 if hi else 0)
            X = [f"ds_read_b128 {vr(FR + buf*16 + tt*4, 4)}, v{vXa + (8 if hi else 0) + tt*4 + kk} offset:{off}" for tt in range(2)]
            W = [[f"ds_read_b64_tr_b16 {vr(FR + buf*16 + 8 + ct*4 + 2*s, 2)}, v{vWa + (2 if hi else 0) + ct} offset:{off + kk*4096 + s*1024}" for s in range(2)] for ct in range(2)]
            return [[X[0], X[1]], W[0], W[1]]
        mode = cfg.get("k1_stats", "group")
        e.stamp(4)
        e(f"s_setprio {cfg.get('k1_cprio', 0)}")
        for j in range(2):
            for g in reads(j):
                for x in g: e(x)
        for j in range(40):
            buf = j % NB
            def mf(tt, ct):
                acc = ACC + (tt*2 + ct) * 16
                x = vr(FR + buf*16 + tt*4, 4); w = vr(FR + buf*16 + 8 + ct*4, 4)
                A, B = (x, w) if isV else (w, x)
                e(f"v_mfma_f32_32x32x16_bf16 {vr(acc,16)}, {A}, {B}, {vr(acc,16)}")
            nxt = reads(j + 2)
            e(f"s_waitcnt lgkmcnt({6 if j < 39 else 0})")
            mf(0, 0)
            if j % 4 == 2 and j < 36: e("s_barrier")
            for x in nxt[0]: e(x)
            mf(0, 1)
            for x in nxt[1]: e(x)
            mf(1, 0)
            for x in nxt[2]: e(x)
            mf(1, 1)
            if mode in ("group", "col"):
                e(f"v_mfma_f32_32x32x16_bf16 {vr(CSA,16)}, {vr(vOne,4)}, {vr(FR+buf*16+8,4)}, {vr(CSA,16)}")
            if j == 19: e.stamp(5)

    def stats():
        e.stamp(6)
        e(f"s_lshl_b32 s{sT}, s{sWr}, 8")
        e(f"s_lshl_b32 s{sT2}, s{sWc}, 7")
        e(f"s_add_u32 s{sT}, s{sT}, s{sT2}")
        e(f"s_add_u32 s{sT}, s{sT}, {ST_M}")
        e(f"v_lshl_add_u32 v{vT}, v{vR}, 2, s{sT}")
        e(f"s_lshl_b32 s{sT}, s{sWc}, 8")
        e(f"s_lshl_b32 s{sT2}, s{sWr}, 7")
        e(f"s_add_u32 s{sT}, s{sT}, s{sT2}")
        e(f"s_add_u32 s{sT}, s{sT}, {ST_C}")
        e(f"v_lshl_add_u32 v{vT+1}, v{vR}, 2, s{sT}")
        e(f"ds_write_b32 v{vT+1}, v{CSA}")
        e("s_waitcnt lgkmcnt(0)")
        e("s_barrier")

    mainloop(False)
    stats()
    CS = XF
    e(f"v_xor_b32 v{vT+2}, 128, v{vT}")
    e(f"ds_read_b32 v{vT+4}, v{vT}"); e(f"ds_read_b32 v{vT+5}, v{vT} offset:512")
    e(f"ds_read_b32 v{vT+6}, v{vT+2}"); e(f"ds_read_b32 v{vT+7}, v{vT+2} offset:512")
    e(f"v_lshl_add_u32 v{vT+1}, v{vH}, 4, s{sT}")
    e(f"v_xor_b32 v{vT+3}, 128, v{vT+1}")
    for ct in range(2):
        for q in range(4):
            e(f"ds_read_b128 {vr(CS + ct*16 + q*4, 4)}, v{vT+1+2*ct} offset:{q*32}")
    e("s_waitcnt lgkmcnt(0)")
    e(f"v_mul_f32 v{vT+5}, s{sScale}, v{vT+5}")
    e(f"v_mul_f32 v{vT+7}, s{sScale}, v{vT+7}")
    for tt in range(2):
        e(f"s_xor_b32 s{sT}, s{sWc}, {tt}")
        e(f"s_lshl_b32 s{sT2}, s{sWr}, 1")
        e(f"s_add_u32 s{sT}, s{sT}, s{sT2}")
        e(f"s_lshl_b32 s{sT2}, s{sRow}, 2")
        e(f"s_add_u32 s{sT}, s{sT}, s{sT2}")
        e(f"s_mul_i32 s{sT}, s{sT}, s{sStride}")
        e(f"s_add_u32 s{sT}, s{sT}, s{sBase}")
        for ct in range(2):
            acc = ACC + (tt*2 + ct) * 16
            for i in range(0, 16, 2):
                e(f"v_pk_fma_f32 {vr(acc+i,2)}, {vr(vT+4+2*tt,2)}, {vr(CS+ct*16+i,2)}, {vr(acc+i,2)} op_sel_hi:[0,1,1] neg_lo:[1,0,0] neg_hi:[1,0,0]")
            for i in range(0, 16, 2):
                e(f"v_pk_mul_f32 {vr(acc+i,2)}, {vr(acc+i,2)}, {vr(vT+4+2*tt,2)} op_sel:[0,1] op_sel_hi:[1,1]")
            for q in range(4):
                e(f"v_cvt_pk_bf16_f32 v{acc+4*q}, v{acc+4*q}, v{acc+4*q+1}")
                e(f"v_cvt_pk_bf16_f32 v{acc+4*q+1}, v{acc+4*q+2}, v{acc+4*q+3}")
                e(f"buffer_store_dwordx2 {vr(acc+4*q,2)}, v{SO+ct*4+q}, s[{sWS}:{sWS+3}], s{sT} offen {ST}")
    e.stamp(7)
    e.stamp_out(8, 0, sWS, sWave)
    e("s_endpgm")

    e.label(f"{name}_v")
    mainloop(True)
    stats()
    RM = XF; RR = HX
    e(f"v_xor_b32 v{vT+3}, 128, v{vT+1}")
    e(f"ds_read_b32 v{vT+4}, v{vT+1}"); e(f"ds_read_b32 v{vT+5}, v{vT+3}")
    e(f"s_lshl_b32 s{sT}, s{sWr}, 8")
    e(f"s_lshl_b32 s{sT2}, s{sWc}, 7")
    e(f"s_add_u32 s{sT}, s{sT}, s{sT2}")
    e(f"s_add_u32 s{sT}, s{sT}, {ST_M}")
    e(f"v_lshl_add_u32 v{vT}, v{vH}, 4, s{sT}")
    e(f"v_xor_b32 v{vT+2}, 128, v{vT}")
    for tt in range(2):
        for q in range(4):
            e(f"ds_read_b128 {vr(RM + tt*16 + q*4, 4)}, v{vT+2*tt} offset:{q*32}")
            e(f"ds_read_b128 {vr(RR + tt*16 + q*4, 4)}, v{vT+2*tt} offset:{512 + q*32}")
        if tt == 0: e("s_waitcnt lgkmcnt(4)")
    e("s_waitcnt lgkmcnt(0)")
    for tt in range(2):
        e(f"s_xor_b32 s{sT}, s{sWc}, {tt}")
        e(f"s_lshl_b32 s{sT2}, s{sWr}, 1")
        e(f"s_add_u32 s{sT}, s{sT}, s{sT2}")
        e(f"s_lshl_b32 s{sT2}, s{sRow}, 2")
        e(f"s_add_u32 s{sT}, s{sT}, s{sT2}")
        e(f"s_mul_i32 s{sT}, s{sT}, 2560")
        e(f"s_add_u32 s{sT}, s{sT}, {KV_OFF + 1280}")
        for ct in range(2):
            acc = ACC + (tt*2 + ct) * 16
            for i in range(0, 16, 2):
                e(f"v_pk_fma_f32 {vr(acc+i,2)}, {vr(RM+tt*16+i,2)}, {vr(vT+4,2)}, {vr(acc+i,2)} op_sel:[0,{ct},0] op_sel_hi:[1,{ct},1] neg_lo:[1,0,0] neg_hi:[1,0,0]")
            for i in range(0, 16, 2):
                e(f"v_pk_mul_f32 {vr(acc+i,2)}, {vr(acc+i,2)}, {vr(RR+tt*16+i,2)}")
            for p in range(2):
                for j in range(4):
                    e(f"v_cvt_pk_bf16_f32 v{acc+8*p+j}, v{acc+8*p+2*j}, v{acc+8*p+2*j+1}")
                e(f"buffer_store_dwordx4 {vr(acc+8*p,4)}, v{SO+ct}, s[{sWS}:{sWS+3}], s{sT} offen offset:{640*p} {ST}")
    e.stamp(7)
    e.stamp_out(8, 0, sWS, sWave)
    e.label(f"{name}_end")
    e("s_endpgm")
    gen_loader()
    return e.l, dict(vgpr=252, grid=256, block=512, lds=K1_LDS)
```

```python
from common import *
from gemm16 import *
K2_LDS = 49152
NATT = 512
NMLP1 = 216
NMLP = 256
OOB = 0x7f000000

def gen_attn(e, name, cfg):
    ST = cfg.get("k2_store", "sc1")
    sWS = 8
    sWave, sHead, sQb, sKV, sT, sT2, sIt, sCur, sQo = 20, 21, 22, 23, 24, 25, 26, 27, 28
    sMV, sML, sMH = 30, 32, 34
    sOff, sRot, sLds, sCnt, sHb = 36, 37, 38, 39, 40
    vL, vR, vH = 1, 2, 3
    vK0, vK1, vV = 4, 5, 6
    vT = 7
    Q0 = 12
    Q1 = 28
    O = 36
    S = 100
    KV = 132
    def K0(b): return KV + 14*b
    def V0(b): return KV + 14*b + 4
    def V1(b): return KV + 14*b + 8
    def K1(b): return KV + 14*b + 12
    M = 160
    lK0, lK1, lV = 164, 165, 166
    srd = f"s[{sWS}:{sWS+3}]"
    if cfg.get("start_prio", 1):
        e("s_cmp_ge_u32 s2, 256")
        e(f"s_cbranch_scc1 {name}_lo")
        e("s_setprio 3")
        e.label(f"{name}_lo")
    e(f"v_and_b32 v{vL}, 63, v0")
    e(f"v_lshrrev_b32 v{vT}, 6, v0")
    e(f"v_and_b32 v{vR}, 31, v0")
    e(f"v_readfirstlane_b32 s{sWave}, v{vT}")
    e(f"v_lshlrev_b32 v{vK0}, 4, v{vL}")
    e(f"v_lshlrev_b32 v{vK1}, 3, v{vR}")
    e(f"s_and_b32 s{sHead}, s2, 7")
    e(f"s_lshl_b32 s{sHead}, s{sHead}, 2")
    e(f"s_bfe_u32 s{sT}, s2, 0x20003")
    e(f"s_add_u32 s{sHead}, s{sHead}, s{sT}")
    e(f"s_lshr_b32 s{sQb}, s2, 5")
    e(f"s_mov_b32 s{sMV}, 0x000fffff"); e(f"s_mov_b32 s{sMV+1}, 0x000fffff")
    e(f"s_mov_b32 s{sML}, -1"); e(f"s_mov_b32 s{sML+1}, 0")
    e(f"s_mov_b32 s{sMH}, 0"); e(f"s_mov_b32 s{sMH+1}, -1")
    e(f"s_lshl_b32 s{sT}, s{sHead}, 6")
    e(f"s_lshl_b32 s{sT2}, s{sQb}, 2")
    e(f"s_add_u32 s{sT2}, s{sT2}, s{sT}")
    e(f"s_mul_i32 s{sQo}, s{sT2}, 1280")
    e(f"s_mul_i32 s{sHb}, s{sT}, 2560")
    e(f"s_add_u32 s{sHb}, s{sHb}, {KV_OFF}")
    e(f"s_mul_i32 s{sT}, s{sWave}, {16*2560}")
    e(f"s_add_u32 s{sKV}, s{sHb}, s{sT}")
    e(f"s_mul_i32 s{sT}, s{sQb}, 2560")
    e(f"s_add_u32 s{sCur}, s{sHb}, s{sT}")
    e(f"s_mul_i32 s{sLds}, s{sWave}, 12288")
    e(f"s_mov_b32 s{sRot}, s{sQb}")
    e(f"s_mov_b32 s{sCnt}, 0")
    for t in range(4):
        e(f"v_mov_b32 v{Q1+2*t}, 0"); e(f"v_mov_b32 v{Q1+2*t+1}, 0")
    e(f"v_mov_b32 v{K1(1)}, 0x3f803f80"); e(f"v_mov_b32 v{K1(1)+1}, 0x3f80")
    e("s_waitcnt lgkmcnt(0)")
    e.srd(sWS, 4, WS_USED)
    def loadK(b, soff, tag):
        e.vm(f"buffer_load_dwordx4 {vr(K0(b),4)}, v{vK0}, {srd}, s{soff} offen", tag)
        e(f"s_mov_b64 exec, s[{sML}:{sML+1}]")
        e.vm(f"buffer_load_dwordx2 {vr(K1(b),2)}, v{vK1}, {srd}, s{soff} offen offset:1024", tag)
        e("s_mov_b64 exec, -1")
    def dma(slot, tag="d"):
        e(f"s_mul_i32 s{sOff}, s{sRot}, 2560")
        e(f"s_add_u32 s{sOff}, s{sOff}, s{sKV}")
        e(f"s_cmp_lt_u32 s{sCnt}, 16")
        e(f"s_cselect_b32 s{sOff}, s{sOff}, {OOB}")
        e(f"s_add_u32 m0, s{sLds}, {slot*2560}")
        e(f"s_add_u32 s{sRot}, s{sRot}, 1")
        e.vm(f"buffer_load_dwordx4 v{vK0}, {srd}, s{sOff} offen lds", tag)
        e.vm(f"buffer_load_dwordx4 v{vK0}, {srd}, s{sOff} offen offset:1024 lds", tag)
        e(f"s_mov_b64 exec, s[{sML}:{sML+1}]")
        e.vm(f"buffer_load_dwordx4 v{vK0}, {srd}, s{sOff} offen offset:2048 lds", tag)
        e("s_mov_b64 exec, -1")
        e(f"s_and_b32 s{sRot}, s{sRot}, 15")
        e(f"s_add_u32 s{sCnt}, s{sCnt}, 1")
    def ldsread(slot, b):
        o = slot * 2560
        e(f"ds_read_b128 {vr(K0(b),4)}, v{lK0} offset:{o}")
        e(f"s_mov_b64 exec, s[{sML}:{sML+1}]")
        e(f"ds_read_b64 {vr(K1(b),2)}, v{lK1} offset:{o+1024}")
        e(f"s_mov_b64 exec, s[{sMV}:{sMV+1}]")
        e(f"ds_read_b128 {vr(V0(b),4)}, v{lV} offset:{o+1280}")
        e(f"ds_read_b128 {vr(V1(b),4)}, v{lV} offset:{o+1920}")
        e("s_mov_b64 exec, -1")
    def QK1(sb, t, kb): return f"v_mfma_f32_32x32x16_bf16 {vr(S+16*sb,16)}, {vr(K0(kb),4)}, {vr(Q0+4*t,4)}, 0"
    def QK2(sb, t, kb): return f"v_mfma_f32_32x32x8bf16_1k {vr(S+16*sb,16)}, {vr(K1(kb),2)}, {vr(Q1+2*t,2)}, {vr(S+16*sb,16)}"
    def PV1(sb, t, kb): return f"v_mfma_f32_32x32x16_bf16 {vr(O+16*t,16)}, {vr(V0(kb),4)}, {vr(S+16*sb,4)}, {vr(O+16*t,16)}"
    def PV2(sb, t, kb): return f"v_mfma_f32_32x32x16_bf16 {vr(O+16*t,16)}, {vr(V1(kb),4)}, {vr(S+16*sb+8,4)}, {vr(O+16*t,16)}"
    def tilemax(s, dst, first):
        if first:
            e(f"v_max3_f32 v{dst}, v{s}, v{s+1}, v{s+2}"); rest = list(range(3, 16))
        else:
            rest = list(range(16))
        while len(rest) >= 2:
            e(f"v_max3_f32 v{dst}, v{dst}, v{s+rest[0]}, v{s+rest[1]}"); rest = rest[2:]
        if rest: e(f"v_max_f32 v{dst}, v{dst}, v{s+rest[0]}")
    def setslots(t, m):
        e(f"v_sub_f32 v{vT}, 0, v{m}")
        e(f"v_cvt_pk_bf16_f32 v{vT+1}, v{vT}, v{vT}")
        e(f"v_and_b32 v{vT+2}, 0xffff0000, v{vT+1}")
        e(f"v_sub_f32 v{vT}, v{vT}, v{vT+2}")
        e(f"v_cvt_pk_bf16_f32 v{Q1+2*t}, v{vT+2}, v{vT}")
        e(f"v_and_b32 v{vT+2}, 0xffff0000, v{Q1+2*t}")
        e(f"v_sub_f32 v{vT}, v{vT}, v{vT+2}")
        e(f"v_cvt_pk_bf16_f32 v{Q1+2*t+1}, v{vT}, 0")
    loadK(1, sCur, "q")
    for t in range(4):
        e.vm(f"buffer_load_dwordx4 {vr(Q0+4*t,4)}, v{vK0}, {srd}, s{sQo} offen offset:{1280*t}", "q")
    e(f"s_mov_b64 exec, s[{sML}:{sML+1}]")
    e(f"s_add_u32 s{sT}, s{sQo}, 1024")
    for t in range(4):
        e.vm(f"buffer_load_dwordx2 {vr(Q1+2*t,2)}, v{vK1}, {srd}, s{sT} offen offset:{1280*t}", "q")
    e("s_mov_b64 exec, -1")
    for s in range(4): dma(s, f"d{s}")
    e(f"v_lshrrev_b32 v{vH}, 5, v{vL}")
    e(f"v_mul_u32_u24 v{vV}, 320, v{vH}")
    e(f"v_lshl_add_u32 v{vV}, v{vR}, 4, v{vV}")
    e(f"v_add_u32 v{lK0}, s{sLds}, v{vK0}")
    e(f"v_add_u32 v{lK1}, s{sLds}, v{vK1}")
    e(f"v_add_u32 v{lV}, s{sLds}, v{vV}")
    e(f"v_cmp_eq_u32 vcc, 20, v{vR}")
    e(f"v_mov_b32 v{vT}, 0x3f803f80")
    e(f"v_mov_b32 v{K1(0)}, 0x3f803f80"); e(f"v_mov_b32 v{K1(0)+1}, 0x3f80")
    for b in range(2):
        for i in range(8):
            e(f"v_cndmask_b32 v{V0(b)+i}, 0, v{vT}, vcc")
    for i in range(4):
        e(f"v_mov_b32 v{S+16+8+i}, 0")
    e.stamp(1)
    e.vmwait("q")
    e.stamp(2)
    for t in range(4):
        e(f"v_mfma_f32_32x32x16_bf16 {vr(O+16*t,16)}, {vr(K0(1),4)}, {vr(Q0+4*t,4)}, 0")
    for t in range(4):
        e(f"v_mfma_f32_32x32x8bf16_1k {vr(O+16*t,16)}, {vr(K1(1),2)}, {vr(Q1+2*t,2)}, {vr(O+16*t,16)}")
    e.vmwait("d0")
    ldsread(0, 0)
    for t in range(4):
        tilemax(O + 16*t, M + t, True)
    for t in range(4):
        e(f"v_mov_b32 v{S+t}, v{M+t}")
    for t in range(4):
        e(f"v_permlane32_swap_b32 v{M+t}, v{S+t}")
    e(f"s_mov_b64 exec, s[{sMH}:{sMH+1}]")
    for t in range(4):
        e(f"v_max_f32 v{M+t}, v{M+t}, v{S+t}")
        setslots(t, M + t)
    e("s_mov_b64 exec, -1")
    e("s_waitcnt lgkmcnt(0)")
    e(QK1(0, 0, 0)); e(QK2(0, 0, 0))
    dma(0, "d4")
    for t in range(4):
        e(f"v_mfma_f32_32x32x8bf16_1k {vr(O+16*t,16)}, {vr(S+24,2)}, {vr(S+24,2)}, 0")
    e.stamp(3)
    e(f"s_mov_b32 s{sIt}, 4")
    AP = cfg.get("attn_prio", [3, 2, 1, 0])
    e(f"s_setprio {AP[0]}")
    e(".p2align 6")
    e.label(f"{name}_loop")
    for kt in range(4):
        kb = kt % 2
        for q in range(4):
            sb = q % 2; s = S + 16*sb
            ex = lambda i: f"v_exp_f32 v{s+i}, v{s+i}"
            cv = lambda i: f"v_cvt_pk_bf16_f32 v{s+(i//4)*8+i%4}, v{s+2*i}, v{s+2*i+1}"
            pq, pkb = (q - 1, kb) if q > 0 else (3, 1 - kb)
            nq, nkb = (q + 1, kb) if q < 3 else (0, 1 - kb)
            e(ex(0)); e(ex(1)); e(PV2(1 - sb, pq, pkb))
            if q == 1:
                e("s_waitcnt vmcnt(9)")
                ldsread((kt + 1) % 4, 1 - kb)
            e(ex(2)); e(ex(3)); e(cv(0)); e(cv(1)); e(ex(4))
            if q == 3:
                e("s_waitcnt lgkmcnt(0)")
            e(QK1(1 - sb, nq, nkb))
            if q == 3 and not cfg.get("attn_nodma"):
                dma((kt + 1) % 4)
            e(ex(5)); e(ex(6)); e(ex(7)); e(cv(2)); e(cv(3)); e(ex(8))
            e(QK2(1 - sb, nq, nkb))
            e(ex(9)); e(ex(10)); e(ex(11)); e(cv(4)); e(cv(5)); e(ex(12)); e(ex(13))
            e(PV1(sb, q, kb))
            if kt == 3 and q == 3:
                if True:
                    e(f"s_cmp_eq_u32 s{sIt}, 4")
                    e(f"s_setprio {AP[1]}")
                    e(f"s_cbranch_scc1 {name}_pr")
                    e(f"s_cmp_eq_u32 s{sIt}, 3")
                    e(f"s_setprio {AP[2]}")
                    e(f"s_cbranch_scc1 {name}_pr")
                    e(f"s_setprio {AP[3]}")
                    e.label(f"{name}_pr")
                e(f"s_sub_u32 s{sIt}, s{sIt}, 1")
                e(f"s_cmp_lg_u32 s{sIt}, 0")
            e(ex(14)); e(ex(15)); e(cv(6)); e(cv(7))
    e(f"s_cbranch_scc1 {name}_loop")
    e(PV2(1, 3, 1))
    e("s_setprio 3")
    e.stamp(4)
    e(f"s_mul_i32 s{sT}, s{sWave}, 3072")
    e(f"v_add_u32 v{vT+1}, s{sT}, v{vK0}")
    e("s_waitcnt vmcnt(0)")
    for t in range(4):
        for j in range(3):
            e(f"ds_write_b128 v{lK0}, {vr(O+16*t+4*j,4)} offset:{t*3072 + j*1024}")
    e(f"s_lshr_b32 s{sT}, s{sHead}, 3")
    e(f"s_mul_i32 s{sT}, s{sT}, 20")
    e(f"s_and_b32 s{sT2}, s{sHead}, 7")
    e(f"s_lshl_b32 s{sCur}, s{sT2}, 1")
    e(f"s_add_u32 s{sCur}, s{sCur}, s{sT}")
    e(f"s_lshl_b32 s{sCur}, s{sCur}, 15")
    e(f"s_lshl_b32 s{sIt}, s{sQb}, 2")
    e(f"s_add_u32 s{sIt}, s{sIt}, s{sWave}")
    e(f"s_lshl_b32 s{sIt}, s{sIt}, 9")
    e(f"s_add_u32 s{sIt}, s{sIt}, {O_OFF}")
    e(f"s_add_u32 s{sCur}, s{sCur}, s{sIt}")
    e(f"s_lshr_b32 s{sRot}, s{sT2}, 1")
    e(f"s_add_u32 s{sT}, s{sT}, s{sRot}")
    e(f"s_add_u32 s{sT}, s{sT}, 16")
    e(f"s_lshl_b32 s{sT}, s{sT}, 15")
    e(f"s_add_u32 s{sT}, s{sT}, s{sIt}")
    e(f"s_and_b32 s{sIt}, s{sT2}, 1")
    e(f"s_lshl_b32 s{sIt}, s{sIt}, 3")
    e(f"s_add_u32 s{sRot}, s{sT}, s{sIt}")
    e("s_waitcnt lgkmcnt(0)")
    e("s_barrier")
    for w in range(4):
        for j in range(3):
            e(f"ds_read_b128 {vr(O+16*w+4*j,4)}, v{vT+1} offset:{w*12288 + j*1024}")
    e("s_waitcnt lgkmcnt(6)")
    for i in range(12):
        e(f"v_add_f32 v{O+i}, v{O+i}, v{O+16+i}")
    e("s_waitcnt lgkmcnt(0)")
    for i in range(12):
        e(f"v_add_f32 v{O+32+i}, v{O+32+i}, v{O+48+i}")
    for i in range(12):
        e(f"v_add_f32 v{O+i}, v{O+i}, v{O+32+i}")
    def bcast_l():
        e(f"v_mov_b32 v{vT+2}, v{O+8}")
        e(f"v_mov_b32 v{vT+3}, v{O+8}")
        e(f"v_permlane32_swap_b32 v{vT+2}, v{vT+3}")
    bcast_l()
    e(f"v_add_f32 v{vT+2}, |v{O}|, |v{O+1}|")
    for i in range(2, 12):
        e(f"v_add_f32 v{vT+2}, v{vT+2}, |v{O+i}|")
    e(f"v_mov_b32 v{vT+4}, 0x7f000000")
    e(f"v_cmp_nlt_f32 vcc, v{vT+2}, v{vT+4}")
    e(f"s_mov_b64 s[42:43], vcc")
    e(f"v_mov_b32 v{vT+4}, 0x5f800000")
    e(f"v_cmp_nle_f32 vcc, v{vT+3}, v{vT+4}")
    e(f"s_or_b64 s[42:43], s[42:43], vcc")
    e(f"v_cmp_nge_f32 vcc, v{vT+3}, 0.5")
    e(f"s_or_b64 s[42:43], s[42:43], vcc")
    if cfg.get("force_fallback"): e(f"s_branch {name}_fallback")
    e(f"s_cbranch_scc1 {name}_fallback")
    e.label(f"{name}_fin")
    e(f"v_rcp_f32 v{vT+3}, v{vT+3}")
    e(f"v_lshlrev_b32 v{vT}, 4, v{vR}")
    e(f"v_lshl_add_u32 v{vT+1}, v{vH}, 15, v{vT}")
    for i in range(12):
        e(f"v_mul_f32 v{O+i}, v{O+i}, v{vT+3}")
    for i in range(6):
        e(f"v_cvt_pk_bf16_f32 v{O+i}, v{O+2*i}, v{O+2*i+1}")
    e(f"buffer_store_dwordx4 {vr(O,4)}, v{vT+1}, {srd}, s{sCur} offen {ST}")
    e(f"s_mov_b64 exec, s[{sML}:{sML+1}]")
    e(f"buffer_store_dwordx2 {vr(O+4,2)}, v{vT}, {srd}, s{sRot} offen {ST}")
    e.stamp(5)
    e.stamp_out(6, 1, sWS, sWave)
    e("s_endpgm")
    e.label(f"{name}_fallback")
    e(f"s_mul_i32 s{sT}, s{sWave}, 1280")
    e(f"s_add_u32 s{sT}, s{sT}, s{sQo}")
    e(f"v_mov_b32 v{Q1}, 0"); e(f"v_mov_b32 v{Q1+1}, 0")
    e(f"buffer_load_dwordx4 {vr(Q0,4)}, v{vK0}, {srd}, s{sT} offen")
    e(f"s_mov_b64 exec, s[{sML}:{sML+1}]")
    e(f"buffer_load_dwordx2 {vr(Q1,2)}, v{vK1}, {srd}, s{sT} offen offset:1024")
    e("s_mov_b64 exec, -1")
    e(f"v_mov_b32 v{M}, 0xff800000")
    e(f"s_mov_b32 s{sOff}, s{sHb}")
    e(f"s_mov_b32 s{sIt}, 64")
    e.label(f"{name}_f1")
    loadK(0, sOff, "x")
    e("s_waitcnt vmcnt(0)")
    e(QK1(0, 0, 0)); e(QK2(0, 0, 0))
    tilemax(S, M, False)
    e(f"s_add_u32 s{sOff}, s{sOff}, 2560")
    e(f"s_sub_u32 s{sIt}, s{sIt}, 1")
    e(f"s_cmp_lg_u32 s{sIt}, 0")
    e(f"s_cbranch_scc1 {name}_f1")
    xhalf(e, M, vT, "v_max_f32")
    e(f"s_mov_b64 exec, s[{sMH}:{sMH+1}]")
    setslots(0, M)
    e("s_mov_b64 exec, -1")
    for i in range(16): e(f"v_mov_b32 v{O+i}, 0")
    e(f"s_mov_b32 s{sOff}, s{sHb}")
    e(f"s_mov_b32 s{sIt}, 64")
    e.label(f"{name}_f2")
    loadK(0, sOff, "x")
    e(f"s_mov_b64 exec, s[{sMV}:{sMV+1}]")
    e(f"buffer_load_dwordx4 {vr(V0(0),4)}, v{vV}, {srd}, s{sOff} offen offset:1280")
    e(f"buffer_load_dwordx4 {vr(V1(0),4)}, v{vV}, {srd}, s{sOff} offen offset:1920")
    e("s_mov_b64 exec, -1")
    e("s_waitcnt vmcnt(0)")
    e(QK1(0, 0, 0)); e(QK2(0, 0, 0))
    for i in range(16): e(f"v_exp_f32 v{S+i}, v{S+i}")
    for i in range(8): e(f"v_cvt_pk_bf16_f32 v{S+(i//4)*8+i%4}, v{S+2*i}, v{S+2*i+1}")
    e(PV1(0, 0, 0)); e(PV2(0, 0, 0))
    e(f"s_add_u32 s{sOff}, s{sOff}, 2560")
    e(f"s_sub_u32 s{sIt}, s{sIt}, 1")
    e(f"s_cmp_lg_u32 s{sIt}, 0")
    e(f"s_cbranch_scc1 {name}_f2")
    e("s_nop 15")
    bcast_l()
    e(f"s_branch {name}_fin")

def gen_mlp(e, name, cfg):
    sWS, sW, sB1 = 8, 12, 16
    sWave, sDt, sFt, sT, sT2, sIt, sPo, sWo, sM0, sPb, sWb, sKw, sKp, sN, sW2, sG = range(20, 36)
    vP, vWs, vB, vT = 1, 2, 3, 7
    ACC, WF, PF = 12, 92, 124
    g = G16(e, ACC, WF, PF, vP, vWs, vB, vT, sWave, sM0, sT)
    def prefetch(srd, ptr, size, rowstride, colexpr, nrows_per_wave, D):
        e.srd(srd, ptr, size)
        colexpr()
        e(f"s_lshr_b32 s{sT2}, s{sG}, 3")
        e(f"s_lshl_b32 s{sT2}, s{sT2}, 2")
        e(f"s_add_u32 s{sT2}, s{sT2}, s{sWave}")
        e(f"s_mul_i32 s{sT2}, s{sT2}, {nrows_per_wave*rowstride}")
        e(f"s_add_u32 s{sT}, s{sT}, s{sT2}")
        e(f"v_and_b32 v{vT+2}, 63, v0")
        e(f"v_lshlrev_b32 v{vT+2}, 4, v{vT+2}")
        for n in range(nrows_per_wave):
            e(f"buffer_load_dwordx4 {vr(D+4*(n%4),4)}, v{vT+2}, s[{srd}:{srd+3}], s{sT} offen")
            e(f"s_add_u32 s{sT}, s{sT}, {rowstride}")
    def pf_w2():
        def col():
            e(f"s_bfe_u32 s{sT}, s{sG}, 0x20001")
            e(f"s_lshl_b32 s{sT}, s{sT}, 10")
        prefetch(44, 42, 1728 * 4096, 4096, col, 14, PF)
    def pf_k3():
        if not cfg.get("pf_k3", 1): return
        e(f"s_lshr_b32 s{sT2}, s{sG}, 3")
        e(f"s_lshl_b32 s{sT2}, s{sT2}, 2")
        e(f"s_add_u32 s{sT2}, s{sT2}, s{sWave}")
        e(f"s_min_u32 s{sT2}, s{sT2}, 79")
        e(f"s_mul_i32 s{sT2}, s{sT2}, 10240")
        e(f"s_and_b32 s{sT}, s{sG}, 1")
        e(f"s_mul_i32 s{sT}, s{sT}, 5120")
        e(f"s_add_u32 s{sT}, s{sT}, s{sT2}")
        e(f"s_add_u32 s{sT}, s{sT}, {WOT_OFF}")
        e(f"v_and_b32 v{vT+2}, 63, v0")
        e(f"v_lshlrev_b32 v{vT+2}, 4, v{vT+2}")
        for n in range(5):
            e(f"buffer_load_dwordx4 {vr(PF+4*(n%4),4)}, v{vT+2}, s[{sWS}:{sWS+3}], s{sT} offen")
            e(f"s_add_u32 s{sT}, s{sT}, 1024")
        e("s_mov_b64 exec, s[48:49]")
        def colx():
            e(f"s_bfe_u32 s{sT}, s{sG}, 0x20001")
            e(f"s_mul_i32 s{sT}, s{sT}, {512*1280}")
            e(f"s_and_b32 s{sT2}, s{sG}, 1")
            e(f"s_mul_i32 s{sT2}, s{sT2}, 640")
            e(f"s_add_u32 s{sT}, s{sT}, s{sT2}")
        prefetch(44, 52, 2048 * 1280, 1280, colx, 4, PF + 16)
        e("s_mov_b64 exec, -1")
    e("s_mov_b32 s48, -1"); e("s_mov_b32 s49, 0xff")
    e(f"v_lshrrev_b32 v{vT}, 6, v0")
    e(f"s_sub_u32 s{sG}, s2, {NATT}")
    e(f"v_readfirstlane_b32 s{sWave}, v{vT}")
    g.setup_p(10240)
    e(f"s_mul_i32 s{sM0}, s{sWave}, 12288")
    e(f"s_cmp_ge_u32 s{sG}, {NMLP1}")
    e(f"s_cbranch_scc1 {name}_skip1")
    e(f"s_and_b32 s{sT2}, s{sG}, 7")
    e(f"s_lshr_b32 s{sT}, s{sG}, 3")
    e(f"s_lshr_b32 s{sDt}, s{sT2}, 1")
    e(f"s_mul_i32 s{sDt}, s{sDt}, 27")
    e(f"s_add_u32 s{sT}, s{sT}, s{sDt}")
    e(f"s_lshr_b32 s{sFt}, s{sT}, 2")
    e(f"s_and_b32 s{sT}, s{sT}, 3")
    e(f"s_and_b32 s{sDt}, s{sT2}, 1")
    e(f"s_lshl_b32 s{sDt}, s{sDt}, 2")
    e(f"s_add_u32 s{sDt}, s{sDt}, s{sT}")
    e(f"s_lshl_b32 s{sKw}, s{sT}, 2")
    e(f"s_mul_i32 s{sT}, s{sFt}, 5")
    e(f"s_lshr_b32 s{sT}, s{sT}, 1")
    e(f"s_add_u32 s{sKw}, s{sKw}, s{sT}")
    e(f"s_and_b32 s{sKw}, s{sKw}, {15 if cfg.get('mlp_rot', 0) else 0}")
    e(f"s_mov_b32 s{sKp}, s{sKw}")
    e(f"s_mov_b32 s{sN}, 16")
    e(f"s_mul_i32 s{sPb}, s{sWave}, {64*10240}")
    e(f"s_mul_i32 s{sT}, s{sDt}, 1280")
    e(f"s_add_u32 s{sPb}, s{sPb}, s{sT}")
    e(f"s_add_u32 s{sPb}, s{sPb}, {HT_OFF}")
    g.setup_w(3456)
    e(f"s_mul_i32 s{sWb}, s{sWave}, {512*3456}")
    e(f"s_lshl_b32 s{sT}, s{sFt}, 7")
    e(f"s_add_u32 s{sWb}, s{sWb}, s{sT}")
    g.setup_tr()
    e("s_waitcnt lgkmcnt(0)")
    e.srd(sWS, 4, WS_USED)
    e.srd(sW, 6, 2048 * 3456)
    e.srd(sB1, 38, 1728 * 2)
    e(f"s_setprio {cfg.get('mlp_prio_ld', 1)}")
    e.vmq = []
    c1 = Stream(g, 16, sW, sWS, 3456, 40960, "", True, sKw, sKp, sN, sWb, sPb, sWo, sPo, sW2, False)
    c1.advW(0)
    for n in range(4): c1.dmaW(0, n)
    c1.advP(0)
    for td in range(5): c1.ldP(0, td)
    c1.advW(1)
    for n in range(4): c1.dmaW(1, n)
    c1.advP(1)
    for td in range(5): c1.ldP(1, td)
    c1.advW(2)
    for n in range(4): c1.dmaW(2, n)
    e(f"s_lshl_b32 s{sT}, s{sWave}, 5")
    e(f"s_lshl_b32 s{sT2}, s{sFt}, 7")
    e(f"s_add_u32 s{sT}, s{sT}, s{sT2}")
    e(f"v_bfe_u32 v{vT}, v0, 4, 2")
    e(f"v_lshlrev_b32 v{vT}, 3, v{vT}")
    e.vm(f"buffer_load_dwordx2 v[10:11], v{vT}, s[{sB1}:{sB1+3}], s{sT} offen", "b")
    e.stamp(1)
    e(f"s_setprio {cfg.get('mlp_prio_loop', 2)}")
    c1.run()
    e(f"s_setprio {cfg.get('mlp_prio_epi', 3)}")
    e.stamp(2)
    g.reduce()
    c0 = -2.0 * math.log2(math.e) * math.sqrt(2.0 / math.pi)
    cc = c0 * 0.044715
    e(f"s_mov_b32 s{sIt}, {fhex(cc)}")
    e(f"v_mov_b32 v{vT+1}, {fhex(c0)}")
    R = ACC; T = ACC + 20; BF = ACC + 40
    for j in range(2):
        e(f"v_lshlrev_b32 v{BF+2*j}, 16, v{10+j}")
        e(f"v_and_b32 v{BF+2*j+1}, 0xffff0000, v{10+j}")
    e(f"v_bfe_u32 v{vT}, v0, 5, 1")
    e(f"v_mul_u32_u24 v{vB}, 10240, v{vT}")
    e(f"v_and_b32 v{vT}, 15, v0")
    e(f"v_lshl_add_u32 v{vB}, v{vT}, 4, v{vB}")
    e(f"v_bfe_u32 v{vT}, v0, 4, 1")
    e(f"v_lshl_add_u32 v{vB}, v{vT}, 3, v{vB}")
    e(f"s_lshl_b32 s{sT}, s{sFt}, 2")
    e(f"s_add_u32 s{sT}, s{sT}, s{sWave}")
    e(f"s_mul_i32 s{sT}, s{sT}, 20480")
    e(f"s_mul_i32 s{sT2}, s{sDt}, 1280")
    e(f"s_add_u32 s{sT}, s{sT}, s{sT2}")
    e(f"s_add_u32 s{sT}, s{sT}, {U_OFF}")
    for lo, hi in ((0, 8), (8, 20)):
        rg = range(lo, hi)
        for i in rg: e(f"v_add_f32 v{R+i}, v{R+i}, v{BF+i%4}")
        for i in rg: e(f"v_mul_f32 v{T+i}, v{R+i}, v{R+i}")
        for i in rg: e(f"v_fma_f32 v{T+i}, v{T+i}, s{sIt}, v{vT+1}")
        for i in rg: e(f"v_mul_f32 v{T+i}, v{T+i}, v{R+i}")
        for i in rg: e(f"v_exp_f32 v{T+i}, v{T+i}")
        for i in rg: e(f"v_add_f32 v{T+i}, 1.0, v{T+i}")
        for i in rg: e(f"v_rcp_f32 v{T+i}, v{T+i}")
        for i in rg: e(f"v_mul_f32 v{R+i}, v{R+i}, v{T+i}")
        for td in range(lo // 4, hi // 4):
            e(f"v_cvt_pk_bf16_f32 v{R+4*td}, v{R+4*td}, v{R+4*td+1}")
            e(f"v_cvt_pk_bf16_f32 v{R+4*td+1}, v{R+4*td+2}, v{R+4*td+3}")
            e(f"buffer_store_dwordx2 {vr(R+4*td,2)}, v{vB}, s[{sWS}:{sWS+3}], s{sT} offen offset:{td*256} sc1")
    e("s_waitcnt vmcnt(0)")
    e("s_barrier")
    e(f"s_cmp_lg_u32 s{sWave}, 0")
    e(f"s_cbranch_scc1 {name}_p2")
    e(f"s_lshl_b32 s{sT}, s{sDt}, 7")
    e(f"s_add_u32 s{sT}, s{sT}, {CNT_OFF}")
    e(f"v_mov_b32 v{vT}, 0")
    e(f"v_mov_b32 v{vT+1}, 1")
    e("s_mov_b64 exec, 1")
    e(f"buffer_atomic_add v{vT+1}, v{vT}, s[{sWS}:{sWS+3}], s{sT} offen sc1")
    e("s_mov_b64 exec, -1")
    e(f"s_branch {name}_p2")
    e.label(f"{name}_skip1")
    e("s_setprio 0")
    e("s_waitcnt lgkmcnt(0)")
    e.srd(sWS, 4, WS_USED)
    e.stamp(1); e.stamp(2)
    e.label(f"{name}_p2")
    e.stamp(3)
    e.srd(sW, 42, 1728 * 4096)
    sSt = sFt
    e(f"s_bfe_u32 s{sSt}, s{sG}, 0x20001")
    e(f"s_lshl_b32 s{sSt}, s{sSt}, 3")
    e(f"s_bfe_u32 s{sT}, s{sG}, 0x30003")
    e(f"s_add_u32 s{sSt}, s{sSt}, s{sT}")
    e(f"s_and_b32 s{sDt}, s{sG}, 1")
    e(f"s_lshl_b32 s{sDt}, s{sDt}, 2")
    e(f"s_lshr_b32 s{sKp}, s{sG}, 6")
    e(f"s_add_u32 s{sDt}, s{sDt}, s{sKp}")
    e(f"s_cmp_ge_u32 s{sWave}, 2")
    e(f"s_cselect_b32 s{sN}, 13, 14")
    e(f"s_mul_i32 s{sT2}, s{sWave}, 14")
    e(f"s_cmp_eq_u32 s{sWave}, 3")
    e(f"s_cselect_b32 s{sIt}, 1, 0")
    e(f"s_sub_u32 s{sT2}, s{sT2}, s{sIt}")
    e(f"s_mul_i32 s{sKw}, s{sT}, 3")
    e(f"s_lshr_b32 s{sKw}, s{sKw}, 1")
    e(f"s_mul_i32 s{sT}, s{sKp}, 3")
    e(f"s_add_u32 s{sKw}, s{sKw}, s{sT}")
    e(f"s_cmp_ge_u32 s{sKw}, 13")
    e(f"s_cselect_b32 s{sT}, 13, 0")
    e(f"s_sub_u32 s{sKw}, s{sKw}, s{sT}")
    if not cfg.get("mlp_rot", 0): e(f"s_mov_b32 s{sKw}, 0")
    e(f"s_mov_b32 s{sKp}, s{sKw}")
    e(f"s_mul_i32 s{sPb}, s{sT2}, 40960")
    e(f"s_mul_i32 s{sT}, s{sDt}, 1280")
    e(f"s_add_u32 s{sPb}, s{sPb}, s{sT}")
    e(f"s_add_u32 s{sPb}, s{sPb}, {U_OFF}")
    e(f"s_mul_i32 s{sWb}, s{sT2}, {32*4096}")
    e(f"s_lshl_b32 s{sT}, s{sSt}, 7")
    e(f"s_add_u32 s{sWb}, s{sWb}, s{sT}")
    g.setup_w(4096)
    e.vmq = []
    c2 = Stream(g, 14, sW, sWS, 4096, 40960, "sc1", False, sKw, sKp, sN, sWb, sPb, sWo, sPo, sW2, True)
    c2.preW()
    g.setup_tr()
    if cfg.get("pf_w2", 0):
        e(f"s_cmp_eq_u32 s{sWave}, 0")
        e(f"s_cbranch_scc1 {name}_nopf")
        pf_w2()
        e.label(f"{name}_nopf")
    e(f"s_cmp_lg_u32 s{sWave}, 0")
    e(f"s_cbranch_scc1 {name}_go")
    e(f"s_lshl_b32 s{sT}, s{sDt}, 7")
    e(f"s_add_u32 s{sT}, s{sT}, {CNT_OFF}")
    e(f"v_mov_b32 v{vT}, 0")
    e(f"s_mov_b32 s{sIt}, 0x20000")
    e.label(f"{name}_poll")
    e(f"buffer_load_dword v{vT+1}, v{vT}, s[{sWS}:{sWS+3}], s{sT} offen sc1")
    e("s_waitcnt vmcnt(0)")
    e(f"v_readfirstlane_b32 s{sT2}, v{vT+1}")
    e(f"s_cmp_ge_u32 s{sT2}, 27")
    e(f"s_cbranch_scc1 {name}_go")
    e(f"s_sleep {cfg.get('poll_sleep', 8)}")
    e(f"s_sub_u32 s{sIt}, s{sIt}, 1")
    e(f"s_cmp_lg_u32 s{sIt}, 0")
    e(f"s_cbranch_scc1 {name}_poll")
    e.label(f"{name}_go")
    e("s_barrier")
    e.stamp(4)
    c2.preP()
    e(f"s_setprio {cfg.get('mlp_prio_loop', 2)}")
    c2.run()
    e(f"s_setprio {cfg.get('mlp_prio_epi', 3)}")
    e.stamp(5)
    pf_k3()
    g.reduce()
    e(f"s_lshl_b32 s{sT}, s{sSt}, 3")
    e(f"s_add_u32 s{sT}, s{sT}, s{sDt}")
    e(f"s_lshl_b32 s{sT}, s{sT}, 2")
    e(f"s_add_u32 s{sT}, s{sT}, s{sWave}")
    e(f"s_mul_i32 s{sT}, s{sT}, 5120")
    e(f"s_add_u32 s{sT}, s{sT}, {Z_OFF}")
    ZF = cfg.get("z_store", "sc1")
    for td in range(5):
        if td == 4: e(f"s_add_u32 s{sT}, s{sT}, 4096")
        e(f"buffer_store_dwordx4 {vr(ACC+4*td,4)}, v{vT}, s[{sWS}:{sWS+3}], s{sT} offen offset:{(td%4)*1024} {ZF}")
    e.stamp_out(6, 1, sWS, sWave)
    e("s_endpgm")

def gen_k2(name, cfg):
    e = Em(cfg)
    e(f"s_cmp_ge_u32 s2, {NATT + NMLP}")
    e(f"s_cbranch_scc1 {name}_end")
    e.stamp(0)
    e("s_load_dwordx2 s[4:5], s[0:1], 80")
    e(f"s_cmp_ge_u32 s2, {NATT}")
    e(f"s_cbranch_scc1 {name}_mlp")
    if cfg.get("no_attn"): e("s_endpgm")
    gen_attn(e, name + "_a", cfg)
    e.label(f"{name}_mlp")
    if cfg.get("no_mlp"): e("s_endpgm")
    e(f"s_setprio {cfg.get('mlp_prio_pro', 2)}")
    e("s_load_dwordx2 s[6:7], s[0:1], 32")
    e("s_load_dwordx2 s[38:39], s[0:1], 40")
    e("s_load_dwordx2 s[42:43], s[0:1], 48")
    e("s_load_dwordx2 s[52:53], s[0:1], 0")
    gen_mlp(e, name + "_m", cfg)
    e.label(f"{name}_end")
    e("s_endpgm")
    return e.l, dict(vgpr=168, grid=NATT + NMLP, block=256, lds=K2_LDS)
```

```python
from common import *
K3_LDS = 102400

def gen_k3(name, cfg):
    e = Em(cfg)
    ST = cfg.get("k3_store", "")
    sWS, sX, sB2, sOUT = 8, 40, 44, 48
    sWave, sSt, sDt, sT, sT2, sM0, sAo, sOo, sZo, sXo = 20, 21, 22, 23, 24, 25, 26, 27, 28, 30
    vP, vOp, vLa, vLb, vXo, vB2, vT = 2, 3, 4, 5, 6, 7, 8
    XR = 12
    ZR = 24
    OF = 44
    AF = 124
    e("s_cmp_ge_u32 s2, 256")
    e(f"s_cbranch_scc1 {name}_end")
    e.stamp(0)
    e("s_load_dwordx2 s[4:5], s[0:1], 80")
    e("s_load_dwordx4 s[52:55], s[0:1], 56")
    e("s_load_dwordx2 s[56:57], s[0:1], 0")
    e(f"v_lshrrev_b32 v{vT}, 6, v0")
    e(f"v_and_b32 v1, 63, v0")
    e(f"v_readfirstlane_b32 s{sWave}, v{vT}")
    e(f"s_bfe_u32 s{sSt}, s2, 0x20001")
    e(f"s_lshl_b32 s{sSt}, s{sSt}, 3")
    e(f"s_bfe_u32 s{sT}, s2, 0x30003")
    e(f"s_add_u32 s{sSt}, s{sSt}, s{sT}")
    e(f"s_and_b32 s{sDt}, s2, 1")
    e(f"s_lshl_b32 s{sDt}, s{sDt}, 2")
    e(f"s_lshr_b32 s{sT}, s2, 6")
    e(f"s_add_u32 s{sDt}, s{sDt}, s{sT}")
    e(f"v_bfe_u32 v{vT}, v0, 4, 2")
    e(f"v_and_b32 v{vT+1}, 15, v0")
    e(f"v_mul_u32_u24 v{vP}, 10240, v{vT}")
    e(f"v_lshl_add_u32 v{vP}, v{vT+1}, 4, v{vP}")
    e(f"v_lshlrev_b32 v{vOp}, 15, v{vT}")
    e(f"v_lshl_add_u32 v{vOp}, v{vT+1}, 4, v{vOp}")
    e(f"v_lshlrev_b32 v{vLa}, 4, v1")
    e(f"s_mul_i32 s{sM0}, s{sWave}, 5120")
    e(f"s_mul_i32 s{sAo}, s{sWave}, 40960")
    e(f"s_mul_i32 s{sT}, s{sDt}, 1280")
    e(f"s_add_u32 s{sAo}, s{sAo}, s{sT}")
    e(f"s_add_u32 s{sAo}, s{sAo}, {WOT_OFF}")
    e(f"s_lshl_b32 s{sT}, s{sSt}, 2")
    e(f"s_add_u32 s{sT}, s{sT}, s{sWave}")
    e(f"s_lshl_b32 s{sOo}, s{sT}, 8")
    e(f"s_add_u32 s{sOo}, s{sOo}, {O_OFF}")
    e(f"s_mul_i32 s{sXo}, s{sT}, {16*1280}")
    e(f"s_lshl_b32 s{sT2}, s{sT}, 5")
    e(f"s_mul_i32 s{sT}, s{sDt}, 160")
    e(f"s_add_u32 s{sXo}, s{sXo}, s{sT}")
    e(f"s_lshl_b32 s{sZo}, s{sSt}, 3")
    e(f"s_add_u32 s{sZo}, s{sZo}, s{sDt}")
    e(f"s_lshl_b32 s{sZo}, s{sZo}, 2")
    e(f"s_add_u32 s{sZo}, s{sZo}, s{sWave}")
    e(f"s_mul_i32 s{sZo}, s{sZo}, 5120")
    e(f"s_add_u32 s{sZo}, s{sZo}, {Z_OFF}")
    e("s_waitcnt lgkmcnt(0)")
    e.srd(sWS, 4, WS_USED)
    def chunk_ops(c):
        ops = []
        for k in range(4*c, 4*c + 4):
            def f(k=k):
                e.vm(f"buffer_load_dwordx4 {vr(OF+4*k,4)}, v{vOp}, s[{sWS}:{sWS+3}], s{sOo} offen", f"c{c}")
                e(f"s_add_u32 s{sOo}, s{sOo}, {4*32768}")
            ops.append(f)
        for td in range(5):
            def f(td=td):
                e(f"s_add_u32 m0, s{sM0}, {c*20480 + td*1024 - td*256}")
                e.vm(f"buffer_load_dwordx4 v{vP}, s[{sWS}:{sWS+3}], s{sAo} offen offset:{td*256} lds", f"c{c}")
                if td == 4: e(f"s_add_u32 s{sAo}, s{sAo}, {4*40960}")
            ops.append(f)
        return ops
    for f in chunk_ops(0): f()
    for td in range(5):
        if td == 4: e(f"s_add_u32 s{sZo}, s{sZo}, 4096")
        e.vm(f"buffer_load_dwordx4 {vr(ZR+4*td,4)}, v{vLa}, s[{sWS}:{sWS+3}], s{sZo} offen offset:{(td%4)*1024}", "z")
    for f in chunk_ops(1): f()
    e(f"v_add_u32 v{vLb}, 0xf000, v{vLa}")
    e(f"v_lshlrev_b32 v{vB2}, 1, v{vT+1}")
    e(f"v_mul_u32_u24 v{vXo}, 1280, v{vT+1}")
    e(f"v_lshl_add_u32 v{vXo}, v{vT}, 3, v{vXo}")
    e.srd(sB2, 52, 4096)
    e.srd(sX, 56, 2048 * 1280)
    e.srd(sOUT, 54, 2048 * 1280)
    def xops():
        ops = []
        for td in range(5):
            ops.append(lambda td=td: e.vm(f"buffer_load_dwordx2 {vr(XR+2*td,2)}, v{vXo}, s[{sX}:{sX+3}], s{sXo} offen offset:{td*32}", "x"))
        ops.append(lambda: e.vm(f"buffer_load_ushort v{vB2}, v{vB2}, s[{sB2}:{sB2+3}], s{sT2} offen", "x"))
        return ops
    def rd(k):
        r = []
        for td in range(5):
            o = (k*5 + td) * 1024
            r.append(f"ds_read_b128 {vr(AF+(k%3)*20+4*td,4)}, v{vLa if o < 0xf000 else vLb} offset:{o if o < 0xf000 else o - 0xf000}")
        return r
    e.stamp(1)
    e.vmwait("c0")
    e("s_barrier")
    e.stamp(2)
    for x in rd(0) + rd(1): e(x)
    pend = []
    for k in range(20):
        c = k // 4
        if k % 4 == 0:
            pend = chunk_ops(c + 2) if c + 2 < 5 else (xops() if c == 3 else [])
        if k == 0: e.vmwait("z")
        if k % 4 == 2 and c < 4:
            e.vmwait(f"c{c+1}")
            e("s_barrier")
        nxt = rd(k + 2) if k + 2 < 20 else []
        e(f"s_waitcnt lgkmcnt({5 if k < 19 else 0})")
        for td in range(5):
            a = vr(ZR + 4*td, 4)
            e(f"v_mfma_f32_16x16x32_bf16 {a}, {vr(AF+(k%3)*20+4*td,4)}, {vr(OF+4*k,4)}, {a}")
            if nxt: e(nxt.pop(0))
            if pend and k % 4 < 2: pend.pop(0)()
        assert k % 4 == 0 or not pend
    e.stamp(3)
    e("s_waitcnt vmcnt(0)")
    e(f"v_lshlrev_b32 v{vB2}, 16, v{vB2}")
    X = OF
    for td in range(5):
        for j in range(2):
            e(f"v_lshlrev_b32 v{X+4*td+2*j}, 16, v{XR+2*td+j}")
            e(f"v_and_b32 v{X+4*td+2*j+1}, 0xffff0000, v{XR+2*td+j}")
    for i in range(20): e(f"v_add_f32 v{X+i}, v{X+i}, v{vB2}")
    for td in range(5):
        a = ZR + 4*td
        for i in range(4): e(f"v_add_f32 v{a+i}, v{a+i}, v{X+4*td+i}")
        e(f"v_cvt_pk_bf16_f32 v{a}, v{a}, v{a+1}")
        e(f"v_cvt_pk_bf16_f32 v{a+1}, v{a+2}, v{a+3}")
        e(f"buffer_store_dwordx2 {vr(a,2)}, v{vXo}, s[{sOUT}:{sOUT+3}], s{sXo} offen offset:{td*32} {ST}")
    e.stamp(4)
    e.stamp_out(5, 2, sWS, sWave)
    e.label(f"{name}_end")
    e("s_endpgm")
    return e.l, dict(vgpr=184, grid=256, block=256, lds=K3_LDS)
```

```python
import struct, math

QF_OFF = 0x000000
KV_OFF = 0x280000
HT_OFF = 0x780000
U_OFF  = 0xA00000
O_OFF  = 0xC20000
OR_OFF = 0xE20000
Z_OFF  = 0xEA0000
WOT_OFF = 0x13C0000
RS_OFF  = 0x14A0000
CNT_OFF = 0x14C0000
WS_USED = 0x1700000
STAMP_OFF = 0x1500000

def f2u(x):
    return struct.unpack("<I", struct.pack("<f", x))[0]
def fhex(x):
    return "0x%08x" % f2u(x)

class Em:
    def __init__(self, cfg={}):
        self.stamps = cfg.get('stamp', False)
        self.l = []
        self.vmq = []
    def __call__(self, s):
        for ln in s.split("\n"):
            ln = ln.strip()
            if not ln: continue
            self.l.append(ln if ln.endswith(":") or ln.startswith(".") else "    " + ln)
    def label(self, n): self.l.append(n + ":")
    def vm(self, s, tag):
        self(s); self.vmq.append(tag)
    def vmwait(self, tag, extra=""):
        tags = tag if isinstance(tag, (tuple, list, set)) else (tag,)
        idx = max([i for i, t in enumerate(self.vmq) if t in tags], default=-1)
        n = len(self.vmq) - 1 - idx
        self.vmq = self.vmq[idx + 1:]
        assert n <= 63, n
        self(f"s_waitcnt vmcnt({n}) {extra}".strip())
        return n
    def stamp(self, i):
        if not self.stamps: return
        self(f"s_memrealtime s[{60+4*i}:{61+4*i}]")
        self(f"s_memtime s[{62+4*i}:{63+4*i}]")
        self("s_waitcnt lgkmcnt(0)")
    def stamp_out(self, n, kidx, srd, swave):
        if not self.stamps: return
        self("s_waitcnt vmcnt(0)")
        self.stamp(n)
        self("s_mov_b64 exec, 1")
        self(f"s_lshl_b32 s100, s2, 2")
        self(f"s_add_u32 s100, s100, s{swave}")
        self(f"s_lshl_b32 s100, s100, 7")
        self(f"s_add_u32 s100, s100, {STAMP_OFF + kidx * 1024 * 512}")
        self("v_mov_b32 v1, 0")
        for i in range(n + 1):
            self(f"v_mov_b32 v2, s{60+4*i}")
            self(f"buffer_store_dword v2, v1, s[{srd}:{srd+3}], s100 offen offset:{4*i}")
            self(f"v_mov_b32 v3, s{62+4*i}")
            self(f"buffer_store_dword v3, v1, s[{srd}:{srd+3}], s100 offen offset:{64+4*i}")
    def srd(self, d, lo, size):
        self(f"s_mov_b32 s{d}, s{lo}")
        self(f"s_and_b32 s{d+1}, s{lo+1}, 0xffff")
        self(f"s_mov_b32 s{d+2}, {size}")
        self(f"s_mov_b32 s{d+3}, 0x00020000")

def vr(a, n):
    return f"v[{a}:{a+n-1}]" if n > 1 else f"v{a}"

def kernel_header(name):
    return [f".globl {name}", ".p2align 8", f".type {name},@function", f"{name}:"]

def descriptor(name, vgpr, sgpr=102, agpr=0):
    acc = (vgpr + 3) // 4 * 4
    return f""".p2align 6
.amdhsa_kernel {name}
  .amdhsa_next_free_vgpr {acc + agpr if agpr else vgpr}
  .amdhsa_next_free_sgpr {sgpr}
  .amdhsa_accum_offset {acc}
  .amdhsa_group_segment_fixed_size 0
  .amdhsa_kernarg_size 88
  .amdhsa_user_sgpr_count 2
  .amdhsa_user_sgpr_kernarg_segment_ptr 1
  .amdhsa_system_sgpr_workgroup_id_x 1
.end_amdhsa_kernel"""

def red32(e, s, t):
    e(f"v_add_f32_dpp v{t}, v{s}, v{s} quad_perm:[1,0,3,2] row_mask:0xf bank_mask:0xf")
    e(f"v_add_f32_dpp v{s}, v{t}, v{t} quad_perm:[2,3,0,1] row_mask:0xf bank_mask:0xf")
    e(f"v_add_f32_dpp v{t}, v{s}, v{s} row_half_mirror row_mask:0xf bank_mask:0xf")
    e(f"v_add_f32_dpp v{s}, v{t}, v{t} row_mirror row_mask:0xf bank_mask:0xf")
    e(f"v_mov_b32 v{t}, v{s}")
    e(f"v_permlane16_swap_b32 v{s}, v{t}")
    e(f"v_add_f32 v{s}, v{s}, v{t}")

def xhalf(e, s, t, op="v_add_f32"):
    e(f"v_mov_b32 v{t}, v{s}")
    e(f"v_permlane32_swap_b32 v{s}, v{t}")
    e(f"{op} v{s}, v{s}, v{t}")

def touch_code(e, first, last, vidx, va, sa, uniq):
    e(f"s_getpc_b64 s[{sa}:{sa+1}]")
    e.label(uniq)
    e(f"s_add_u32 s{sa}, s{sa}, {first}-{uniq}")
    e(f"s_addc_u32 s{sa+1}, s{sa+1}, ({first}-{uniq})>>32")
    e(f"v_min_u32 v{va}, ({last}-{first})>>7, v{vidx}")
    e(f"v_lshlrev_b32 v{va}, 7, v{va}")
    e(f"v_mov_b32 v{va+1}, s{sa+1}")
    e(f"v_add_co_u32 v{va}, vcc, s{sa}, v{va}")
    e(f"v_addc_co_u32 v{va+1}, vcc, 0, v{va+1}, vcc")
    e(f"global_load_dword v{va+2}, v[{va}:{va+1}], off")
```

```python
from common import *
K1_LDS = 4 * 32768 + 8 * 1344 + 3 * 512
HB = 131072
ST_M = HB + 8 * 1344
ST_R = ST_M + 512
ST_C = ST_R + 512
EPS = 1e-5

def gen_k1(name, cfg):
    e = Em(cfg)
    ST = cfg.get("k1_store", "sc1")
    sX, sW, sWS = 8, 12, 16
    sWave, sRow, sCol, sXo, sWo, sM0, sT, sOnes, sWr, sWc = 20, 21, 22, 23, 24, 25, 26, 27, 28, 29
    sScale, sStride, sBase, sT2, sT3, sRot, sR1, sR2 = 30, 31, 32, 33, 34, 35, 38, 39
    vL, vR, vH = 1, 2, 3
    vXs = 4
    vWs = 8
    vXa = 12
    vWa = 28
    vSum, vSq, vCs = 32, 33, 34
    vT = 36
    ACC = 64
    XF = 128
    WF = 144
    HX = 220
    CSA, vOne = 200, 216
    FR = 128
    SO = 192
    e("s_cmp_ge_u32 s2, 256")
    e(f"s_cbranch_scc1 {name}_end")
    e.stamp(0)
    e("s_load_dwordx4 s[4:7], s[0:1], 0")
    e("s_load_dwordx2 s[36:37], s[0:1], 80")
    e("s_load_dwordx2 s[54:55], s[0:1], 72")
    if cfg.get("pf_code", 1):
        touch_code(e, name, "attn_kernel", 0, 248, 40, name + "_pc0")
    e(f"v_and_b32 v{vL}, 63, v0")
    e(f"v_lshrrev_b32 v{vT}, 6, v0")
    e(f"v_and_b32 v{vR}, 31, v0")
    e(f"v_readfirstlane_b32 s{sWave}, v{vT}")
    e(f"v_lshrrev_b32 v{vH}, 5, v{vL}")
    e("s_and_b32 s3, s2, 7")
    e(f"s_lshr_b32 s{sT}, s2, 3")
    e(f"s_lshr_b32 s{sRow}, s3, 1")
    e(f"s_lshl_b32 s{sRow}, s{sRow}, 2")
    e(f"s_and_b32 s{sT2}, s{sT}, 3")
    e(f"s_add_u32 s{sRow}, s{sRow}, s{sT2}")
    e(f"s_and_b32 s{sCol}, s3, 1")
    e(f"s_lshl_b32 s{sCol}, s{sCol}, 3")
    e(f"s_lshr_b32 s{sT2}, s{sT}, 2")
    e(f"s_add_u32 s{sCol}, s{sCol}, s{sT2}")
    e(f"s_lshr_b32 s{sWr}, s{sWave}, 1")
    e(f"s_and_b32 s{sWc}, s{sWave}, 1")
    e(f"s_mov_b32 s{sOnes}, 0x3f803f80")
    e(f"s_cmp_lg_u32 s{sCol}, 15")
    e(f"s_cbranch_scc1 {name}_roles")
    e(f"v_lshrrev_b32 v{vT}, 2, v{vL}")
    e(f"v_mul_u32_u24 v{vT+1}, 1280, v{vT}")
    e(f"v_and_b32 v{vT+2}, 3, v{vL}")
    e(f"v_lshl_add_u32 v{vT+1}, v{vT+2}, 4, v{vT+1}")
    e(f"s_lshl_b32 s{sT}, s{sRow}, 3")
    e(f"s_add_u32 s{sT}, s{sT}, s{sWave}")
    e(f"s_mul_i32 s{sT2}, s{sT}, {16*1280}")
    e("s_waitcnt lgkmcnt(0)")
    e.srd(sX, 4, 2048 * 1280)
    e.srd(sWS, 36, WS_USED)
    e.srd(56, 54, 256)
    for i in range(20):
        e(f"buffer_load_dwordx4 {vr(64+4*i,4)}, v{vT+1}, s[{sX}:{sX+3}], s{sT2} offen offset:{64*i}")
    e(f"v_mov_b32 v{vT+4}, 0"); e(f"v_mov_b32 v{vT+5}, 0")
    for i in range(20):
        if i % 4 == 0: e(f"s_waitcnt vmcnt({16 - i})")
        for j in range(4):
            e(f"v_dot2_f32_bf16 v{vT+4}, v{64+4*i+j}, s{sOnes}, v{vT+4}")
            e(f"v_dot2_f32_bf16 v{vT+5}, v{64+4*i+j}, v{64+4*i+j}, v{vT+5}")
    for mod in ("quad_perm:[1,0,3,2]", "quad_perm:[2,3,0,1]"):
        for r in (vT + 4, vT + 5):
            e(f"v_add_f32_dpp v{r}, v{r}, v{r} {mod} row_mask:0xf bank_mask:0xf")
    e(f"v_mul_f32 v{vT+4}, {fhex(1/640)}, v{vT+4}")
    e(f"v_mul_f32 v{vT+5}, {fhex(1/640)}, v{vT+5}")
    e(f"v_fma_f32 v{vT+5}, -v{vT+4}, v{vT+4}, v{vT+5}")
    e(f"v_max_f32 v{vT+5}, 0, v{vT+5}")
    e(f"v_add_f32 v{vT+5}, {fhex(EPS)}, v{vT+5}")
    e(f"v_rsq_f32 v{vT+5}, v{vT+5}")
    e(f"v_lshlrev_b32 v{vT}, 3, v{vT}")
    e(f"s_lshl_b32 s{sT}, s{sT}, 7")
    e(f"s_add_u32 s{sT}, s{sT}, {RS_OFF}")
    e("s_mov_b32 exec_lo, 0x11111111"); e("s_mov_b32 exec_hi, 0x11111111")
    e(f"buffer_store_dwordx2 {vr(vT+4,2)}, v{vT}, s[{sWS}:{sWS+3}], s{sT} offen sc1")
    e("s_mov_b64 exec, -1")
    e("s_waitcnt vmcnt(0)")
    e("s_barrier")
    e(f"s_lshl_b32 s{sT}, s{sRow}, 4")
    e(f"s_cmp_eq_u32 s{sWave}, 0")
    e(f"s_cselect_b32 s{sT}, s{sT}, 0x7f000000")
    e(f"v_mov_b32 v{vT}, 0")
    e(f"v_mov_b32 v{vT+1}, 1")
    e("s_mov_b64 exec, 1")
    e(f"buffer_store_dword v{vT+1}, v{vT}, s[56:59], s{sT} offen sc1")
    e("s_mov_b64 exec, -1")
    e.label(f"{name}_roles")
    e(f"s_cmp_ge_u32 s{sWave}, 4")
    e(f"s_cbranch_scc1 {name}_loader")
    e(f"s_lshl_b32 s{sT}, s2, 3")
    e(f"s_lshl_b32 s{sT2}, s{sWave}, 1")
    e(f"s_add_u32 s{sT}, s{sT}, s{sT2}")
    e(f"s_mul_i32 s{sT}, s{sT}, 1280")
    e(f"v_mul_u32_u24 v{vT}, 1280, v{vH}")
    e(f"v_lshl_add_u32 v{vT+1}, v{vR}, 4, v{vT}")
    e(f"v_lshl_add_u32 v{vT+2}, v{vR}, 3, v{vT}")
    e("s_waitcnt lgkmcnt(0)")
    e.srd(sX, 4, 2048 * 1280)
    e.srd(sWS, 36, WS_USED)
    e.vm(f"buffer_load_dwordx4 {vr(HX,4)}, v{vT+1}, s[{sX}:{sX+3}], s{sT} offen", "h")
    e.vm(f"buffer_load_dwordx4 {vr(HX+4,4)}, v{vT+1}, s[{sX}:{sX+3}], s{sT} offen offset:512", "h")
    e.vm(f"buffer_load_dwordx2 {vr(HX+8,2)}, v{vT+2}, s[{sX}:{sX+3}], s{sT} offen offset:1024", "h")
    if cfg.get("k1_touch", 0):
        e.srd(sW, 6, 640 * 3840)
        e(f"s_lshr_b32 s{sT}, s2, 3")
        e(f"s_lshl_b32 s{sT}, s{sT}, 2")
        e(f"s_add_u32 s{sT}, s{sT}, s{sWave}")
        e(f"s_mul_i32 s{sT2}, s{sT}, {5*3840}")
        e(f"s_and_b32 s{sT3}, s3, 1")
        e(f"s_lshl_b32 s{sT3}, s{sT3}, 11")
        e(f"s_add_u32 s{sT2}, s{sT2}, s{sT3}")
        e(f"v_lshrrev_b32 v{vT+3}, 4, v{vL}")
        e(f"v_mul_u32_u24 v{vT+3}, 3840, v{vT+3}")
        e(f"v_and_b32 v{vT+4}, 15, v{vL}")
        e(f"v_lshl_add_u32 v{vT+3}, v{vT+4}, 7, v{vT+3}")
        e.vm(f"buffer_load_dword v250, v{vT+3}, s[{sW}:{sW+3}], s{sT2} offen", "t")
        e(f"s_add_u32 s{sT2}, s{sT2}, {4*3840}")
        e(f"s_mul_i32 s{sT}, s{sT}, 5120")
        e(f"s_lshr_b32 s{sT3}, s3, 1")
        e(f"s_mul_i32 s{sT3}, s{sT3}, {512*1280}")
        e(f"s_add_u32 s{sT}, s{sT}, s{sT3}")
        e(f"v_lshlrev_b32 v{vT+4}, 7, v{vL}")
        e("s_mov_b64 exec, 0xffff")
        e.vm(f"buffer_load_dword v250, v{vT+3}, s[{sW}:{sW+3}], s{sT2} offen", "t")
        e("s_mov_b32 exec_lo, -1")
        e("s_mov_b32 exec_hi, 0xff")
        e.vm(f"buffer_load_dword v250, v{vT+4}, s[{sX}:{sX+3}], s{sT} offen", "t")
        e("s_mov_b64 exec, -1")

    def gen_loader():
        e.label(f"{name}_loader")
        e(f"s_sub_u32 s{sWave}, s{sWave}, 4")
        e("s_load_dwordx2 s[40:41], s[0:1], 32")
        def prefetch_w1(uniq, trickle=False):
            if cfg.get("pf_w1", 0):
                e.srd(44, 40, 2048 * 3456)
                e(f"s_lshr_b32 s{sT}, s3, 1")
                e(f"s_mul_i32 s{sT}, s{sT}, 27")
                e(f"s_lshr_b32 s{sT}, s{sT}, 2")
                e(f"s_lshl_b32 s{sT}, s{sT}, 7")
                e(f"s_lshr_b32 s{sT2}, s2, 3")
                e(f"s_lshl_b32 s{sT2}, s{sT2}, 2")
                e(f"s_add_u32 s{sT2}, s{sT2}, s{sWave}")
                e(f"s_mul_i32 s{sT2}, s{sT2}, {16*3456}")
                e(f"s_add_u32 s{sT}, s{sT}, s{sT2}")
                e(f"v_lshrrev_b32 v{vT+6}, 3, v{vL}")
                e(f"v_mul_u32_u24 v{vT+6}, 3456, v{vT+6}")
                e(f"v_and_b32 v{vT+7}, 7, v{vL}")
                e(f"v_lshl_add_u32 v{vT+6}, v{vT+7}, 7, v{vT+6}")
                if trickle:
                    e(f"s_mov_b32 s52, s{sT}")
                    e(f"v_mov_b32 v{vT+9}, v{vT+6}")
                else:
                    e.vm(f"buffer_load_dword v{vT+7}, v{vT+6}, s[44:47], s{sT} offen", "pf")
                    e(f"s_add_u32 s{sT}, s{sT}, {8*3456}")
                    e.vm(f"buffer_load_dword v{vT+8}, v{vT+6}, s[44:47], s{sT} offen", "pf")
            if cfg.get("pf_code", 1):
                e("s_cmp_ge_u32 s2, 16")
                e(f"s_cbranch_scc1 {uniq}_x")
                e(f"s_lshr_b32 s{sT}, s2, 3")
                e(f"s_lshl_b32 s{sT}, s{sT}, 8")
                e(f"v_and_b32 v{vT+6}, 255, v0")
                e(f"v_add_u32 v{vT+6}, s{sT}, v{vT+6}")
                touch_code(e, "attn_kernel", "code_end", vT + 6, 248, 48, uniq)
                e.label(f"{uniq}_x")
        e(f"s_cmp_lg_u32 s{sCol}, 15")
        e(f"s_cbranch_scc1 {name}_ld2")
        e("s_load_dwordx2 s[42:43], s[0:1], 16")
        e(f"v_lshlrev_b32 v{vT+4}, 4, v{vL}")
        e(f"s_mul_i32 s{sT}, s{sRow}, {40*1280}")
        e(f"s_lshl_b32 s{sM0}, s{sWave}, 10")
        e(f"s_add_u32 s{sT}, s{sT}, s{sM0}")
        e("s_waitcnt lgkmcnt(0)")
        e.srd(48, 42, 640 * 1280)
        e.srd(sWS, 36, WS_USED)
        for n in range(13):
            e(f"s_add_u32 m0, s{sM0}, {n*4096}")
            e(f"buffer_load_dwordx4 v{vT+4}, s[48:51], s{sT} offen lds")
            e(f"s_add_u32 s{sT}, s{sT}, 4096")
        e(f"v_bfe_u32 v{vT}, v{vL}, 2, 2")
        e(f"v_mul_u32_u24 v{vT}, 1280, v{vT}")
        e(f"v_lshrrev_b32 v{vT+1}, 4, v{vL}")
        e(f"v_lshl_add_u32 v{vT}, v{vT+1}, 5, v{vT}")
        e(f"v_and_b32 v{vT+1}, 3, v{vL}")
        e(f"v_lshl_add_u32 v{vT}, v{vT+1}, 3, v{vT}")
        e(f"s_lshr_b32 s{sT}, s{sRow}, 2")
        e(f"s_mul_i32 s{sT}, s{sT}, 20")
        e(f"s_and_b32 s{sT2}, s{sRow}, 3")
        e(f"s_add_u32 s{sR1}, s{sT}, s{sT2}")
        e(f"s_add_u32 s{sR1}, s{sR1}, 16")
        e(f"s_mul_i32 s{sR1}, s{sR1}, 10240")
        e(f"s_lshl_b32 s{sT2}, s{sT2}, 2")
        e(f"s_add_u32 s{sR2}, s{sT}, s{sT2}")
        e(f"s_mul_i32 s{sR2}, s{sR2}, 10240")
        e("s_waitcnt vmcnt(0)")
        e("s_barrier")
        for j in range(3):
            e(f"s_add_u32 s{sT}, s{sWave}, {4*j}")
            e(f"s_min_u32 s{sT}, s{sT}, 9")
            e(f"s_lshl_b32 s{sT2}, s{sT}, 7")
            e(f"v_add_u32 v{vT+1}, s{sT2}, v{vT}")
            for o in range(5):
                r0, r1 = (20*(o >> 1) + 4*(o & 1), 20*(o >> 1) + 4*(o & 1) + 8) if o < 4 else (16, 36)
                e(f"ds_read_b64_tr_b16 {vr(64+20*j+4*o,2)}, v{vT+1} offset:{r0*1280}")
                e(f"ds_read_b64_tr_b16 {vr(64+20*j+4*o+2,2)}, v{vT+1} offset:{r1*1280}")
            e(f"s_lshl_b32 s{sT}, s{sT}, 10")
            e(f"s_add_u32 s{sT}, s{sT}, {WOT_OFF}")
            e("s_waitcnt lgkmcnt(0)")
            for o in range(5):
                if o < 4: e(f"s_add_u32 s{sT2}, s{sR2}, {o*10240}")
                else: e(f"s_mov_b32 s{sT2}, s{sR1}")
                e(f"s_add_u32 s{sT2}, s{sT2}, s{sT}")
                e(f"buffer_store_dwordx4 {vr(64+20*j+4*o,4)}, v{vT+4}, s[{sWS}:{sWS+3}], s{sT2} offen sc1")
        prefetch_w1(name + "_pc1")
        e("s_endpgm")
        e.label(f"{name}_ld2")
        e(f"s_setprio {cfg.get('k1_lprio', 0)}")
        e(f"v_lshrrev_b32 v{vT}, 3, v{vL}")
        e(f"s_lshl_b32 s{sT}, s{sWave}, 3")
        e(f"v_add_u32 v{vT}, s{sT}, v{vT}")
        e(f"v_mul_u32_u24 v{vT}, 1280, v{vT}")
        e(f"v_lshrrev_b32 v{vT+1}, 4, v{vL}")
        e(f"s_lshl_b32 s{sT}, s{sWc}, 2")
        e(f"v_add_u32 v{vT+2}, s{sT}, v{vT+1}")
        e(f"v_and_b32 v{vT+3}, 7, v{vL}")
        e(f"v_xor_b32 v{vT+2}, v{vT+2}, v{vT+3}")
        e(f"v_lshl_add_u32 v{vXs}, v{vT+2}, 4, v{vT}")
        for n in range(1, 4):
            e(f"v_add_u32 v{vXs+n}, {n*32*1280}, v{vXs}")
        e(f"s_lshl_b32 s{sT}, s{sWave}, 2")
        e(f"v_add_u32 v{vT}, s{sT}, v{vT+1}")
        e(f"v_mul_u32_u24 v{vT}, 3840, v{vT}")
        e(f"v_bfe_u32 v{vT+2}, v{vL}, 2, 2")
        e(f"v_xor_b32 v{vT+2}, v{vT+2}, v{vT+1}")
        e(f"v_lshl_add_u32 v{vT}, v{vT+2}, 6, v{vT}")
        e(f"v_and_b32 v{vT+2}, 3, v{vL}")
        e(f"v_lshl_add_u32 v{vWs}, v{vT+2}, 4, v{vT}")
        for n in range(1, 4):
            e(f"v_add_u32 v{vWs+n}, {n*16*3840}, v{vWs}")
        e(f"s_mul_i32 s{sXo}, s{sRow}, {128*1280}")
        e(f"s_lshl_b32 s{sWo}, s{sCol}, 8")
        e(f"s_lshl_b32 s{sM0}, s{sWave}, 10")
        e(f"s_and_b32 s{sT}, s{sRow}, 3")
        e(f"s_mul_i32 s{sT}, s{sT}, 5")
        e(f"s_lshr_b32 s{sT}, s{sT}, 1")
        e(f"s_lshl_b32 s{sT2}, s{sCol}, 2")
        e(f"s_add_u32 s{sT}, s{sT}, s{sT2}")
        e(f"s_mul_i32 s{sT2}, s{sT}, 0xcccd")
        e(f"s_lshr_b32 s{sT2}, s{sT2}, 19")
        e(f"s_mul_i32 s{sT2}, s{sT2}, 10")
        e(f"s_sub_u32 s{sRot}, s{sT}, s{sT2}")
        if not cfg.get("k1_rot", 1): e(f"s_mov_b32 s{sRot}, 0")
        e(f"s_lshl_b32 s{sT}, s{sRot}, 7")
        e(f"s_add_u32 s{sXo}, s{sXo}, s{sT}")
        e(f"s_mul_i32 s{sT}, s{sRot}, {64*3840}")
        e(f"s_add_u32 s{sWo}, s{sWo}, s{sT}")
        e("s_waitcnt lgkmcnt(0)")
        e.srd(sX, 4, 2048 * 1280)
        e.srd(sW, 6, 640 * 3840)
        e.vmq = []
        def dma(stage, fill=None):
            slot = (stage % 4) * 32768
            fill = fill or []
            per = (len(fill) + 6) // 7
            k = 0
            for n in range(4):
                for (o, v, srd, so) in ((0, vXs, sX, sXo), (16384, vWs, sW, sWo)):
                    e(f"s_add_u32 m0, s{sM0}, {slot + o + n*4096}")
                    e.vm(f"buffer_load_dwordx4 v{v+n}, s[{srd}:{srd+3}], s{so} offen lds", f"st{stage}")
                    if k >= 1:
                        for x in fill[(k-1)*per:k*per]: e(x)
                    k += 1
            e(f"s_add_u32 s{sRot}, s{sRot}, 1")
            e(f"s_cmp_eq_u32 s{sRot}, 10")
            e(f"s_cselect_b32 s{sR1}, 1280, 0")
            e(f"s_cselect_b32 s{sR2}, {640*3840}, 0")
            e(f"s_add_u32 s{sXo}, s{sXo}, 128")
            e(f"s_add_u32 s{sWo}, s{sWo}, {64*3840}")
            e(f"s_sub_u32 s{sXo}, s{sXo}, s{sR1}")
            e(f"s_sub_u32 s{sWo}, s{sWo}, s{sR2}")
        dma(0); dma(1)
        RX, RS, RU = 64, 80, 88
        e(f"v_lshlrev_b32 v{vT}, 4, v{vL}")
        e(f"v_add_u32 v{vT}, s{sM0}, v{vT}")
        e(f"v_add_u32 v{vT+1}, 0x10000, v{vT}")
        for i in range(8): e(f"v_mov_b32 v{RS+i}, 0")
        e.srd(sWS, 36, WS_USED)
        e.srd(56, 54, 256)
        for st in range(10):
            e.vmwait(f"st{st}", "lgkmcnt(0)")
            e("s_barrier")
            slot = (st % 4) * 32768
            for n in range(4):
                e(f"ds_read_b128 {vr(RX+4*n,4)}, v{vT + (slot >= 65536)} offset:{slot % 65536 + 16384 + n*4096}")
            f = ["s_waitcnt lgkmcnt(0)"]
            for n in range(4):
                for i in range(4):
                    f.append(f"v_lshlrev_b32 v{RU+2*i}, 16, v{RX+4*n+i}")
                    f.append(f"v_and_b32 v{RU+2*i+1}, 0xffff0000, v{RX+4*n+i}")
                for i in range(8):
                    f.append(f"v_add_f32 v{RS+i}, v{RS+i}, v{RU+i}")
            if st + 2 < 10: dma(st + 2, f)
            else:
                if st == 8:
                    e(f"s_lshl_b32 s{sT}, s{sRow}, 4")
                    e(f"v_mov_b32 v{vT+2}, 0")
                    e(f"s_mov_b32 s{sR1}, 0x20000")
                    e.label(f"{name}_poll")
                    e(f"buffer_load_dword v100, v{vT+2}, s[56:59], s{sT} offen sc1")
                    e("s_waitcnt vmcnt(0)")
                    e(f"v_readfirstlane_b32 s{sT2}, v100")
                    e(f"s_cmp_eq_u32 s{sT2}, 1")
                    e(f"s_cbranch_scc1 {name}_got")
                    e("s_sleep 2")
                    e(f"s_sub_u32 s{sR1}, s{sR1}, 1")
                    e(f"s_cmp_lg_u32 s{sR1}, 0")
                    e(f"s_cbranch_scc1 {name}_poll")
                    e.label(f"{name}_got")
                    e(f"s_lshl_b32 s{sT}, s{sRow}, 10")
                    e(f"s_lshl_b32 s{sT2}, s{sWave}, 8")
                    e(f"s_add_u32 s{sT}, s{sT}, s{sT2}")
                    e(f"s_add_u32 s{sT}, s{sT}, {RS_OFF}")
                    e(f"v_lshlrev_b32 v{vT+2}, 3, v{vR}")
                    e.vmq = []
                    e.vm(f"buffer_load_dwordx2 {vr(104,2)}, v{vT+2}, s[{sWS}:{sWS+3}], s{sT} offen sc1", "rs")
                for x in f: e(x)
            t0, tn = cfg.get("pf_w1_at", 2), cfg.get("pf_w1_n", 4)
            if st == t0: prefetch_w1(name + "_pc2", True)
            if cfg.get("pf_w1", 0) and t0 <= st < t0 + tn:
                lanes = 128 // tn
                e(f"s_mov_b32 exec_lo, {hex((1 << min(lanes, 32)) - 1)}")
                e(f"s_mov_b32 exec_hi, {hex((1 << max(lanes - 32, 0)) - 1)}")
                e.vm(f"buffer_load_dword v{vT+8}, v{vT+9}, s[44:47], s52 offen", "pf")
                e("s_mov_b64 exec, -1")
                e(f"s_add_u32 s52, s52, {lanes // 8 * 3456}")
        e(f"v_bfe_u32 v{vT}, v{vL}, 2, 2")
        e(f"v_lshrrev_b32 v{vT+1}, 4, v{vL}")
        e(f"v_xor_b32 v{vT}, v{vT}, v{vT+1}")
        e(f"v_lshlrev_b32 v{vT}, 7, v{vT}")
        e(f"v_and_b32 v{vT+1}, 3, v{vL}")
        e(f"v_lshl_add_u32 v{vT}, v{vT+1}, 5, v{vT}")
        e(f"v_add_u32 v{vT}, {HB}, v{vT}")
        e(f"v_lshrrev_b32 v{vT+1}, 4, v{vL}")
        e(f"s_lshl_b32 s{sT}, s{sWave}, 2")
        e(f"v_add_u32 v{vT+1}, s{sT}, v{vT+1}")
        e(f"v_lshl_add_u32 v{vT}, v{vT+1}, 9, v{vT}")
        e(f"ds_write_b128 v{vT}, {vr(RS,4)}")
        e(f"ds_write_b128 v{vT}, {vr(RS+4,4)} offset:16")
        e(f"s_lshl_b32 s{sT}, s{sWave}, 7")
        e(f"s_add_u32 s{sT}, s{sT}, {ST_M}")
        e(f"v_lshl_add_u32 v{vT}, v{vR}, 2, s{sT}")
        e("s_waitcnt vmcnt(0)")
        e(f"ds_write_b32 v{vT}, v104")
        e(f"ds_write_b32 v{vT}, v105 offset:512")
        e("s_waitcnt lgkmcnt(0)")
        e("s_barrier")
        e(f"v_lshlrev_b32 v{vT+1}, 12, v{vH}")
        e(f"v_lshl_add_u32 v{vT+1}, v{vR}, 2, v{vT+1}")
        e(f"s_lshl_b32 s{sT}, s{sWave}, 7")
        e(f"s_add_u32 s{sT}, s{sT}, {HB}")
        e(f"v_add_u32 v{vT+1}, s{sT}, v{vT+1}")
        for i in range(8): e(f"ds_read_b32 v{RU+i}, v{vT+1} offset:{512*i}")
        e("s_waitcnt lgkmcnt(0)")
        for i in range(4): e(f"v_add_f32 v{RU+i}, v{RU+i}, v{RU+4+i}")
        e(f"v_add_f32 v{RU}, v{RU}, v{RU+1}"); e(f"v_add_f32 v{RU+2}, v{RU+2}, v{RU+3}")
        e(f"v_add_f32 v{RU}, v{RU}, v{RU+2}")
        xhalf(e, RU, RU + 1)
        e(f"ds_write_b32 v{vT}, v{RU} offset:1024")
        e("s_waitcnt lgkmcnt(0)")
        e("s_barrier")
        e("s_endpgm")

    e(f"v_bfe_u32 v{vT}, v{vR}, 1, 3")
    e(f"v_xor_b32 v{vT}, v{vT}, v{vH}")
    e(f"v_lshlrev_b32 v{vT}, 4, v{vT}")
    e(f"v_lshl_add_u32 v{vT}, v{vR}, 7, v{vT}")
    e(f"s_lshl_b32 s{sT}, s{sWr}, 13")
    e(f"s_lshl_b32 s{sT2}, s{sWc}, 12")
    e(f"s_add_u32 s{sT}, s{sT}, s{sT2}")
    e(f"v_add_u32 v{vT}, s{sT}, v{vT}")
    for tt in range(2):
        for kk in range(4):
            e(f"v_xor_b32 v{vXa + tt*4 + kk}, {tt*4096 + kk*32}, v{vT}")
            e(f"v_add_u32 v{vXa + 8 + tt*4 + kk}, 0x10000, v{vXa + tt*4 + kk}")
    e(f"v_bfe_u32 v{vT}, v{vL}, 2, 2")
    e(f"v_lshl_add_u32 v{vT+1}, v{vH}, 3, v{vT}")
    e(f"v_lshlrev_b32 v{vT+1}, 8, v{vT+1}")
    e(f"s_lshl_b32 s{sT}, s{sWc}, 1")
    e(f"s_add_u32 s{sT}, s{sT}, s{sWr}")
    e(f"v_xor_b32 v{vT}, s{sT}, v{vT}")
    e(f"v_lshl_add_u32 v{vT+1}, v{vT}, 6, v{vT+1}")
    e(f"v_bfe_u32 v{vT}, v{vL}, 4, 1")
    e(f"v_lshl_add_u32 v{vT+1}, v{vT}, 5, v{vT+1}")
    e(f"v_and_b32 v{vT}, 3, v{vL}")
    e(f"v_lshl_add_u32 v{vT+1}, v{vT}, 3, v{vT+1}")
    e(f"v_add_u32 v{vWa}, 16384, v{vT+1}")
    e(f"v_xor_b32 v{vWa+1}, 64, v{vWa}")
    e(f"v_add_u32 v{vWa+2}, 0x10000, v{vWa}")
    e(f"v_add_u32 v{vWa+3}, 0x10000, v{vWa+1}")
    for i in range(64):
        e(f"v_mov_b32 v{ACC+i}, 0")

    e(f"s_cmp_ge_u32 s{sCol}, 10")
    e(f"s_cbranch_scc1 {name}_sov")
    e(f"s_cmp_ge_u32 s{sCol}, 5")
    e(f"s_cselect_b32 s{sScale}, 1.0, {fhex(math.log2(math.e) / math.sqrt(20.0))}")
    e(f"s_movk_i32 s{sStride}, 1280")
    e(f"s_cselect_b32 s{sStride}, 2560, s{sStride}")
    e(f"s_cselect_b32 s{sBase}, {KV_OFF}, {QF_OFF}")
    e(f"s_cselect_b32 s{sT}, 5, 0")
    e(f"s_sub_u32 s{sT}, s{sCol}, s{sT}")
    e(f"s_lshl_b32 s{sT}, s{sT}, 5")
    e(f"s_lshl_b32 s{sT2}, s{sWc}, 4")
    e(f"s_add_u32 s{sT}, s{sT}, s{sT2}")
    e(f"s_lshl_b32 s{sT3}, s{sStride}, 6")
    for ct in range(2):
        e(f"s_xor_b32 s{sT2}, s{sWr}, {ct}")
        e(f"s_lshl_b32 s{sT2}, s{sT2}, 3")
        e(f"s_add_u32 s{sT2}, s{sT2}, s{sT}")
        for q in range(4):
            o = SO + ct*4 + q
            e(f"v_add_u32 v{vT}, s{sT2}, v{vH}")
            e(f"v_add_u32 v{vT}, {2*q}, v{vT}")
            e(f"v_mul_u32_u24 v{vT+1}, 0xcccd, v{vT}")
            e(f"v_lshrrev_b32 v{vT+1}, 18, v{vT+1}")
            e(f"v_mul_u32_u24 v{vT+2}, 5, v{vT+1}")
            e(f"v_sub_u32 v{vT+2}, v{vT}, v{vT+2}")
            e(f"v_mul_lo_u32 v{o}, v{vT+1}, s{sT3}")
            e(f"v_lshl_add_u32 v{o}, v{vT+2}, 8, v{o}")
            e(f"v_lshl_add_u32 v{o}, v{vR}, 3, v{o}")
    e(f"s_branch {name}_sod")
    e.label(f"{name}_sov")
    for i in range(2, 8): e(f"v_mov_b32 v{SO+i}, 0")
    e(f"s_sub_u32 s{sT}, s{sCol}, 10")
    e(f"s_lshl_b32 s{sT}, s{sT}, 7")
    e(f"s_lshl_b32 s{sT2}, s{sWc}, 6")
    e(f"s_add_u32 s{sT}, s{sT}, s{sT2}")
    e(f"s_mov_b32 s{sT3}, {64*2560}")
    for ct in range(2):
        e(f"s_xor_b32 s{sT2}, s{sWr}, {ct}")
        e(f"s_lshl_b32 s{sT2}, s{sT2}, 5")
        e(f"s_add_u32 s{sT2}, s{sT2}, s{sT}")
        o = SO + ct
        e(f"v_add_u32 v{vT}, s{sT2}, v{vR}")
        e(f"v_mul_u32_u24 v{vT+1}, 0xcccd, v{vT}")
        e(f"v_lshrrev_b32 v{vT+1}, 20, v{vT+1}")
        e(f"v_mul_u32_u24 v{vT+2}, 20, v{vT+1}")
        e(f"v_sub_u32 v{vT+2}, v{vT}, v{vT+2}")
        e(f"v_mul_lo_u32 v{o}, v{vT+1}, s{sT3}")
        e(f"v_lshl_add_u32 v{o}, v{vT+2}, 4, v{o}")
        e(f"v_mul_u32_u24 v{vT+2}, 320, v{vH}")
        e(f"v_add_u32 v{o}, v{o}, v{vT+2}")
    e.label(f"{name}_sod")
    e.stamp(1)
    e.vmwait("h")
    e.stamp(2)
    F = HX + 10
    def ln_pass(publish=False):
        e(f"v_mov_b32 v{vT}, 0"); e(f"v_mov_b32 v{vT+2}, 0")
        for i in range(10):
            e(f"v_dot2_f32_bf16 v{vT}, v{HX+i}, s{sOnes}, v{vT}")
            e(f"v_dot2_f32_bf16 v{vT+2}, v{HX+i}, v{HX+i}, v{vT+2}")
        a, b = Em(), Em()
        red32(a, vT, vT + 1); red32(b, vT + 2, vT + 3)
        un = []
        for i in range(10):
            un.append(f"v_lshlrev_b32 v{F+2*i}, 16, v{HX+i}")
            un.append(f"v_and_b32 v{F+2*i+1}, 0xffff0000, v{HX+i}")
        for k in range(7):
            for x in un[3*k:3*k+3]: e(x)
            e(a.l[k]); e(b.l[k])
        e(f"v_mul_f32 v{vT}, {fhex(1/640)}, v{vT}")
        e(f"v_mul_f32 v{vT+2}, {fhex(1/640)}, v{vT+2}")
        e(f"v_fma_f32 v{vT+2}, -v{vT}, v{vT}, v{vT+2}")
        e(f"v_max_f32 v{vT+2}, 0, v{vT+2}")
        e(f"v_add_f32 v{vT+2}, {fhex(EPS)}, v{vT+2}")
        e(f"v_rsq_f32 v{vT+2}, v{vT+2}")
        if publish:
            e(f"s_lshl_b32 s{sT}, s2, 6")
            e(f"s_lshl_b32 s{sT2}, s{sWave}, 4")
            e(f"s_add_u32 s{sT}, s{sT}, s{sT2}")
            e(f"s_add_u32 s{sT}, s{sT}, {RS_OFF}")
            e(f"v_lshlrev_b32 v{vT+6}, 3, v{vH}")
            e(f"v_mov_b32 v{vT+4}, v{vT}")
            e(f"v_mov_b32 v{vT+5}, v{vT+2}")
            e("s_mov_b32 exec_lo, 1"); e("s_mov_b32 exec_hi, 1")
            e(f"buffer_store_dwordx2 {vr(vT+4,2)}, v{vT+6}, s[{sWS}:{sWS+3}], s{sT} offen sc1")
            e("s_mov_b64 exec, -1")
        for i in range(10):
            e(f"v_pk_add_f32 {vr(F+2*i,2)}, {vr(F+2*i,2)}, {vr(vT,2)} op_sel_hi:[1,0] neg_lo:[0,1] neg_hi:[0,1]")
        for i in range(10):
            e(f"v_pk_mul_f32 {vr(F+2*i,2)}, {vr(F+2*i,2)}, {vr(vT+2,2)} op_sel_hi:[1,0]")
        for i in range(10):
            e(f"v_cvt_pk_bf16_f32 v{HX+i}, v{F+2*i}, v{F+2*i+1}")
    ln_pass(); ln_pass()
    e(f"s_lshl_b32 s{sT}, s{sWave}, 1")
    e(f"v_add_u32 v{vT}, s{sT}, v{vH}")
    e(f"v_mul_u32_u24 v{vT}, 1344, v{vT}")
    e(f"v_add_u32 v{vT}, {HB}, v{vT}")
    e(f"v_lshl_add_u32 v{vT+1}, v{vR}, 4, v{vT}")
    e(f"v_lshl_add_u32 v{vT+2}, v{vR}, 3, v{vT}")
    e(f"ds_write_b128 v{vT+1}, {vr(HX,4)}")
    e(f"ds_write_b128 v{vT+1}, {vr(HX+4,4)} offset:512")
    e(f"ds_write_b64 v{vT+2}, {vr(HX+8,2)} offset:1024")
    e(f"v_bfe_u32 v{vT}, v{vL}, 2, 2")
    e(f"v_mul_u32_u24 v{vT}, 1344, v{vT}")
    e(f"v_lshrrev_b32 v{vT+1}, 4, v{vL}")
    e(f"v_lshl_add_u32 v{vT}, v{vT+1}, 5, v{vT}")
    e(f"v_and_b32 v{vT+1}, 3, v{vL}")
    e(f"v_lshl_add_u32 v{vT}, v{vT+1}, 3, v{vT}")
    e(f"v_add_u32 v{vT}, {HB}, v{vT}")
    e(f"v_lshlrev_b32 v{vT+4}, 4, v{vL}")
    e.stamp(3)
    e("s_waitcnt lgkmcnt(0)")
    e("s_barrier")
    for j in range(3):
        e(f"s_add_u32 s{sT}, s{sWave}, {4*j}")
        e(f"s_min_u32 s{sT}, s{sT}, 9")
        e(f"s_lshl_b32 s{sT2}, s{sT}, 7")
        e(f"v_add_u32 v{vT+1+j}, s{sT2}, v{vT}")
        e(f"ds_read_b64_tr_b16 {vr(F+4*j,2)}, v{vT+1+j}")
        e(f"ds_read_b64_tr_b16 {vr(F+4*j+2,2)}, v{vT+1+j} offset:{4*1344}")
    e(f"s_cmp_eq_u32 s2, 0")
    e(f"s_mov_b32 s{sT3}, 0x7f000000")
    e(f"s_cselect_b32 s{sT3}, {CNT_OFF}, s{sT3}")
    e(f"v_mov_b32 v{vT+5}, 0")
    e(f"v_lshlrev_b32 v{vT+6}, 7, v{vL}")
    e(f"buffer_store_dword v{vT+5}, v{vT+6}, s[{sWS}:{sWS+3}], s{sT3} offen")
    e(f"s_mul_i32 s{sT3}, s2, 10240")
    e(f"s_add_u32 s{sT3}, s{sT3}, {HT_OFF}")
    e("s_waitcnt lgkmcnt(0)")
    def hstore():
        for j in range(3):
            e(f"s_add_u32 s{sT}, s{sWave}, {4*j}")
            e(f"s_min_u32 s{sT}, s{sT}, 9")
            e(f"s_lshl_b32 s{sT2}, s{sT}, 10")
            e(f"s_add_u32 s{sT2}, s{sT2}, s{sT3}")
            e.vm(f"buffer_store_dwordx4 {vr(F+4*j,4)}, v{vT+4}, s[{sWS}:{sWS+3}], s{sT2} offen {cfg.get('h_store', 'sc1')}", "hs")
    HAT = cfg.get("h_at", 28)
    e(f"s_cmp_lg_u32 s{sCol}, 15")
    e(f"s_cbranch_scc1 {name}_gemm")
    hstore()
    e("s_endpgm")
    e.label(f"{name}_gemm")
    e(f"s_cmp_ge_u32 s{sCol}, 10")
    e(f"s_cbranch_scc1 {name}_v")
    def mainloop(isV):
        NB = 3
        def reads(j):
            if j >= 40: return [[], [], []]
            stage, kk, buf = j // 4, j % 4, j % NB
            slot = (stage % 4) * 32768
            hi = slot >= 65536
            off = slot - (65536 if hi else 0)
            X = [f"ds_read_b128 {vr(FR + buf*16 + tt*4, 4)}, v{vXa + (8 if hi else 0) + tt*4 + kk} offset:{off}" for tt in range(2)]
            W = [[f"ds_read_b64_tr_b16 {vr(FR + buf*16 + 8 + ct*4 + 2*s, 2)}, v{vWa + (2 if hi else 0) + ct} offset:{off + kk*4096 + s*1024}" for s in range(2)] for ct in range(2)]
            return [[X[0], X[1]], W[0], W[1]]
        mode = cfg.get("k1_stats", "group")
        e.stamp(4)
        e(f"s_setprio {cfg.get('k1_cprio', 0)}")
        for j in range(2):
            for g in reads(j):
                for x in g: e(x)
        for j in range(40):
            buf = j % NB
            def mf(tt, ct):
                acc = ACC + (tt*2 + ct) * 16
                x = vr(FR + buf*16 + tt*4, 4); w = vr(FR + buf*16 + 8 + ct*4, 4)
                A, B = (x, w) if isV else (w, x)
                e(f"v_mfma_f32_32x32x16_bf16 {vr(acc,16)}, {A}, {B}, {vr(acc,16)}")
            nxt = reads(j + 2)
            e(f"s_waitcnt lgkmcnt({6 if j < 39 else 0})")
            mf(0, 0)
            if j % 4 == 2: e("s_barrier")
            for x in nxt[0]: e(x)
            mf(0, 1)
            for x in nxt[1]: e(x)
            mf(1, 0)
            for x in nxt[2]: e(x)
            mf(1, 1)
            if j == HAT: hstore()
            if j == 19: e.stamp(5)

    def stats():
        e.stamp(6)
        e(f"s_lshl_b32 s{sT}, s{sWr}, 8")
        e(f"s_lshl_b32 s{sT2}, s{sWc}, 7")
        e(f"s_add_u32 s{sT}, s{sT}, s{sT2}")
        e(f"s_add_u32 s{sT}, s{sT}, {ST_M}")
        e(f"v_lshl_add_u32 v{vT}, v{vR}, 2, s{sT}")
        e(f"s_lshl_b32 s{sT}, s{sWc}, 8")
        e(f"s_lshl_b32 s{sT2}, s{sWr}, 7")
        e(f"s_add_u32 s{sT}, s{sT}, s{sT2}")
        e(f"s_add_u32 s{sT}, s{sT}, {ST_C}")
        e(f"v_lshl_add_u32 v{vT+1}, v{vR}, 2, s{sT}")
        e("s_barrier")

    mainloop(False)
    stats()
    CS = XF
    e(f"v_xor_b32 v{vT+2}, 128, v{vT}")
    e(f"ds_read_b32 v{vT+4}, v{vT}"); e(f"ds_read_b32 v{vT+5}, v{vT} offset:512")
    e(f"ds_read_b32 v{vT+6}, v{vT+2}"); e(f"ds_read_b32 v{vT+7}, v{vT+2} offset:512")
    e(f"v_lshl_add_u32 v{vT+1}, v{vH}, 4, s{sT}")
    e(f"v_xor_b32 v{vT+3}, 128, v{vT+1}")
    for ct in range(2):
        for q in range(4):
            e(f"ds_read_b128 {vr(CS + ct*16 + q*4, 4)}, v{vT+1+2*ct} offset:{q*32}")
    e("s_waitcnt lgkmcnt(0)")
    e(f"v_mul_f32 v{vT+5}, s{sScale}, v{vT+5}")
    e(f"v_mul_f32 v{vT+7}, s{sScale}, v{vT+7}")
    for tt in range(2):
        e(f"s_xor_b32 s{sT}, s{sWc}, {tt}")
        e(f"s_lshl_b32 s{sT2}, s{sWr}, 1")
        e(f"s_add_u32 s{sT}, s{sT}, s{sT2}")
        e(f"s_lshl_b32 s{sT2}, s{sRow}, 2")
        e(f"s_add_u32 s{sT}, s{sT}, s{sT2}")
        e(f"s_mul_i32 s{sT}, s{sT}, s{sStride}")
        e(f"s_add_u32 s{sT}, s{sT}, s{sBase}")
        for ct in range(2):
            acc = ACC + (tt*2 + ct) * 16
            for i in range(0, 16, 2):
                e(f"v_pk_fma_f32 {vr(acc+i,2)}, {vr(vT+4+2*tt,2)}, {vr(CS+ct*16+i,2)}, {vr(acc+i,2)} op_sel_hi:[0,1,1] neg_lo:[1,0,0] neg_hi:[1,0,0]")
            for i in range(0, 16, 2):
                e(f"v_pk_mul_f32 {vr(acc+i,2)}, {vr(acc+i,2)}, {vr(vT+4+2*tt,2)} op_sel:[0,1] op_sel_hi:[1,1]")
            for q in range(4):
                e(f"v_cvt_pk_bf16_f32 v{acc+4*q}, v{acc+4*q}, v{acc+4*q+1}")
                e(f"v_cvt_pk_bf16_f32 v{acc+4*q+1}, v{acc+4*q+2}, v{acc+4*q+3}")
                e(f"buffer_store_dwordx2 {vr(acc+4*q,2)}, v{SO+ct*4+q}, s[{sWS}:{sWS+3}], s{sT} offen {ST}")
    e.stamp(7)
    e.stamp_out(8, 0, sWS, sWave)
    e("s_endpgm")

    e.label(f"{name}_v")
    mainloop(True)
    stats()
    RM = XF; RR = HX
    e(f"v_xor_b32 v{vT+3}, 128, v{vT+1}")
    e(f"ds_read_b32 v{vT+4}, v{vT+1}"); e(f"ds_read_b32 v{vT+5}, v{vT+3}")
    e(f"s_lshl_b32 s{sT}, s{sWr}, 8")
    e(f"s_lshl_b32 s{sT2}, s{sWc}, 7")
    e(f"s_add_u32 s{sT}, s{sT}, s{sT2}")
    e(f"s_add_u32 s{sT}, s{sT}, {ST_M}")
    e(f"v_lshl_add_u32 v{vT}, v{vH}, 4, s{sT}")
    e(f"v_xor_b32 v{vT+2}, 128, v{vT}")
    for tt in range(2):
        for q in range(4):
            e(f"ds_read_b128 {vr(RM + tt*16 + q*4, 4)}, v{vT+2*tt} offset:{q*32}")
            e(f"ds_read_b128 {vr(RR + tt*16 + q*4, 4)}, v{vT+2*tt} offset:{512 + q*32}")
        if tt == 0: e("s_waitcnt lgkmcnt(4)")
    e("s_waitcnt lgkmcnt(0)")
    for tt in range(2):
        e(f"s_xor_b32 s{sT}, s{sWc}, {tt}")
        e(f"s_lshl_b32 s{sT2}, s{sWr}, 1")
        e(f"s_add_u32 s{sT}, s{sT}, s{sT2}")
        e(f"s_lshl_b32 s{sT2}, s{sRow}, 2")
        e(f"s_add_u32 s{sT}, s{sT}, s{sT2}")
        e(f"s_mul_i32 s{sT}, s{sT}, 2560")
        e(f"s_add_u32 s{sT}, s{sT}, {KV_OFF + 1280}")
        for ct in range(2):
            acc = ACC + (tt*2 + ct) * 16
            for i in range(0, 16, 2):
                e(f"v_pk_fma_f32 {vr(acc+i,2)}, {vr(RM+tt*16+i,2)}, {vr(vT+4,2)}, {vr(acc+i,2)} op_sel:[0,{ct},0] op_sel_hi:[1,{ct},1] neg_lo:[1,0,0] neg_hi:[1,0,0]")
            for i in range(0, 16, 2):
                e(f"v_pk_mul_f32 {vr(acc+i,2)}, {vr(acc+i,2)}, {vr(RR+tt*16+i,2)}")
            for p in range(2):
                for j in range(4):
                    e(f"v_cvt_pk_bf16_f32 v{acc+8*p+j}, v{acc+8*p+2*j}, v{acc+8*p+2*j+1}")
                e(f"buffer_store_dwordx4 {vr(acc+8*p,4)}, v{SO+ct}, s[{sWS}:{sWS+3}], s{sT} offen offset:{640*p} {ST}")
    e.stamp(7)
    e.stamp_out(8, 0, sWS, sWave)
    e.label(f"{name}_end")
    e("s_endpgm")
    gen_loader()
    return e.l, dict(vgpr=252, grid=256, block=512, lds=K1_LDS)
```

```python
from common import *
from gemm16 import *
K2_LDS = 49152
NATT = 512
NMLP1 = 216
NMLP = 256
OOB = 0x7f000000

def gen_attn(e, name, cfg):
    ST = cfg.get("k2_store", "sc1")
    sWS = 8
    sWave, sHead, sQb, sKV, sT, sT2, sIt, sCur, sQo = 20, 21, 22, 23, 24, 25, 26, 27, 28
    sMV, sML, sMH = 30, 32, 34
    sOff, sRot, sLds, sCnt, sHb = 36, 37, 38, 39, 40
    vL, vR, vH = 1, 2, 3
    vK0, vK1, vV = 4, 5, 6
    vQ = vK1
    _ = 0
    vT = 7
    Q0 = 12
    Q1 = 28
    O = 36
    S = 100
    KV = 132
    def K0(b): return KV + 14*b
    def V0(b): return KV + 14*b + 4
    def V1(b): return KV + 14*b + 8
    def K1(b): return KV + 14*b + 12
    M = 160
    lK0, lK1, lV = 164, 165, 166
    lQ = lK1
    _ = 0
    srd = f"s[{sWS}:{sWS+3}]"
    if cfg.get("start_prio", 0):
        e("s_cmp_ge_u32 s2, 256")
        e(f"s_cbranch_scc1 {name}_lo")
        e("s_setprio 3")
        e.label(f"{name}_lo")
    e(f"v_and_b32 v{vL}, 63, v0")
    e(f"v_lshrrev_b32 v{vT}, 6, v0")
    e(f"v_and_b32 v{vR}, 31, v0")
    e(f"v_readfirstlane_b32 s{sWave}, v{vT}")
    e(f"v_lshlrev_b32 v{vK0}, 4, v{vL}")
    e(f"v_lshlrev_b32 v{vQ}, 3, v{vL}")
    e(f"s_and_b32 s{sHead}, s2, 7")
    e(f"s_lshl_b32 s{sHead}, s{sHead}, 2")
    e(f"s_bfe_u32 s{sT}, s2, 0x20003")
    e(f"s_add_u32 s{sHead}, s{sHead}, s{sT}")
    e(f"s_lshr_b32 s{sQb}, s2, 5")
    e(f"s_mov_b32 s{sMV}, 0x000fffff"); e(f"s_mov_b32 s{sMV+1}, 0x000fffff")
    e(f"s_mov_b32 s{sML}, -1"); e(f"s_mov_b32 s{sML+1}, 0")
    e(f"s_mov_b32 s{sMH}, 0"); e(f"s_mov_b32 s{sMH+1}, -1")
    e(f"s_lshl_b32 s{sT}, s{sHead}, 6")
    e(f"s_lshl_b32 s{sT2}, s{sQb}, 2")
    e(f"s_add_u32 s{sT2}, s{sT2}, s{sT}")
    e(f"s_mul_i32 s{sQo}, s{sT2}, 1280")
    e(f"s_mul_i32 s{sHb}, s{sT}, 2560")
    e(f"s_add_u32 s{sHb}, s{sHb}, {KV_OFF}")
    e(f"s_mul_i32 s{sT}, s{sWave}, {16*2560}")
    e(f"s_add_u32 s{sKV}, s{sHb}, s{sT}")
    e(f"s_mul_i32 s{sT}, s{sQb}, 2560")
    e(f"s_add_u32 s{sCur}, s{sHb}, s{sT}")
    e(f"s_mul_i32 s{sLds}, s{sWave}, 12288")
    e(f"s_mov_b32 s{sRot}, s{sQb}")
    e(f"s_mov_b32 s{sCnt}, 0")
    for t in range(4):
        e(f"v_mov_b32 v{Q1+2*t}, 0"); e(f"v_mov_b32 v{Q1+2*t+1}, 0")
    e(f"v_mov_b32 v{K1(1)}, 0x3f803f80"); e(f"v_mov_b32 v{K1(1)+1}, 0x3f80")
    e("s_waitcnt lgkmcnt(0)")
    e.srd(sWS, 4, WS_USED)
    def loadK(b, soff, tag):
        e.vm(f"buffer_load_dwordx2 {vr(K0(b),2)}, v{vQ}, {srd}, s{soff} offen", tag)
        e.vm(f"buffer_load_dwordx2 {vr(K0(b)+2,2)}, v{vQ}, {srd}, s{soff} offen offset:512", tag)
        e(f"s_mov_b64 exec, s[{sML}:{sML+1}]")
        e.vm(f"buffer_load_dwordx2 {vr(K1(b),2)}, v{vK1}, {srd}, s{soff} offen offset:1024", tag)
        e("s_mov_b64 exec, -1")
    def dma(slot, tag="d"):
        e(f"s_mul_i32 s{sOff}, s{sRot}, 2560")
        e(f"s_add_u32 s{sOff}, s{sOff}, s{sKV}")
        e(f"s_cmp_lt_u32 s{sCnt}, 16")
        e(f"s_cselect_b32 s{sOff}, s{sOff}, {OOB}")
        e(f"s_add_u32 m0, s{sLds}, {slot*2560}")
        e(f"s_add_u32 s{sRot}, s{sRot}, 1")
        e.vm(f"buffer_load_dwordx4 v{vK0}, {srd}, s{sOff} offen lds", tag)
        e.vm(f"buffer_load_dwordx4 v{vK0}, {srd}, s{sOff} offen offset:1024 lds", tag)
        e(f"s_mov_b64 exec, s[{sML}:{sML+1}]")
        e.vm(f"buffer_load_dwordx4 v{vK0}, {srd}, s{sOff} offen offset:2048 lds", tag)
        e("s_mov_b64 exec, -1")
        e(f"s_and_b32 s{sRot}, s{sRot}, 15")
        e(f"s_add_u32 s{sCnt}, s{sCnt}, 1")
    def ldsread(slot, b):
        o = slot * 2560
        e(f"ds_read2st64_b64 {vr(K0(b),4)}, v{lQ} offset0:{o//512} offset1:{o//512+1}")
        e(f"s_mov_b64 exec, s[{sML}:{sML+1}]")
        e(f"ds_read_b64 {vr(K1(b),2)}, v{lK1} offset:{o+1024}")
        e(f"s_mov_b64 exec, s[{sMV}:{sMV+1}]")
        e(f"ds_read_b128 {vr(V0(b),4)}, v{lV} offset:{o+1280}")
        e(f"ds_read_b128 {vr(V1(b),4)}, v{lV} offset:{o+1920}")
        e("s_mov_b64 exec, -1")
    def QK1(sb, t, kb): return f"v_mfma_f32_32x32x16_bf16 {vr(S+16*sb,16)}, {vr(K0(kb),4)}, {vr(Q0+4*t,4)}, 0"
    def QK2(sb, t, kb): return f"v_mfma_f32_32x32x8bf16_1k {vr(S+16*sb,16)}, {vr(K1(kb),2)}, {vr(Q1+2*t,2)}, {vr(S+16*sb,16)}"
    def PV1(sb, t, kb): return f"v_mfma_f32_32x32x16_bf16 {vr(O+16*t,16)}, {vr(V0(kb),4)}, {vr(S+16*sb,4)}, {vr(O+16*t,16)}"
    def PV2(sb, t, kb): return f"v_mfma_f32_32x32x16_bf16 {vr(O+16*t,16)}, {vr(V1(kb),4)}, {vr(S+16*sb+8,4)}, {vr(O+16*t,16)}"
    def tilemax(s, dst, first):
        if first:
            e(f"v_max3_f32 v{dst}, v{s}, v{s+1}, v{s+2}"); rest = list(range(3, 16))
        else:
            rest = list(range(16))
        while len(rest) >= 2:
            e(f"v_max3_f32 v{dst}, v{dst}, v{s+rest[0]}, v{s+rest[1]}"); rest = rest[2:]
        if rest: e(f"v_max_f32 v{dst}, v{dst}, v{s+rest[0]}")
    def setslots(t, m):
        e(f"v_sub_f32 v{vT}, 0, v{m}")
        e(f"v_cvt_pk_bf16_f32 v{vT+1}, v{vT}, v{vT}")
        e(f"v_and_b32 v{vT+2}, 0xffff0000, v{vT+1}")
        e(f"v_sub_f32 v{vT}, v{vT}, v{vT+2}")
        e(f"v_cvt_pk_bf16_f32 v{Q1+2*t}, v{vT+2}, v{vT}")
        e(f"v_and_b32 v{vT+2}, 0xffff0000, v{Q1+2*t}")
        e(f"v_sub_f32 v{vT}, v{vT}, v{vT+2}")
        e(f"v_cvt_pk_bf16_f32 v{Q1+2*t+1}, v{vT}, 0")
    loadK(1, sCur, "q")
    for t in range(4):
        e.vm(f"buffer_load_dwordx2 {vr(Q0+4*t,2)}, v{vQ}, {srd}, s{sQo} offen offset:{1280*t}", "q")
    e(f"s_add_u32 s{sT}, s{sQo}, 512")
    for t in range(4):
        e.vm(f"buffer_load_dwordx2 {vr(Q0+4*t+2,2)}, v{vQ}, {srd}, s{sT} offen offset:{1280*t}", "q")
    e(f"s_mov_b64 exec, s[{sML}:{sML+1}]")
    e(f"s_add_u32 s{sT}, s{sQo}, 1024")
    for t in range(4):
        e.vm(f"buffer_load_dwordx2 {vr(Q1+2*t,2)}, v{vK1}, {srd}, s{sT} offen offset:{1280*t}", "q")
    e("s_mov_b64 exec, -1")
    for s in range(4): dma(s, f"d{s}")
    e(f"v_lshrrev_b32 v{vH}, 5, v{vL}")
    e(f"v_mul_u32_u24 v{vV}, 320, v{vH}")
    e(f"v_lshl_add_u32 v{vV}, v{vR}, 4, v{vV}")
    e(f"v_add_u32 v{lK0}, s{sLds}, v{vK0}")
    e(f"v_add_u32 v{lK1}, s{sLds}, v{vK1}")
    e(f"v_add_u32 v{lV}, s{sLds}, v{vV}")
    e(f"v_cmp_eq_u32 vcc, 20, v{vR}")
    e(f"v_mov_b32 v{vT}, 0x3f803f80")
    e(f"v_mov_b32 v{K1(0)}, 0x3f803f80"); e(f"v_mov_b32 v{K1(0)+1}, 0x3f80")
    for b in range(2):
        for i in range(8):
            e(f"v_cndmask_b32 v{V0(b)+i}, 0, v{vT}, vcc")
    for i in range(4):
        e(f"v_mov_b32 v{S+16+8+i}, 0")
    e.stamp(1)
    e.vmwait("q")
    e.stamp(2)
    for t in range(4):
        e(f"v_mfma_f32_32x32x16_bf16 {vr(O+16*t,16)}, {vr(K0(1),4)}, {vr(Q0+4*t,4)}, 0")
    for t in range(4):
        e(f"v_mfma_f32_32x32x8bf16_1k {vr(O+16*t,16)}, {vr(K1(1),2)}, {vr(Q1+2*t,2)}, {vr(O+16*t,16)}")
    e.vmwait("d0")
    ldsread(0, 0)
    for t in range(4):
        tilemax(O + 16*t, M + t, True)
    for t in range(4):
        e(f"v_mov_b32 v{S+t}, v{M+t}")
    for t in range(4):
        e(f"v_permlane32_swap_b32 v{M+t}, v{S+t}")
    e(f"s_mov_b64 exec, s[{sMH}:{sMH+1}]")
    for t in range(4):
        e(f"v_max_f32 v{M+t}, v{M+t}, v{S+t}")
        setslots(t, M + t)
    e("s_mov_b64 exec, -1")
    e("s_waitcnt lgkmcnt(0)")
    e(QK1(0, 0, 0)); e(QK2(0, 0, 0))
    dma(0, "d4")
    for t in range(4):
        e(f"v_mfma_f32_32x32x8bf16_1k {vr(O+16*t,16)}, {vr(S+24,2)}, {vr(S+24,2)}, 0")
    e.stamp(3)
    e(f"s_mov_b32 s{sIt}, 4")
    AP = cfg.get("attn_prio", [3, 2, 1, 0])
    e(f"s_setprio {AP[0]}")
    e(".p2align 6")
    e.label(f"{name}_loop")
    for kt in range(4):
        kb = kt % 2
        for q in range(4):
            sb = q % 2; s = S + 16*sb
            ex = lambda i: f"v_exp_f32 v{s+i}, v{s+i}"
            cv = lambda i: f"v_cvt_pk_bf16_f32 v{s+(i//4)*8+i%4}, v{s+2*i}, v{s+2*i+1}"
            pq, pkb = (q - 1, kb) if q > 0 else (3, 1 - kb)
            nq, nkb = (q + 1, kb) if q < 3 else (0, 1 - kb)
            e(ex(0)); e(ex(1)); e(PV2(1 - sb, pq, pkb))
            if q == 1 and not cfg.get("attn_nolds"):
                e("s_waitcnt vmcnt(9)")
                ldsread((kt + 1) % 4, 1 - kb)
            e(ex(2)); e(ex(3)); e(cv(0)); e(cv(1)); e(ex(4))
            if q == 3:
                e("s_waitcnt lgkmcnt(0)")
            e(QK1(1 - sb, nq, nkb))
            if q == 3 and not cfg.get("attn_nodma"):
                dma((kt + 1) % 4)
            e(ex(5)); e(ex(6)); e(ex(7)); e(cv(2)); e(cv(3)); e(ex(8))
            e(QK2(1 - sb, nq, nkb))
            e(ex(9)); e(ex(10)); e(ex(11)); e(cv(4)); e(cv(5)); e(ex(12)); e(ex(13))
            e(PV1(sb, q, kb))
            if kt == 3 and q == 3:
                if True:
                    e(f"s_cmp_eq_u32 s{sIt}, 4")
                    e(f"s_setprio {AP[1]}")
                    e(f"s_cbranch_scc1 {name}_pr")
                    e(f"s_cmp_eq_u32 s{sIt}, 3")
                    e(f"s_setprio {AP[2]}")
                    e(f"s_cbranch_scc1 {name}_pr")
                    e(f"s_setprio {AP[3]}")
                    e.label(f"{name}_pr")
                e(f"s_sub_u32 s{sIt}, s{sIt}, 1")
                e(f"s_cmp_lg_u32 s{sIt}, 0")
            e(ex(14)); e(ex(15)); e(cv(6)); e(cv(7))
    e(f"s_cbranch_scc1 {name}_loop")
    e(PV2(1, 3, 1))
    e("s_setprio 3")
    e.stamp(4)
    e(f"s_mul_i32 s{sT}, s{sWave}, 3072")
    e(f"v_add_u32 v{vT+1}, s{sT}, v{vK0}")
    e("s_waitcnt vmcnt(0)")
    for t in range(4):
        for j in range(3):
            e(f"ds_write_b128 v{lK0}, {vr(O+16*t+4*j,4)} offset:{t*3072 + j*1024}")
    e(f"s_lshl_b32 s{sIt}, s{sQb}, 2")
    e(f"s_add_u32 s{sIt}, s{sIt}, s{sWave}")
    e(f"s_lshl_b32 s{sIt}, s{sIt}, 8")
    e(f"s_lshl_b32 s{sRot}, s{sHead}, 14")
    e(f"s_add_u32 s{sRot}, s{sRot}, s{sIt}")
    e(f"s_add_u32 s{sRot}, s{sRot}, {OR_OFF}")
    e(f"s_lshl_b32 s{sCur}, s{sHead}, 16")
    e(f"s_lshl_b32 s{sIt}, s{sIt}, 1")
    e(f"s_add_u32 s{sCur}, s{sCur}, s{sIt}")
    e(f"s_add_u32 s{sCur}, s{sCur}, {O_OFF}")
    e("s_waitcnt lgkmcnt(0)")
    e("s_barrier")
    for w in range(4):
        for j in range(3):
            e(f"ds_read_b128 {vr(O+16*w+4*j,4)}, v{vT+1} offset:{w*12288 + j*1024}")
    e("s_waitcnt lgkmcnt(6)")
    for i in range(12):
        e(f"v_add_f32 v{O+i}, v{O+i}, v{O+16+i}")
    e("s_waitcnt lgkmcnt(0)")
    for i in range(12):
        e(f"v_add_f32 v{O+32+i}, v{O+32+i}, v{O+48+i}")
    for i in range(12):
        e(f"v_add_f32 v{O+i}, v{O+i}, v{O+32+i}")
    def bcast_l():
        e(f"v_mov_b32 v{vT+2}, v{O+8}")
        e(f"v_mov_b32 v{vT+3}, v{O+8}")
        e(f"v_permlane32_swap_b32 v{vT+2}, v{vT+3}")
    bcast_l()
    e(f"v_add_f32 v{vT+2}, |v{O}|, |v{O+1}|")
    for i in range(2, 12):
        e(f"v_add_f32 v{vT+2}, v{vT+2}, |v{O+i}|")
    e(f"v_mov_b32 v{vT+4}, 0x7f000000")
    e(f"v_cmp_nlt_f32 vcc, v{vT+2}, v{vT+4}")
    e(f"s_mov_b64 s[42:43], vcc")
    e(f"v_mov_b32 v{vT+4}, 0x5f800000")
    e(f"v_cmp_nle_f32 vcc, v{vT+3}, v{vT+4}")
    e(f"s_or_b64 s[42:43], s[42:43], vcc")
    e(f"v_cmp_nge_f32 vcc, v{vT+3}, 0.5")
    e(f"s_or_b64 s[42:43], s[42:43], vcc")
    if cfg.get("force_fallback"): e(f"s_branch {name}_fallback")
    e(f"s_cbranch_scc1 {name}_fallback")
    e.label(f"{name}_fin")
    e(f"v_rcp_f32 v{vT+3}, v{vT+3}")
    e(f"v_lshlrev_b32 v{vT}, 4, v{vR}")
    e(f"v_lshl_add_u32 v{vT+1}, v{vH}, 15, v{vT}")
    for i in range(12):
        e(f"v_mul_f32 v{O+i}, v{O+i}, v{vT+3}")
    for i in range(6):
        e(f"v_cvt_pk_bf16_f32 v{O+i}, v{O+2*i}, v{O+2*i+1}")
    e(f"buffer_store_dwordx4 {vr(O,4)}, v{vT+1}, {srd}, s{sCur} offen sc1")
    e(f"s_mov_b64 exec, s[{sML}:{sML+1}]")
    e(f"buffer_store_dwordx2 {vr(O+4,2)}, v{vQ}, {srd}, s{sRot} offen sc1")
    e.stamp(5)
    e(f"s_lshl_b32 s{sT}, s{sQb}, 7")
    e(f"s_add_u32 s{sT}, s{sT}, {CNT_OFF + 1024}")
    e(f"s_cmp_eq_u32 s{sWave}, 0")
    e(f"s_cselect_b32 s{sT}, s{sT}, {OOB}")
    e(f"v_mov_b32 v{vT}, 0")
    e(f"v_mov_b32 v{vT+1}, 1")
    e("s_waitcnt vmcnt(0)")
    e("s_barrier")
    e("s_mov_b64 exec, 1")
    e(f"buffer_atomic_add v{vT+1}, v{vT}, {srd}, s{sT} offen sc1")
    e.stamp_out(6, 1, sWS, sWave)
    e("s_endpgm")
    e.label(f"{name}_fallback")
    e(f"s_mul_i32 s{sT}, s{sWave}, 1280")
    e(f"s_add_u32 s{sT}, s{sT}, s{sQo}")
    e(f"v_mov_b32 v{Q1}, 0"); e(f"v_mov_b32 v{Q1+1}, 0")
    e(f"buffer_load_dwordx2 {vr(Q0,2)}, v{vQ}, {srd}, s{sT} offen")
    e(f"buffer_load_dwordx2 {vr(Q0+2,2)}, v{vQ}, {srd}, s{sT} offen offset:512")
    e(f"s_mov_b64 exec, s[{sML}:{sML+1}]")
    e(f"buffer_load_dwordx2 {vr(Q1,2)}, v{vK1}, {srd}, s{sT} offen offset:1024")
    e("s_mov_b64 exec, -1")
    e(f"v_mov_b32 v{M}, 0xff800000")
    e(f"s_mov_b32 s{sOff}, s{sHb}")
    e(f"s_mov_b32 s{sIt}, 64")
    e.label(f"{name}_f1")
    loadK(0, sOff, "x")
    e("s_waitcnt vmcnt(0)")
    e(QK1(0, 0, 0)); e(QK2(0, 0, 0))
    tilemax(S, M, False)
    e(f"s_add_u32 s{sOff}, s{sOff}, 2560")
    e(f"s_sub_u32 s{sIt}, s{sIt}, 1")
    e(f"s_cmp_lg_u32 s{sIt}, 0")
    e(f"s_cbranch_scc1 {name}_f1")
    xhalf(e, M, vT, "v_max_f32")
    e(f"s_mov_b64 exec, s[{sMH}:{sMH+1}]")
    setslots(0, M)
    e("s_mov_b64 exec, -1")
    for i in range(16): e(f"v_mov_b32 v{O+i}, 0")
    e(f"s_mov_b32 s{sOff}, s{sHb}")
    e(f"s_mov_b32 s{sIt}, 64")
    e.label(f"{name}_f2")
    loadK(0, sOff, "x")
    e(f"s_mov_b64 exec, s[{sMV}:{sMV+1}]")
    e(f"buffer_load_dwordx4 {vr(V0(0),4)}, v{vV}, {srd}, s{sOff} offen offset:1280")
    e(f"buffer_load_dwordx4 {vr(V1(0),4)}, v{vV}, {srd}, s{sOff} offen offset:1920")
    e("s_mov_b64 exec, -1")
    e("s_waitcnt vmcnt(0)")
    e(QK1(0, 0, 0)); e(QK2(0, 0, 0))
    for i in range(16): e(f"v_exp_f32 v{S+i}, v{S+i}")
    for i in range(8): e(f"v_cvt_pk_bf16_f32 v{S+(i//4)*8+i%4}, v{S+2*i}, v{S+2*i+1}")
    e(PV1(0, 0, 0)); e(PV2(0, 0, 0))
    e(f"s_add_u32 s{sOff}, s{sOff}, 2560")
    e(f"s_sub_u32 s{sIt}, s{sIt}, 1")
    e(f"s_cmp_lg_u32 s{sIt}, 0")
    e(f"s_cbranch_scc1 {name}_f2")
    e("s_nop 15")
    bcast_l()
    e(f"s_branch {name}_fin")

def gen_mlp(e, name, cfg):
    sWS, sW, sB1 = 8, 12, 16
    sWave, sDt, sFt, sT, sT2, sIt, sPo, sWo, sM0, sPb, sWb, sKw, sKp, sN, sW2, sG = range(20, 36)
    vP, vWs, vB, vT = 1, 2, 3, 7
    ACC, WF, PF = 12, 92, 124
    g = G16(e, ACC, WF, PF, vP, vWs, vB, vT, sWave, sM0, sT)
    def prefetch(srd, ptr, size, rowstride, colexpr, nrows_per_wave, D):
        e.srd(srd, ptr, size)
        colexpr()
        e(f"s_lshr_b32 s{sT2}, s{sG}, 3")
        e(f"s_lshl_b32 s{sT2}, s{sT2}, 2")
        e(f"s_add_u32 s{sT2}, s{sT2}, s{sWave}")
        e(f"s_mul_i32 s{sT2}, s{sT2}, {nrows_per_wave*rowstride}")
        e(f"s_add_u32 s{sT}, s{sT}, s{sT2}")
        e(f"v_and_b32 v{vT+2}, 63, v0")
        e(f"v_lshlrev_b32 v{vT+2}, 4, v{vT+2}")
        for n in range(nrows_per_wave):
            e(f"buffer_load_dwordx4 {vr(D+4*(n%4),4)}, v{vT+2}, s[{srd}:{srd+3}], s{sT} offen")
            e(f"s_add_u32 s{sT}, s{sT}, {rowstride}")
    def pf_w(ptr, size, rs, colshift_code, qrows, first, nunits, lab):
        e.srd(44, ptr, size)
        colshift_code()
        e(f"s_lshr_b32 s{sKp}, s{sG}, 3")
        e(f"s_sub_u32 s{sKp}, s{sKp}, 27")
        e(f"s_lshl_b32 s{sKp}, s{sKp}, 2")
        e(f"s_add_u32 s{sKp}, s{sKp}, s{sWave}")
        e(f"s_add_u32 s{sKp}, s{sKp}, {first}")
        e(f"v_bfe_u32 v{vT}, v0, 3, 3")
        e(f"v_mul_u32_u24 v{vT}, {rs}, v{vT}")
        e(f"v_and_b32 v{vT+1}, 7, v0")
        e(f"v_lshl_add_u32 v{vT}, v{vT+1}, 7, v{vT}")
        e.label(lab)
        e(f"s_lshr_b32 s{sT}, s{sKp}, 4")
        e(f"s_lshl_b32 s{sT}, s{sT}, 2")
        e(f"s_and_b32 s{sT2}, s{sKp}, 3")
        e(f"s_add_u32 s{sT}, s{sT}, s{sT2}")
        e(f"s_lshl_b32 s{sT}, s{sT}, 3")
        e(f"s_bfe_u32 s{sT2}, s{sKp}, 0x20002")
        e(f"s_mul_i32 s{sT2}, s{sT2}, {qrows}")
        e(f"s_add_u32 s{sT}, s{sT}, s{sT2}")
        e(f"s_mul_i32 s{sT}, s{sT}, {rs}")
        e(f"s_add_u32 s{sT}, s{sT}, s{sKw}")
        e(f"buffer_load_dword v{PF}, v{vT}, s[44:47], s{sT} offen")
        e(f"s_waitcnt vmcnt({cfg.get('pf_depth', 3)})")
        e(f"s_add_u32 s{sKp}, s{sKp}, 20")
        e(f"s_cmp_lt_u32 s{sKp}, {nunits}")
        e(f"s_cbranch_scc1 {lab}")
    def pf_w1():
        def col():
            e(f"s_bfe_u32 s{sKw}, s{sG}, 0x20001")
            e(f"s_mul_i32 s{sKw}, s{sKw}, 27")
            e(f"s_lshr_b32 s{sKw}, s{sKw}, 2")
            e(f"s_lshl_b32 s{sKw}, s{sKw}, 7")
        pf_w(6, 2048 * 3456, 3456, col, 512, 16 * cfg.get("pf1_first", 3), 256, name + "_pf1")
    def pf_w2():
        e.srd(44, 42, 1728 * 4096)
        e(f"s_bfe_u32 s{sT}, s{sG}, 0x20001")
        e(f"s_lshl_b32 s{sT}, s{sT}, 10")
        e(f"s_lshr_b32 s{sT2}, s{sG}, 3")
        e(f"s_lshl_b32 s{sT2}, s{sT2}, 2")
        e(f"s_add_u32 s{sT2}, s{sT2}, s{sWave}")
        e(f"s_mul_i32 s{sT2}, s{sT2}, {14*4096}")
        e(f"s_add_u32 s{sT}, s{sT}, s{sT2}")
        e(f"v_bfe_u32 v{vT}, v0, 3, 3")
        e(f"v_lshlrev_b32 v{vT}, 12, v{vT}")
        e(f"v_and_b32 v{vT+1}, 7, v0")
        e(f"v_lshl_add_u32 v{vT}, v{vT+1}, 7, v{vT}")
        e(f"buffer_load_dword v{PF}, v{vT}, s[44:47], s{sT} offen")
        e(f"s_add_u32 s{sT}, s{sT}, {8*4096}")
        e("s_mov_b32 exec_hi, 0xffff")
        e(f"buffer_load_dword v{PF}, v{vT}, s[44:47], s{sT} offen")
        e("s_mov_b64 exec, -1")
    e("s_mov_b32 s48, -1"); e("s_mov_b32 s49, 0xff")
    e(f"v_lshrrev_b32 v{vT}, 6, v0")
    e(f"s_sub_u32 s{sG}, s2, {NATT}")
    e(f"v_readfirstlane_b32 s{sWave}, v{vT}")
    g.setup_p(10240)
    e(f"s_mul_i32 s{sM0}, s{sWave}, 12288")
    e(f"s_cmp_ge_u32 s{sG}, {NMLP1}")
    e(f"s_cbranch_scc1 {name}_skip1")
    e(f"s_and_b32 s{sT2}, s{sG}, 7")
    e(f"s_lshr_b32 s{sT}, s{sG}, 3")
    e(f"s_lshr_b32 s{sDt}, s{sT2}, 1")
    e(f"s_mul_i32 s{sDt}, s{sDt}, 27")
    e(f"s_add_u32 s{sT}, s{sT}, s{sDt}")
    e(f"s_lshr_b32 s{sFt}, s{sT}, 2")
    e(f"s_and_b32 s{sT}, s{sT}, 3")
    e(f"s_and_b32 s{sDt}, s{sT2}, 1")
    e(f"s_lshl_b32 s{sDt}, s{sDt}, 2")
    e(f"s_add_u32 s{sDt}, s{sDt}, s{sT}")
    e(f"s_lshl_b32 s{sKw}, s{sT}, 2")
    e(f"s_mul_i32 s{sT}, s{sFt}, 5")
    e(f"s_lshr_b32 s{sT}, s{sT}, 1")
    e(f"s_add_u32 s{sKw}, s{sKw}, s{sT}")
    e(f"s_and_b32 s{sKw}, s{sKw}, {15 if cfg.get('mlp_rot', 0) else 0}")
    e(f"s_mov_b32 s{sKp}, s{sKw}")
    e(f"s_mov_b32 s{sN}, 16")
    e(f"s_mul_i32 s{sPb}, s{sWave}, {64*10240}")
    e(f"s_mul_i32 s{sT}, s{sDt}, 1280")
    e(f"s_add_u32 s{sPb}, s{sPb}, s{sT}")
    e(f"s_add_u32 s{sPb}, s{sPb}, {HT_OFF}")
    g.setup_w(3456)
    e(f"s_mul_i32 s{sWb}, s{sWave}, {512*3456}")
    e(f"s_lshl_b32 s{sT}, s{sFt}, 7")
    e(f"s_add_u32 s{sWb}, s{sWb}, s{sT}")
    g.setup_tr()
    e("s_waitcnt lgkmcnt(0)")
    e.srd(sWS, 4, WS_USED)
    e.srd(sW, 6, 2048 * 3456)
    e.srd(sB1, 38, 1728 * 2)
    e(f"s_setprio {cfg.get('mlp_prio_ld', 0)}")
    e.vmq = []
    c1 = Stream(g, 16, sW, sWS, 3456, 40960, "", True, sKw, sKp, sN, sWb, sPb, sWo, sPo, sW2, False)
    c1.advW(0)
    for n in range(4): c1.dmaW(0, n)
    c1.advP(0)
    for td in range(5): c1.ldP(0, td)
    c1.advW(1)
    for n in range(4): c1.dmaW(1, n)
    c1.advP(1)
    for td in range(5): c1.ldP(1, td)
    c1.advW(2)
    for n in range(4): c1.dmaW(2, n)
    e(f"s_lshl_b32 s{sT}, s{sWave}, 5")
    e(f"s_lshl_b32 s{sT2}, s{sFt}, 7")
    e(f"s_add_u32 s{sT}, s{sT}, s{sT2}")
    e(f"v_bfe_u32 v{vT}, v0, 4, 2")
    e(f"v_lshlrev_b32 v{vT}, 3, v{vT}")
    e.vm(f"buffer_load_dwordx2 v[10:11], v{vT}, s[{sB1}:{sB1+3}], s{sT} offen", "b")
    e.stamp(1)
    e(f"s_setprio {cfg.get('mlp_prio_loop', 2)}")
    c1.run()
    e(f"s_setprio {cfg.get('mlp_prio_epi', 3)}")
    e.stamp(2)
    if cfg.get("pf_w2", 1): pf_w2()
    g.reduce()
    c0 = -2.0 * math.log2(math.e) * math.sqrt(2.0 / math.pi)
    cc = c0 * 0.044715
    e(f"s_mov_b32 s{sIt}, {fhex(cc)}")
    e(f"v_mov_b32 v{vT+1}, {fhex(c0)}")
    R = ACC; T = ACC + 20; BF = ACC + 40
    for j in range(2):
        e(f"v_lshlrev_b32 v{BF+2*j}, 16, v{10+j}")
        e(f"v_and_b32 v{BF+2*j+1}, 0xffff0000, v{10+j}")
    e(f"v_bfe_u32 v{vT}, v0, 5, 1")
    e(f"v_mul_u32_u24 v{vB}, 10240, v{vT}")
    e(f"v_and_b32 v{vT}, 15, v0")
    e(f"v_lshl_add_u32 v{vB}, v{vT}, 4, v{vB}")
    e(f"v_bfe_u32 v{vT}, v0, 4, 1")
    e(f"v_lshl_add_u32 v{vB}, v{vT}, 3, v{vB}")
    e(f"s_lshl_b32 s{sT}, s{sFt}, 2")
    e(f"s_add_u32 s{sT}, s{sT}, s{sWave}")
    e(f"s_mul_i32 s{sT}, s{sT}, 20480")
    e(f"s_mul_i32 s{sT2}, s{sDt}, 1280")
    e(f"s_add_u32 s{sT}, s{sT}, s{sT2}")
    e(f"s_add_u32 s{sT}, s{sT}, {U_OFF}")
    for lo, hi in ((0, 8), (8, 20)):
        rg = range(lo, hi)
        for i in rg: e(f"v_add_f32 v{R+i}, v{R+i}, v{BF+i%4}")
        for i in rg: e(f"v_mul_f32 v{T+i}, v{R+i}, v{R+i}")
        for i in rg: e(f"v_fma_f32 v{T+i}, v{T+i}, s{sIt}, v{vT+1}")
        for i in rg: e(f"v_mul_f32 v{T+i}, v{T+i}, v{R+i}")
        for i in rg: e(f"v_exp_f32 v{T+i}, v{T+i}")
        for i in rg: e(f"v_add_f32 v{T+i}, 1.0, v{T+i}")
        for i in rg: e(f"v_rcp_f32 v{T+i}, v{T+i}")
        for i in rg: e(f"v_mul_f32 v{R+i}, v{R+i}, v{T+i}")
        for td in range(lo // 4, hi // 4):
            e(f"v_cvt_pk_bf16_f32 v{R+4*td}, v{R+4*td}, v{R+4*td+1}")
            e(f"v_cvt_pk_bf16_f32 v{R+4*td+1}, v{R+4*td+2}, v{R+4*td+3}")
            e(f"buffer_store_dwordx2 {vr(R+4*td,2)}, v{vB}, s[{sWS}:{sWS+3}], s{sT} offen offset:{td*256} sc1")
    e("s_waitcnt vmcnt(0)")
    e("s_barrier")
    e(f"s_cmp_lg_u32 s{sWave}, 0")
    e(f"s_cbranch_scc1 {name}_p2")
    e(f"s_lshl_b32 s{sT}, s{sDt}, 7")
    e(f"s_add_u32 s{sT}, s{sT}, {CNT_OFF}")
    e(f"v_mov_b32 v{vT}, 0")
    e(f"v_mov_b32 v{vT+1}, 1")
    e("s_mov_b64 exec, 1")
    e(f"buffer_atomic_add v{vT+1}, v{vT}, s[{sWS}:{sWS+3}], s{sT} offen sc1")
    e("s_mov_b64 exec, -1")
    e(f"s_branch {name}_p2")
    e.label(f"{name}_skip1")
    e(f"s_setprio {cfg.get('pf_prio', 0)}")
    e("s_waitcnt lgkmcnt(0)")
    e.srd(sWS, 4, WS_USED)
    e.stamp(1)
    if cfg.get("pf2_w1", 1): pf_w1()
    if cfg.get("pf_w2", 1): pf_w2()
    e.stamp(2)
    e.label(f"{name}_p2")
    e.stamp(3)
    e.srd(sW, 42, 1728 * 4096)
    sSt = sFt
    e(f"s_bfe_u32 s{sSt}, s{sG}, 0x20001")
    e(f"s_lshl_b32 s{sSt}, s{sSt}, 3")
    e(f"s_bfe_u32 s{sT}, s{sG}, 0x30003")
    e(f"s_add_u32 s{sSt}, s{sSt}, s{sT}")
    e(f"s_and_b32 s{sDt}, s{sG}, 1")
    e(f"s_lshl_b32 s{sDt}, s{sDt}, 2")
    e(f"s_lshr_b32 s{sKp}, s{sG}, 6")
    e(f"s_add_u32 s{sDt}, s{sDt}, s{sKp}")
    e(f"s_cmp_ge_u32 s{sWave}, 2")
    e(f"s_cselect_b32 s{sN}, 13, 14")
    e(f"s_mul_i32 s{sT2}, s{sWave}, 14")
    e(f"s_cmp_eq_u32 s{sWave}, 3")
    e(f"s_cselect_b32 s{sIt}, 1, 0")
    e(f"s_sub_u32 s{sT2}, s{sT2}, s{sIt}")
    e(f"s_mul_i32 s{sKw}, s{sT}, 3")
    e(f"s_lshr_b32 s{sKw}, s{sKw}, 1")
    e(f"s_mul_i32 s{sT}, s{sKp}, 3")
    e(f"s_add_u32 s{sKw}, s{sKw}, s{sT}")
    e(f"s_cmp_ge_u32 s{sKw}, 13")
    e(f"s_cselect_b32 s{sT}, 13, 0")
    e(f"s_sub_u32 s{sKw}, s{sKw}, s{sT}")
    if not cfg.get("mlp_rot", 0): e(f"s_mov_b32 s{sKw}, 0")
    e(f"s_mov_b32 s{sKp}, s{sKw}")
    e(f"s_mul_i32 s{sPb}, s{sT2}, 40960")
    e(f"s_mul_i32 s{sT}, s{sDt}, 1280")
    e(f"s_add_u32 s{sPb}, s{sPb}, s{sT}")
    e(f"s_add_u32 s{sPb}, s{sPb}, {U_OFF}")
    e(f"s_mul_i32 s{sWb}, s{sT2}, {32*4096}")
    e(f"s_lshl_b32 s{sT}, s{sSt}, 7")
    e(f"s_add_u32 s{sWb}, s{sWb}, s{sT}")
    g.setup_w(4096)
    e.vmq = []
    c2 = Stream(g, 14, sW, sWS, 4096, 40960, "sc1", False, sKw, sKp, sN, sWb, sPb, sWo, sPo, sW2, True)
    c2.preW()
    g.setup_tr()
    def poll(idx_sgpr, base, target, lab):
        e(f"s_cmp_lg_u32 s{sWave}, 0")
        e(f"s_cbranch_scc1 {lab}_go")
        e(f"s_lshl_b32 s{sT}, s{idx_sgpr}, 7")
        e(f"s_add_u32 s{sT}, s{sT}, {base}")
        e(f"v_mov_b32 v{vT}, 0")
        e(f"s_mov_b32 s{sIt}, 0x40000")
        e.label(f"{lab}_poll")
        e(f"buffer_load_dword v{vT+1}, v{vT}, s[{sWS}:{sWS+3}], s{sT} offen sc1")
        e("s_waitcnt vmcnt(0)")
        e(f"v_readfirstlane_b32 s{sT2}, v{vT+1}")
        e(f"s_cmp_ge_u32 s{sT2}, {target}")
        e(f"s_cbranch_scc1 {lab}_go")
        e(f"s_sleep {cfg.get('poll_sleep', 4)}")
        e(f"s_sub_u32 s{sIt}, s{sIt}, 1")
        e(f"s_cmp_lg_u32 s{sIt}, 0")
        e(f"s_cbranch_scc1 {lab}_poll")
        e.label(f"{lab}_go")
        e("s_barrier")
    poll(sDt, CNT_OFF, 27, name + "_u")
    e.stamp(4)
    c2.preP()
    e(f"s_setprio {cfg.get('mlp_prio_loop', 2)}")
    c2.run()
    e(f"s_setprio {cfg.get('mlp_prio_epi', 3)}")
    e.stamp(5)
    sX, sOUT, sAo, sOo, sRo, sXo, sQb = 44, 56, sWb, sPb, sPo, sWo, sN
    XR, OF, AF = PF, 32, 112
    vXo, vOp, vOr, vLa = vWs, vB, vB + 1, vB + 2
    e.srd(sX, 52, 2048 * 1280)
    e.srd(sB1, 54, 4096)
    e(f"v_and_b32 v{vT+1}, 15, v0")
    e(f"v_bfe_u32 v{vT}, v0, 4, 2")
    e(f"v_lshlrev_b32 v{vT+2}, 1, v{vT+1}")
    e(f"v_mul_u32_u24 v{vXo}, 1280, v{vT+1}")
    e(f"v_lshl_add_u32 v{vXo}, v{vT}, 3, v{vXo}")
    e(f"s_lshl_b32 s{sT}, s{sSt}, 2")
    e(f"s_add_u32 s{sT}, s{sT}, s{sWave}")
    e(f"s_lshl_b32 s{sOo}, s{sT}, 8")
    e(f"s_add_u32 s{sOo}, s{sOo}, {O_OFF}")
    e(f"s_lshl_b32 s{sRo}, s{sT}, 7")
    e(f"s_add_u32 s{sRo}, s{sRo}, {OR_OFF}")
    e(f"s_mul_i32 s{sXo}, s{sT}, {16*1280}")
    e(f"s_lshl_b32 s{sT2}, s{sT}, 5")
    e(f"s_mul_i32 s{sT}, s{sDt}, 160")
    e(f"s_add_u32 s{sXo}, s{sXo}, s{sT}")
    for td in range(5):
        e(f"buffer_load_dwordx2 {vr(XR+2*td,2)}, v{vXo}, s[{sX}:{sX+3}], s{sXo} offen offset:{td*32}")
    e(f"buffer_load_ushort v{XR+10}, v{vT+2}, s[{sB1}:{sB1+3}], s{sT2} offen")
    g.reduce()
    e("s_barrier")
    e(f"s_mul_i32 s{sM0}, s{sWave}, 5120")
    e(f"s_mul_i32 s{sAo}, s{sWave}, 40960")
    e(f"s_mul_i32 s{sT}, s{sDt}, 1280")
    e(f"s_add_u32 s{sAo}, s{sAo}, s{sT}")
    e(f"s_add_u32 s{sAo}, s{sAo}, {WOT_OFF}")
    e.vmq = []
    def dmaA(c):
        for td in range(5):
            e(f"s_add_u32 m0, s{sM0}, {(c%2)*20480 + td*768}")
            e.vm(f"buffer_load_dwordx4 v{vP}, s[{sWS}:{sWS+3}], s{sAo} offen offset:{td*256} lds", f"a{c}")
        e(f"s_add_u32 s{sAo}, s{sAo}, {4*40960}")
    dmaA(0); dmaA(1)
    if cfg.get("pf_wo", 1):
        e(f"v_and_b32 v{vT+1}, 63, v0")
        e(f"v_mul_u32_u24 v{vT+2}, 0xcccd, v{vT+1}")
        e(f"v_lshrrev_b32 v{vT+2}, 19, v{vT+2}")
        e(f"v_mul_u32_u24 v{vB+3}, {10240 - 1280}, v{vT+2}")
        e(f"v_lshl_add_u32 v{vB+3}, v{vT+1}, 7, v{vB+3}")
        e(f"s_mov_b32 s{sT}, s{sAo}")
        for c in range(3):
            e(f"s_mov_b64 exec, s[48:49]")
            e.vm(f"buffer_load_dword v{AF}, v{vB+3}, s[{sWS}:{sWS+3}], s{sT} offen", "t")
            e("s_mov_b64 exec, -1")
            e(f"s_add_u32 s{sT}, s{sT}, {4*40960}")
    e(f"v_mov_b32 v{vLa}, v{vT}")
    e(f"v_bfe_u32 v{vT}, v0, 4, 2")
    e(f"v_and_b32 v{vT+1}, 15, v0")
    e(f"v_lshlrev_b32 v{vOp}, 15, v{vT}")
    e(f"v_lshl_add_u32 v{vOr}, v{vT+1}, 3, v{vOp}")
    e(f"v_lshl_add_u32 v{vOp}, v{vT+1}, 4, v{vOp}")
    e.srd(sOUT, 50, 2048 * 1280)
    e(f"s_waitcnt vmcnt({len(e.vmq)})")
    X = OF
    e(f"v_lshlrev_b32 v{XR+10}, 16, v{XR+10}")
    for i in range(10):
        e(f"v_lshlrev_b32 v{X+2*i}, 16, v{XR+i}")
        e(f"v_and_b32 v{X+2*i+1}, 0xffff0000, v{XR+i}")
    for i in range(20): e(f"v_add_f32 v{ACC+i}, v{ACC+i}, v{XR+10}")
    for i in range(20): e(f"v_add_f32 v{ACC+i}, v{ACC+i}, v{X+i}")
    e(f"s_lshr_b32 s{sQb}, s{sSt}, 1")
    e("s_waitcnt vmcnt(0)")
    e.vmq = []
    e.stamp(6)
    poll(sQb, CNT_OFF + 1024, 32, name + "_o")
    e.stamp(7)
    for k in range(20):
        if k % 5 < 4:
            e.vm(f"buffer_load_dwordx4 {vr(OF+4*k,4)}, v{vOp}, s[{sWS}:{sWS+3}], s{sOo} offen sc1", f"o{k}")
            e(f"s_add_u32 s{sOo}, s{sOo}, {4*32768}")
        else:
            e.vm(f"buffer_load_dwordx2 {vr(OF+4*k,2)}, v{vOr}, s[{sWS}:{sWS+3}], s{sRo} offen sc1", f"o{k}")
            e(f"s_add_u32 s{sRo}, s{sRo}, 16384")
            e.vm(f"buffer_load_dwordx2 {vr(OF+4*k+2,2)}, v{vOr}, s[{sWS}:{sWS+3}], s{sRo} offen sc1", f"o{k}")
            e(f"s_add_u32 s{sRo}, s{sRo}, {7*16384}")
    def rd(k):
        return [f"ds_read_b128 {vr(AF+(k%2)*20+4*td,4)}, v{vLa} offset:{((k//4)%2)*20480 + ((k%4)*5 + td)*1024}" for td in range(5)]
    for x in rd(0): e(x)
    for k in range(20):
        c = k // 4
        e.vmwait(f"o{k}", "lgkmcnt(0)")
        if k % 4 == 3 and c < 4:
            if c >= 1: e.vmwait(f"a{c+1}")
            e("s_barrier")
            if c + 2 < 5: dmaA(c + 2)
        nxt = rd(k + 1) if k + 1 < 20 else []
        for td in range(5):
            if nxt: e(nxt.pop(0))
            a = vr(ACC + 4*td, 4)
            e(f"v_mfma_f32_16x16x32_bf16 {a}, {vr(AF+(k%2)*20+4*td,4)}, {vr(OF+4*k,4)}, {a}")
    e.stamp(8)
    for td in range(5):
        a = ACC + 4*td
        e(f"v_cvt_pk_bf16_f32 v{a}, v{a}, v{a+1}")
        e(f"v_cvt_pk_bf16_f32 v{a+1}, v{a+2}, v{a+3}")
        e(f"buffer_store_dwordx2 {vr(a,2)}, v{vXo}, s[{sOUT}:{sOUT+3}], s{sXo} offen offset:{td*32} {cfg.get('out_store', '')}")
    e.stamp_out(9, 1, sWS, sWave)
    e("s_endpgm")

def gen_k2(name, cfg):
    e = Em(cfg)
    e(f"s_cmp_ge_u32 s2, {NATT + NMLP}")
    e(f"s_cbranch_scc1 {name}_end")
    e.stamp(0)
    e("s_load_dwordx2 s[4:5], s[0:1], 80")
    if cfg.get("agb", 0):
        e("s_cmp_ge_u32 s2, 256")
        e("s_cselect_b32 s3, 0x300, 0")
        e("s_xor_b32 s2, s2, s3")
        e("s_setprio 3")
    e(f"s_cmp_ge_u32 s2, {NATT}")
    e(f"s_cbranch_scc1 {name}_mlp")
    if cfg.get("no_attn"): e("s_endpgm")
    gen_attn(e, name + "_a", cfg)
    e.label(f"{name}_mlp")
    if cfg.get("no_mlp"): e("s_endpgm")
    e(f"s_setprio {cfg.get('mlp_prio_pro', 3)}")
    e("s_load_dwordx2 s[6:7], s[0:1], 32")
    e("s_load_dwordx2 s[38:39], s[0:1], 40")
    e("s_load_dwordx2 s[42:43], s[0:1], 48")
    e("s_load_dwordx2 s[52:53], s[0:1], 0")
    e("s_load_dwordx2 s[54:55], s[0:1], 56")
    e("s_load_dwordx2 s[50:51], s[0:1], 64")
    gen_mlp(e, name + "_m", cfg)
    e.label(f"{name}_end")
    e("s_endpgm")
    return e.l, dict(vgpr=168, grid=NATT + NMLP, block=256, lds=K2_LDS)
```

```python
import struct, math

QF_OFF = 0x000000
KV_OFF = 0x280000
HT_OFF = 0x780000
U_OFF  = 0xA00000
O_OFF  = 0xC20000
OR_OFF = 0xE20000
Z_OFF  = 0xEA0000
WOT_OFF = 0x13C0000
RS_OFF  = 0x14A0000
CNT_OFF = 0x14C0000
WS_USED = 0x1700000
STAMP_OFF = 0x1500000

def f2u(x):
    return struct.unpack("<I", struct.pack("<f", x))[0]
def fhex(x):
    return "0x%08x" % f2u(x)

class Em:
    def __init__(self, cfg={}):
        self.stamps = cfg.get('stamp', False)
        self.dbgout = cfg.get('dbgout', False)
        self.l = []
        self.vmq = []
    def __call__(self, s):
        for ln in s.split("\n"):
            ln = ln.strip()
            if not ln: continue
            self.l.append(ln if ln.endswith(":") or ln.startswith(".") else "    " + ln)
    def label(self, n): self.l.append(n + ":")
    def vm(self, s, tag):
        self(s); self.vmq.append(tag)
    def vmwait(self, tag, extra=""):
        tags = tag if isinstance(tag, (tuple, list, set)) else (tag,)
        idx = max([i for i, t in enumerate(self.vmq) if t in tags], default=-1)
        n = len(self.vmq) - 1 - idx
        self.vmq = self.vmq[idx + 1:]
        assert n <= 63, n
        self(f"s_waitcnt vmcnt({n}) {extra}".strip())
        return n
    def stamp(self, i):
        if not self.stamps: return
        self(f"s_memrealtime s[{60+4*i}:{61+4*i}]")
        self(f"s_memtime s[{62+4*i}:{63+4*i}]")
        self("s_waitcnt lgkmcnt(0)")
    def stamp_out(self, n, kidx, srd, swave):
        if not self.stamps: return
        self("s_waitcnt vmcnt(0)")
        self.stamp(n)
        self("s_mov_b64 exec, 1")
        self(f"s_lshl_b32 s100, s2, 2")
        self(f"s_add_u32 s100, s100, s{swave}")
        self(f"s_lshl_b32 s100, s100, 7")
        self(f"s_add_u32 s100, s100, {STAMP_OFF + kidx * 1024 * 512}")
        self("v_mov_b32 v1, 0")
        if self.dbgout and kidx == 1:
            self("s_load_dwordx2 s[4:5], s[0:1], 72")
            self(f"s_mov_b32 s101, {STAMP_OFF}")
            self(f"buffer_load_dword v4, v1, s[{srd}:{srd+3}], s101 offen sc1")
            self(f"buffer_load_dword v5, v1, s[{srd}:{srd+3}], s101 offen offset:32 sc1")
            self(f"buffer_load_dword v6, v1, s[{srd}:{srd+3}], s101 offen offset:16 sc1")
            self("s_waitcnt vmcnt(0) lgkmcnt(0)")
            self.srd(12, 4, 256)
            self(f"s_cmp_eq_u32 s100, {STAMP_OFF + 1024*512 + (256 if n == 6 else 512)*512}")
            self(f"s_cselect_b32 s101, {0 if n == 6 else 24}, 0x7f000000")
            idx = [0, 3, 4, 6] if n == 6 else list(range(n + 1))
            for j, i in enumerate(idx):
                self(f"v_sub_u32 v2, s{60+4*i}, v4")
                self(f"buffer_store_dword v2, v1, s[12:15], s101 offen offset:{4*j}")
            if n == 6:
                self("v_sub_u32 v2, v6, v4"); self("buffer_store_dword v2, v1, s[12:15], s101 offen offset:16")
                self("v_sub_u32 v2, v5, v4"); self("buffer_store_dword v2, v1, s[12:15], s101 offen offset:20")
        for i in range(n + 1):
            self(f"v_mov_b32 v2, s{60+4*i}")
            self(f"buffer_store_dword v2, v1, s[{srd}:{srd+3}], s100 offen offset:{4*i}")
            self(f"v_mov_b32 v3, s{62+4*i}")
            self(f"buffer_store_dword v3, v1, s[{srd}:{srd+3}], s100 offen offset:{64+4*i}")
    def srd(self, d, lo, size):
        self(f"s_mov_b32 s{d}, s{lo}")
        self(f"s_and_b32 s{d+1}, s{lo+1}, 0xffff")
        self(f"s_mov_b32 s{d+2}, {size}")
        self(f"s_mov_b32 s{d+3}, 0x00020000")

def vr(a, n):
    return f"v[{a}:{a+n-1}]" if n > 1 else f"v{a}"

def kernel_header(name):
    return [f".globl {name}", ".p2align 8", f".type {name},@function", f"{name}:"]

def descriptor(name, vgpr, sgpr=102, agpr=0):
    acc = (vgpr + 3) // 4 * 4
    return f""".p2align 6
.amdhsa_kernel {name}
  .amdhsa_next_free_vgpr {acc + agpr if agpr else vgpr}
  .amdhsa_next_free_sgpr {sgpr}
  .amdhsa_accum_offset {acc}
  .amdhsa_group_segment_fixed_size 0
  .amdhsa_kernarg_size 88
  .amdhsa_user_sgpr_count 2
  .amdhsa_user_sgpr_kernarg_segment_ptr 1
  .amdhsa_system_sgpr_workgroup_id_x 1
.end_amdhsa_kernel"""

def red32(e, s, t):
    e(f"v_add_f32_dpp v{t}, v{s}, v{s} quad_perm:[1,0,3,2] row_mask:0xf bank_mask:0xf")
    e(f"v_add_f32_dpp v{s}, v{t}, v{t} quad_perm:[2,3,0,1] row_mask:0xf bank_mask:0xf")
    e(f"v_add_f32_dpp v{t}, v{s}, v{s} row_half_mirror row_mask:0xf bank_mask:0xf")
    e(f"v_add_f32_dpp v{s}, v{t}, v{t} row_mirror row_mask:0xf bank_mask:0xf")
    e(f"v_mov_b32 v{t}, v{s}")
    e(f"v_permlane16_swap_b32 v{s}, v{t}")
    e(f"v_add_f32 v{s}, v{s}, v{t}")

def xhalf(e, s, t, op="v_add_f32"):
    e(f"v_mov_b32 v{t}, v{s}")
    e(f"v_permlane32_swap_b32 v{s}, v{t}")
    e(f"{op} v{s}, v{s}, v{t}")

def touch_code(e, first, last, vidx, va, sa, uniq):
    e(f"s_getpc_b64 s[{sa}:{sa+1}]")
    e.label(uniq)
    e(f"s_add_u32 s{sa}, s{sa}, {first}-{uniq}")
    e(f"s_addc_u32 s{sa+1}, s{sa+1}, ({first}-{uniq})>>32")
    e(f"v_min_u32 v{va}, ({last}-{first})>>7, v{vidx}")
    e(f"v_lshlrev_b32 v{va}, 7, v{va}")
    e(f"v_mov_b32 v{va+1}, s{sa+1}")
    e(f"v_add_co_u32 v{va}, vcc, s{sa}, v{va}")
    e(f"v_addc_co_u32 v{va+1}, vcc, 0, v{va+1}, vcc")
    e(f"global_load_dword v{va+2}, v[{va}:{va+1}], off")
```

```python
from common import *
HB = 131072
ST_M = HB + 8 * 1344
ST_R = ST_M + 512
ST_C = ST_R + 512
K1_LDS = ST_C + 512
EPS = 1e-5
OOB = 0x7f000000

def gen_k1(name, cfg):
    e = Em(cfg)
    ST = cfg.get("k1_store", "sc1")
    sX, sW, sWS, sDbg = 8, 12, 16, 56
    sWave, sRow, sCol, sXo, sWo, sM0, sT, sOnes, sWr, sWc = 20, 21, 22, 23, 24, 25, 26, 27, 28, 29
    sScale, sStride, sBase, sT2, sT3, sRot, sR1, sR2 = 30, 31, 32, 33, 34, 35, 38, 39
    vL, vR, vH = 1, 2, 3
    vXa, vWa, SO, vT = 4, 20, 24, 32
    ACC, FR = 40, 104
    e("s_cmp_ge_u32 s2, 256")
    e(f"s_cbranch_scc1 {name}_end")
    e.stamp(0)
    e("s_load_dwordx4 s[4:7], s[0:1], 0")
    e("s_load_dwordx2 s[36:37], s[0:1], 80")
    e("s_load_dwordx2 s[54:55], s[0:1], 72")
    if cfg.get("pf_code", 1):
        touch_code(e, name, "attn_kernel", 0, 164, 40, name + "_pc0")
    e(f"v_and_b32 v{vL}, 63, v0")
    e(f"v_lshrrev_b32 v{vT}, 6, v0")
    e(f"v_and_b32 v{vR}, 31, v0")
    e(f"v_readfirstlane_b32 s{sWave}, v{vT}")
    e(f"v_lshrrev_b32 v{vH}, 5, v{vL}")
    e("s_and_b32 s3, s2, 7")
    e(f"s_lshr_b32 s{sT}, s2, 3")
    e(f"s_lshr_b32 s{sRow}, s3, 1")
    e(f"s_lshl_b32 s{sRow}, s{sRow}, 2")
    e(f"s_and_b32 s{sT2}, s{sT}, 3")
    e(f"s_add_u32 s{sRow}, s{sRow}, s{sT2}")
    e(f"s_and_b32 s{sCol}, s3, 1")
    e(f"s_lshl_b32 s{sCol}, s{sCol}, 3")
    e(f"s_lshr_b32 s{sT2}, s{sT}, 2")
    e(f"s_add_u32 s{sCol}, s{sCol}, s{sT2}")
    e(f"s_bfe_u32 s{sWr}, s{sWave}, 0x10001")
    e(f"s_and_b32 s{sWc}, s{sWave}, 1")
    e(f"s_mov_b32 s{sOnes}, 0x3f803f80")
    e(f"s_cmp_ge_u32 s{sWave}, 8")
    e(f"s_cbranch_scc1 {name}_side")
    e(f"s_cmp_eq_u32 s{sCol}, 15")
    e(f"s_cbranch_scc1 {name}_idle")
    e(f"s_cmp_lt_u32 s{sWave}, 4")
    e(f"s_cbranch_scc1 {name}_comp")

    vXs, vWs = 4, 8
    e(f"s_sub_u32 s{sWave}, s{sWave}, 4")
    e(f"v_lshrrev_b32 v{vT}, 3, v{vL}")
    e(f"s_lshl_b32 s{sT}, s{sWave}, 3")
    e(f"v_add_u32 v{vT}, s{sT}, v{vT}")
    e(f"v_mul_u32_u24 v{vT}, 1280, v{vT}")
    e(f"v_lshrrev_b32 v{vT+1}, 4, v{vL}")
    e(f"s_lshl_b32 s{sT}, s{sWc}, 2")
    e(f"v_add_u32 v{vT+2}, s{sT}, v{vT+1}")
    e(f"v_and_b32 v{vT+3}, 7, v{vL}")
    e(f"v_xor_b32 v{vT+2}, v{vT+2}, v{vT+3}")
    e(f"v_lshl_add_u32 v{vXs}, v{vT+2}, 4, v{vT}")
    for n in range(1, 4): e(f"v_add_u32 v{vXs+n}, {n*32*1280}, v{vXs}")
    e(f"s_lshl_b32 s{sT}, s{sWave}, 2")
    e(f"v_add_u32 v{vT}, s{sT}, v{vT+1}")
    e(f"v_mul_u32_u24 v{vT}, 3840, v{vT}")
    e(f"v_bfe_u32 v{vT+2}, v{vL}, 2, 2")
    e(f"v_xor_b32 v{vT+2}, v{vT+2}, v{vT+1}")
    e(f"v_lshl_add_u32 v{vT}, v{vT+2}, 6, v{vT}")
    e(f"v_and_b32 v{vT+2}, 3, v{vL}")
    e(f"v_lshl_add_u32 v{vWs}, v{vT+2}, 4, v{vT}")
    for n in range(1, 4): e(f"v_add_u32 v{vWs+n}, {n*16*3840}, v{vWs}")
    e(f"s_mul_i32 s{sXo}, s{sRow}, {128*1280}")
    e(f"s_lshl_b32 s{sWo}, s{sCol}, 8")
    e(f"s_lshl_b32 s{sM0}, s{sWave}, 10")
    e(f"s_and_b32 s{sT}, s{sRow}, 3")
    e(f"s_mul_i32 s{sT}, s{sT}, 5")
    e(f"s_lshr_b32 s{sT}, s{sT}, 1")
    e(f"s_lshl_b32 s{sT2}, s{sCol}, 2")
    e(f"s_add_u32 s{sT}, s{sT}, s{sT2}")
    e(f"s_mul_i32 s{sT2}, s{sT}, 0xcccd")
    e(f"s_lshr_b32 s{sT2}, s{sT2}, 19")
    e(f"s_mul_i32 s{sT2}, s{sT2}, 10")
    e(f"s_sub_u32 s{sRot}, s{sT}, s{sT2}")
    e(f"s_lshl_b32 s{sT}, s{sRot}, 7")
    e(f"s_add_u32 s{sXo}, s{sXo}, s{sT}")
    e(f"s_mul_i32 s{sT}, s{sRot}, {64*3840}")
    e(f"s_add_u32 s{sWo}, s{sWo}, s{sT}")
    e("s_waitcnt lgkmcnt(0)")
    e.srd(sX, 4, 2048 * 1280)
    e.srd(sW, 6, 640 * 3840)
    def dma():
        e(f"s_add_u32 s{sT}, s{sM0}, s{sT3}")
        for n in range(4):
            for (o, v, srd, so) in ((0, vXs, sX, sXo), (16384, vWs, sW, sWo)):
                e(f"s_add_u32 m0, s{sT}, {o + n*4096}")
                e(f"buffer_load_dwordx4 v{v+n}, s[{srd}:{srd+3}], s{so} offen lds")
        e(f"s_add_u32 s{sT3}, s{sT3}, 0x8000")
        e(f"s_and_b32 s{sT3}, s{sT3}, 0x1ffff")
        e(f"s_add_u32 s{sRot}, s{sRot}, 1")
        e(f"s_cmp_eq_u32 s{sRot}, 10")
        e(f"s_cselect_b32 s{sR1}, 1280, 0")
        e(f"s_cselect_b32 s{sR2}, {640*3840}, 0")
        e(f"s_add_u32 s{sXo}, s{sXo}, 128")
        e(f"s_add_u32 s{sWo}, s{sWo}, {64*3840}")
        e(f"s_sub_u32 s{sXo}, s{sXo}, s{sR1}")
        e(f"s_sub_u32 s{sWo}, s{sWo}, s{sR2}")
    e(f"s_mov_b32 s{sT3}, 0")
    dma()
    e(f"s_mov_b32 s{sT2}, 9")
    e.label(f"{name}_ll")
    dma()
    e("s_waitcnt vmcnt(8)")
    e("s_barrier")
    e(f"s_sub_u32 s{sT2}, s{sT2}, 1")
    e(f"s_cmp_lg_u32 s{sT2}, 0")
    e(f"s_cbranch_scc1 {name}_ll")
    e.srd(sWS, 36, WS_USED)
    e.srd(sDbg, 54, 256)
    e(f"s_lshl_b32 s{sT}, s{sRow}, 4")
    e(f"v_mov_b32 v{vT+2}, 0")
    e(f"s_mov_b32 s{sR1}, 0x40000")
    e(f"buffer_load_dword v{vT+3}, v{vT+2}, s[{sDbg}:{sDbg+3}], s{sT} offen sc1")
    e("s_waitcnt vmcnt(1)")
    e("s_barrier")
    e(f"s_branch {name}_chk")
    e.label(f"{name}_poll")
    e(f"buffer_load_dword v{vT+3}, v{vT+2}, s[{sDbg}:{sDbg+3}], s{sT} offen sc1")
    e.label(f"{name}_chk")
    e("s_waitcnt vmcnt(0)")
    e(f"v_readfirstlane_b32 s{sT2}, v{vT+3}")
    e(f"s_cmp_eq_u32 s{sT2}, 1")
    e(f"s_cbranch_scc1 {name}_got")
    e("s_sleep 2")
    e(f"s_sub_u32 s{sR1}, s{sR1}, 1")
    e(f"s_cmp_lg_u32 s{sR1}, 0")
    e(f"s_cbranch_scc1 {name}_poll")
    e.label(f"{name}_got")
    e(f"s_lshl_b32 s{sT}, s{sRow}, 10")
    e(f"s_lshl_b32 s{sT2}, s{sWave}, 8")
    e(f"s_add_u32 s{sT}, s{sT}, s{sT2}")
    e(f"s_add_u32 s{sT}, s{sT}, {RS_OFF}")
    e(f"v_lshlrev_b32 v{vT+2}, 3, v{vR}")
    e(f"buffer_load_dwordx2 {vr(vT+4,2)}, v{vT+2}, s[{sWS}:{sWS+3}], s{sT} offen sc1")
    e("s_barrier")
    e(f"s_lshl_b32 s{sT}, s{sWave}, 7")
    e(f"s_add_u32 s{sT}, s{sT}, {ST_M}")
    e(f"v_lshl_add_u32 v{vT}, v{vR}, 2, s{sT}")
    e("s_waitcnt vmcnt(0)")
    e(f"ds_write_b32 v{vT}, v{vT+4}")
    e(f"ds_write_b32 v{vT}, v{vT+5} offset:512")
    e("s_waitcnt lgkmcnt(0)")
    e("s_barrier")
    e("s_endpgm")

    e.label(f"{name}_side")
    e("s_setprio 3")
    HX = 40; F = HX + 10
    e(f"s_sub_u32 s{sWave}, s{sWave}, 8")
    e(f"s_lshl_b32 s{sT}, s2, 3")
    e(f"s_lshl_b32 s{sT2}, s{sWave}, 1")
    e(f"s_add_u32 s{sT}, s{sT}, s{sT2}")
    e(f"s_mul_i32 s{sT}, s{sT}, 1280")
    e(f"v_mul_u32_u24 v{vT}, 1280, v{vH}")
    e(f"v_lshl_add_u32 v{vT+1}, v{vR}, 4, v{vT}")
    e(f"v_lshl_add_u32 v{vT+2}, v{vR}, 3, v{vT}")
    e("s_waitcnt lgkmcnt(0)")
    e.srd(sX, 4, 2048 * 1280)
    e.srd(sWS, 36, WS_USED)
    e(f"buffer_load_dwordx4 {vr(HX,4)}, v{vT+1}, s[{sX}:{sX+3}], s{sT} offen")
    e(f"buffer_load_dwordx4 {vr(HX+4,4)}, v{vT+1}, s[{sX}:{sX+3}], s{sT} offen offset:512")
    e(f"buffer_load_dwordx2 {vr(HX+8,2)}, v{vT+2}, s[{sX}:{sX+3}], s{sT} offen offset:1024")
    e(f"s_lshl_b32 s{sT}, s{sWave}, 1")
    e(f"v_add_u32 v4, s{sT}, v{vH}")
    e(f"v_mul_u32_u24 v4, 1344, v4")
    e(f"v_add_u32 v4, {HB}, v4")
    e(f"v_lshl_add_u32 v5, v{vR}, 3, v4")
    e(f"v_lshl_add_u32 v4, v{vR}, 4, v4")
    e(f"v_bfe_u32 v6, v{vL}, 2, 2")
    e(f"v_mul_u32_u24 v6, 1344, v6")
    e(f"v_lshrrev_b32 v7, 4, v{vL}")
    e(f"v_lshl_add_u32 v6, v7, 5, v6")
    e(f"v_and_b32 v7, 3, v{vL}")
    e(f"v_lshl_add_u32 v6, v7, 3, v6")
    e(f"v_add_u32 v6, {HB}, v6")
    e(f"v_lshlrev_b32 v8, 4, v{vL}")
    e(f"s_lshl_b32 s{sM0}, s{sWave}, 10")
    e(f"s_add_u32 s{sM0}, s{sM0}, 16384")
    RX, RS, RU = 84, 100, 108
    for i in range(8): e(f"v_mov_b32 v{RS+i}, 0")
    e(f"s_mov_b32 s{sR1}, 2")
    e("s_waitcnt vmcnt(0)")
    e.label(f"{name}_ln")
    e(f"v_mov_b32 v{vT}, 0"); e(f"v_mov_b32 v{vT+2}, 0")
    for i in range(10):
        e(f"v_dot2_f32_bf16 v{vT}, v{HX+i}, s{sOnes}, v{vT}")
        e(f"v_dot2_f32_bf16 v{vT+2}, v{HX+i}, v{HX+i}, v{vT+2}")
    a, b = Em(), Em()
    red32(a, vT, vT + 1); red32(b, vT + 2, vT + 3)
    un = []
    for i in range(10):
        un.append(f"v_lshlrev_b32 v{F+2*i}, 16, v{HX+i}")
        un.append(f"v_and_b32 v{F+2*i+1}, 0xffff0000, v{HX+i}")
    for k in range(7):
        for x in un[3*k:3*k+3]: e(x)
        e(a.l[k]); e(b.l[k])
    e(f"v_mul_f32 v{vT}, {fhex(1/640)}, v{vT}")
    e(f"v_mul_f32 v{vT+2}, {fhex(1/640)}, v{vT+2}")
    e(f"v_fma_f32 v{vT+2}, -v{vT}, v{vT}, v{vT+2}")
    e(f"v_max_f32 v{vT+2}, 0, v{vT+2}")
    e(f"v_add_f32 v{vT+2}, {fhex(EPS)}, v{vT+2}")
    e(f"v_rsq_f32 v{vT+2}, v{vT+2}")
    for i in range(10):
        e(f"v_pk_add_f32 {vr(F+2*i,2)}, {vr(F+2*i,2)}, {vr(vT,2)} op_sel_hi:[1,0] neg_lo:[0,1] neg_hi:[0,1]")
    for i in range(10):
        e(f"v_pk_mul_f32 {vr(F+2*i,2)}, {vr(F+2*i,2)}, {vr(vT+2,2)} op_sel_hi:[1,0]")
    for i in range(10):
        e(f"v_cvt_pk_bf16_f32 v{HX+i}, v{F+2*i}, v{F+2*i+1}")
    e(f"s_sub_u32 s{sR1}, s{sR1}, 1")
    e(f"s_cmp_lg_u32 s{sR1}, 0")
    e(f"s_cbranch_scc1 {name}_ln")
    e(f"ds_write_b128 v4, {vr(HX,4)}")
    e(f"ds_write_b128 v4, {vr(HX+4,4)} offset:512")
    e(f"ds_write_b64 v5, {vr(HX+8,2)} offset:1024")
    e("s_waitcnt lgkmcnt(0)")
    e(f"s_setprio {cfg.get('k1_sprio', 0)}")
    e("s_barrier")
    HT = 72
    for j in range(3):
        e(f"s_add_u32 s{sT}, s{sWave}, {4*j}")
        e(f"s_min_u32 s{sT}, s{sT}, 9")
        e(f"s_lshl_b32 s{sT2}, s{sT}, 7")
        e(f"v_add_u32 v{vT+j}, s{sT2}, v6")
        e(f"ds_read_b64_tr_b16 {vr(HT+4*j,2)}, v{vT+j}")
        e(f"ds_read_b64_tr_b16 {vr(HT+4*j+2,2)}, v{vT+j} offset:{4*1344}")
    e(f"s_cmp_eq_u32 s{sCol}, 15")
    e(f"s_cbranch_scc1 {name}_hst")
    e(f"s_mov_b32 s{sT3}, 0")
    e(f"s_mov_b32 s{sR1}, 10")
    e.label(f"{name}_cs")
    e(f"s_add_u32 s{sT}, s{sM0}, s{sT3}")
    e(f"v_add_u32 v9, s{sT}, v8")
    for n in range(4): e(f"ds_read_b128 {vr(RX+4*n,4)}, v9 offset:{n*4096}")
    e(f"s_add_u32 s{sT3}, s{sT3}, 0x8000")
    e(f"s_and_b32 s{sT3}, s{sT3}, 0x1ffff")
    for n in range(4):
        e(f"s_waitcnt lgkmcnt({3-n})")
        for i in range(4):
            e(f"v_lshlrev_b32 v{RU+2*i}, 16, v{RX+4*n+i}")
            e(f"v_and_b32 v{RU+2*i+1}, 0xffff0000, v{RX+4*n+i}")
        for i in range(8): e(f"v_add_f32 v{RS+i}, v{RS+i}, v{RU+i}")
    e(f"s_sub_u32 s{sR1}, s{sR1}, 1")
    e(f"s_cmp_eq_u32 s{sR1}, 0")
    e(f"s_cbranch_scc1 {name}_cse")
    e("s_barrier")
    e(f"s_branch {name}_cs")
    e.label(f"{name}_cse")
    e(f"v_bfe_u32 v{vT}, v{vL}, 2, 2")
    e(f"v_lshrrev_b32 v{vT+1}, 4, v{vL}")
    e(f"v_xor_b32 v{vT}, v{vT}, v{vT+1}")
    e(f"v_lshlrev_b32 v{vT}, 7, v{vT}")
    e(f"v_and_b32 v{vT+2}, 3, v{vL}")
    e(f"v_lshl_add_u32 v{vT}, v{vT+2}, 5, v{vT}")
    e(f"s_lshl_b32 s{sT}, s{sWave}, 11")
    e(f"s_add_u32 s{sT}, s{sT}, {HB}")
    e(f"v_lshl_add_u32 v{vT}, v{vT+1}, 9, v{vT}")
    e(f"v_add_u32 v{vT}, s{sT}, v{vT}")
    e(f"ds_write_b128 v{vT}, {vr(RS,4)}")
    e(f"ds_write_b128 v{vT}, {vr(RS+4,4)} offset:16")
    e(f"v_lshlrev_b32 v{vT+1}, 12, v{vH}")
    e(f"v_lshl_add_u32 v{vT+1}, v{vR}, 2, v{vT+1}")
    e(f"s_lshl_b32 s{sT}, s{sWave}, 7")
    e(f"s_add_u32 s{sT2}, s{sT}, {HB}")
    e(f"v_add_u32 v{vT+1}, s{sT2}, v{vT+1}")
    e(f"s_add_u32 s{sT2}, s{sT}, {ST_C}")
    e(f"v_lshl_add_u32 v{vT+2}, v{vR}, 2, s{sT2}")
    e("s_waitcnt lgkmcnt(0)")
    e("s_barrier")
    for i in range(8): e(f"ds_read_b32 v{RU+i}, v{vT+1} offset:{512*i}")
    e("s_waitcnt lgkmcnt(0)")
    for i in range(4): e(f"v_add_f32 v{RU+i}, v{RU+i}, v{RU+4+i}")
    e(f"v_add_f32 v{RU}, v{RU}, v{RU+1}"); e(f"v_add_f32 v{RU+2}, v{RU+2}, v{RU+3}")
    e(f"v_add_f32 v{RU}, v{RU}, v{RU+2}")
    xhalf(e, RU, RU + 1)
    e(f"ds_write_b32 v{vT+2}, v{RU}")
    e("s_waitcnt lgkmcnt(0)")
    e("s_barrier")
    e.label(f"{name}_hst")
    e(f"s_mul_i32 s{sT3}, s2, 10240")
    e(f"s_add_u32 s{sT3}, s{sT3}, {HT_OFF}")
    e("s_waitcnt lgkmcnt(0)")
    for j in range(3):
        e(f"s_add_u32 s{sT}, s{sWave}, {4*j}")
        e(f"s_min_u32 s{sT}, s{sT}, 9")
        e(f"s_lshl_b32 s{sT2}, s{sT}, 10")
        e(f"s_add_u32 s{sT2}, s{sT2}, s{sT3}")
        e(f"buffer_store_dwordx4 {vr(HT+4*j,4)}, v8, s[{sWS}:{sWS+3}], s{sT2} offen sc1")
    e("s_endpgm")

    e.label(f"{name}_idle")
    e("s_load_dwordx2 s[42:43], s[0:1], 16")
    e(f"v_lshrrev_b32 v{vT}, 2, v{vL}")
    e(f"v_mul_u32_u24 v{vT+1}, 1280, v{vT}")
    e(f"v_and_b32 v{vT+2}, 3, v{vL}")
    e(f"v_lshl_add_u32 v{vT+1}, v{vT+2}, 4, v{vT+1}")
    e(f"s_lshl_b32 s{sT}, s{sRow}, 3")
    e(f"s_add_u32 s{sT}, s{sT}, s{sWave}")
    e(f"s_mul_i32 s{sT2}, s{sT}, {16*1280}")
    e("s_waitcnt lgkmcnt(0)")
    e.srd(sX, 4, 2048 * 1280)
    e.srd(sWS, 36, WS_USED)
    e.srd(sDbg, 54, 256)
    for i in range(20):
        e(f"buffer_load_dwordx4 {vr(64+4*i,4)}, v{vT+1}, s[{sX}:{sX+3}], s{sT2} offen offset:{64*i}")
    e(f"v_mov_b32 v{vT+4}, 0"); e(f"v_mov_b32 v{vT+5}, 0")
    for i in range(20):
        if i % 4 == 0: e(f"s_waitcnt vmcnt({16 - i})")
        for j in range(4):
            e(f"v_dot2_f32_bf16 v{vT+4}, v{64+4*i+j}, s{sOnes}, v{vT+4}")
            e(f"v_dot2_f32_bf16 v{vT+5}, v{64+4*i+j}, v{64+4*i+j}, v{vT+5}")
    for mod in ("quad_perm:[1,0,3,2]", "quad_perm:[2,3,0,1]"):
        for r in (vT + 4, vT + 5):
            e(f"v_add_f32_dpp v{r}, v{r}, v{r} {mod} row_mask:0xf bank_mask:0xf")
    e(f"v_mul_f32 v{vT+4}, {fhex(1/640)}, v{vT+4}")
    e(f"v_mul_f32 v{vT+5}, {fhex(1/640)}, v{vT+5}")
    e(f"v_fma_f32 v{vT+5}, -v{vT+4}, v{vT+4}, v{vT+5}")
    e(f"v_max_f32 v{vT+5}, 0, v{vT+5}")
    e(f"v_add_f32 v{vT+5}, {fhex(EPS)}, v{vT+5}")
    e(f"v_rsq_f32 v{vT+5}, v{vT+5}")
    e(f"v_lshlrev_b32 v{vT}, 3, v{vT}")
    e(f"s_lshl_b32 s{sT}, s{sT}, 7")
    e(f"s_add_u32 s{sT}, s{sT}, {RS_OFF}")
    e("s_mov_b32 exec_lo, 0x11111111"); e("s_mov_b32 exec_hi, 0x11111111")
    e(f"buffer_store_dwordx2 {vr(vT+4,2)}, v{vT}, s[{sWS}:{sWS+3}], s{sT} offen sc1")
    e("s_mov_b64 exec, -1")
    e.srd(48, 42, 640 * 1280)
    e(f"v_lshlrev_b32 v{vT+6}, 4, v{vL}")
    e(f"s_mul_i32 s{sT3}, s{sRow}, {40*1280}")
    e(f"s_lshl_b32 s{sM0}, s{sWave}, 10")
    e(f"s_add_u32 s{sT3}, s{sT3}, s{sM0}")
    e("s_waitcnt vmcnt(0)")
    e("s_barrier")
    e(f"s_lshl_b32 s{sT}, s{sRow}, 4")
    e(f"s_cmp_eq_u32 s{sWave}, 0")
    e(f"s_cselect_b32 s{sT}, s{sT}, {OOB}")
    e(f"v_mov_b32 v{vT}, 0")
    e(f"v_mov_b32 v{vT+1}, 1")
    e("s_mov_b64 exec, 1")
    e(f"buffer_store_dword v{vT+1}, v{vT}, s[{sDbg}:{sDbg+3}], s{sT} offen sc1")
    e("s_mov_b64 exec, -1")
    for n in range(7):
        e(f"s_add_u32 m0, s{sM0}, {n*8192}")
        e(f"buffer_load_dwordx4 v{vT+6}, s[48:51], s{sT3} offen lds")
        e(f"s_add_u32 s{sT3}, s{sT3}, 8192")
    e(f"s_add_u32 s{sT}, s{sRow}, s{sWave}")
    e(f"s_cmp_eq_u32 s{sT}, 0")
    e(f"s_mov_b32 s{sT}, {OOB}")
    e(f"s_cselect_b32 s{sT}, {CNT_OFF}, s{sT}")
    e(f"v_lshlrev_b32 v{vT+1}, 7, v{vL}")
    e(f"buffer_store_dword v{vT}, v{vT+1}, s[{sWS}:{sWS+3}], s{sT} offen")
    e(f"v_bfe_u32 v{vT}, v{vL}, 2, 2")
    e(f"v_mul_u32_u24 v{vT}, 1280, v{vT}")
    e(f"v_lshrrev_b32 v{vT+1}, 4, v{vL}")
    e(f"v_lshl_add_u32 v{vT}, v{vT+1}, 5, v{vT}")
    e(f"v_and_b32 v{vT+1}, 3, v{vL}")
    e(f"v_lshl_add_u32 v{vT}, v{vT+1}, 3, v{vT}")
    e(f"s_lshr_b32 s{sT}, s{sRow}, 2")
    e(f"s_mul_i32 s{sT}, s{sT}, 20")
    e(f"s_and_b32 s{sT2}, s{sRow}, 3")
    e(f"s_add_u32 s{sR1}, s{sT}, s{sT2}")
    e(f"s_add_u32 s{sR1}, s{sR1}, 16")
    e(f"s_mul_i32 s{sR1}, s{sR1}, 10240")
    e(f"s_lshl_b32 s{sT2}, s{sT2}, 2")
    e(f"s_add_u32 s{sR2}, s{sT}, s{sT2}")
    e(f"s_mul_i32 s{sR2}, s{sR2}, 10240")
    e("s_waitcnt vmcnt(0)")
    e("s_barrier")
    for j in range(2):
        e(f"s_add_u32 s{sT}, s{sWave}, {8*j}")
        e(f"s_min_u32 s{sT}, s{sT}, 9")
        e(f"s_lshl_b32 s{sT2}, s{sT}, 7")
        e(f"v_add_u32 v{vT+1}, s{sT2}, v{vT}")
        for o in range(5):
            r0, r1 = (20*(o >> 1) + 4*(o & 1), 20*(o >> 1) + 4*(o & 1) + 8) if o < 4 else (16, 36)
            e(f"ds_read_b64_tr_b16 {vr(64+20*j+4*o,2)}, v{vT+1} offset:{r0*1280}")
            e(f"ds_read_b64_tr_b16 {vr(64+20*j+4*o+2,2)}, v{vT+1} offset:{r1*1280}")
        e(f"s_lshl_b32 s{sT}, s{sT}, 10")
        e(f"s_add_u32 s{sT}, s{sT}, {WOT_OFF}")
        e("s_waitcnt lgkmcnt(0)")
        for o in range(5):
            if o < 4: e(f"s_add_u32 s{sT2}, s{sR2}, {o*10240}")
            else: e(f"s_mov_b32 s{sT2}, s{sR1}")
            e(f"s_add_u32 s{sT2}, s{sT2}, s{sT}")
            e(f"buffer_store_dwordx4 {vr(64+20*j+4*o,4)}, v{vT+6}, s[{sWS}:{sWS+3}], s{sT2} offen sc1")
        if j == 0:
            e(f"s_cmp_ge_u32 s{sWave}, 2")
            e(f"s_cbranch_scc1 {name}_end")
    e("s_endpgm")

    e.label(f"{name}_comp")
    if cfg.get("pf_code", 1):
        e("s_cmp_ge_u32 s2, 16")
        e(f"s_cbranch_scc1 {name}_pcx")
        e(f"s_lshr_b32 s{sT}, s2, 3")
        e(f"s_lshl_b32 s{sT}, s{sT}, 8")
        e(f"v_add_u32 v{vT}, s{sT}, v0")
        touch_code(e, "attn_kernel", "code_end", vT, 160, 40, name + "_pc1")
        e.label(f"{name}_pcx")
    e(f"v_bfe_u32 v{vT}, v{vR}, 1, 3")
    e(f"v_xor_b32 v{vT}, v{vT}, v{vH}")
    e(f"v_lshlrev_b32 v{vT}, 4, v{vT}")
    e(f"v_lshl_add_u32 v{vT}, v{vR}, 7, v{vT}")
    e(f"s_lshl_b32 s{sT}, s{sWr}, 13")
    e(f"v_add_u32 v{vT}, s{sT}, v{vT}")
    for kk in range(4):
        e(f"v_xor_b32 v{vXa + kk}, {kk*32}, v{vT}")
        e(f"v_add_u32 v{vXa + 4 + kk}, 0x10000, v{vXa + kk}")
    e(f"v_bfe_u32 v{vT}, v{vL}, 2, 2")
    e(f"v_lshl_add_u32 v{vT+1}, v{vH}, 3, v{vT}")
    e(f"v_lshlrev_b32 v{vT+1}, 8, v{vT+1}")
    e(f"s_lshl_b32 s{sT}, s{sWc}, 1")
    e(f"v_xor_b32 v{vT}, s{sT}, v{vT}")
    e(f"v_lshl_add_u32 v{vT+1}, v{vT}, 6, v{vT+1}")
    e(f"v_bfe_u32 v{vT}, v{vL}, 4, 1")
    e(f"v_lshl_add_u32 v{vT+1}, v{vT}, 5, v{vT+1}")
    e(f"v_and_b32 v{vT}, 3, v{vL}")
    e(f"v_lshl_add_u32 v{vT+1}, v{vT}, 3, v{vT+1}")
    e(f"v_add_u32 v{vWa}, 16384, v{vT+1}")
    e(f"v_xor_b32 v{vWa+1}, 64, v{vWa}")
    e(f"v_add_u32 v{vWa+2}, 0x10000, v{vWa}")
    e(f"v_add_u32 v{vWa+3}, 0x10000, v{vWa+1}")
    e("s_waitcnt lgkmcnt(0)")
    e.srd(sWS, 36, WS_USED)

    def mainloop(isV):
        NB = 3
        def reads(j):
            if j >= 40: return [[], [], []]
            stage, kk, buf = j // 4, j % 4, j % NB
            slot = (stage % 4) * 32768
            hi = slot >= 65536
            off = slot - (65536 if hi else 0)
            X = [f"ds_read_b128 {vr(FR + buf*16 + tt*4, 4)}, v{vXa + (4 if hi else 0) + kk} offset:{off + tt*4096}" for tt in range(2)]
            W = [[f"ds_read_b64_tr_b16 {vr(FR + buf*16 + 8 + ct*4 + 2*s, 2)}, v{vWa + (2 if hi else 0) + ct} offset:{off + kk*4096 + s*1024}" for s in range(2)] for ct in range(2)]
            return [[X[0], X[1]], W[0], W[1]]
        e.stamp(1); e.stamp(2); e.stamp(3)
        e("s_barrier")
        e.stamp(4)
        for j in range(2):
            for g in reads(j):
                for x in g: e(x)
        for j in range(40):
            buf = j % NB
            def mf(tt, ct):
                acc = ACC + (tt*2 + ct) * 16
                x = vr(FR + buf*16 + tt*4, 4); w = vr(FR + buf*16 + 8 + ct*4, 4)
                A, B = (x, w) if isV else (w, x)
                e(f"v_mfma_f32_32x32x16_bf16 {vr(acc,16)}, {A}, {B}, {vr(acc,16) if j else 0}")
            nxt = reads(j + 2)
            e(f"s_waitcnt lgkmcnt({6 if j < 39 else 0})")
            mf(0, 0)
            if j % 4 == 2: e("s_barrier")
            for x in nxt[0]: e(x)
            mf(0, 1)
            for x in nxt[1]: e(x)
            mf(1, 0)
            for x in nxt[2]: e(x)
            mf(1, 1)
            if j == 19: e.stamp(5)
        e.stamp(6)
    def tokbase(tt, stride, base):
        e(f"s_lshl_b32 s{sT}, s{sRow}, 2")
        e(f"s_lshl_b32 s{sT2}, s{sWr}, 1")
        e(f"s_add_u32 s{sT}, s{sT}, s{sT2}")
        if tt: e(f"s_add_u32 s{sT}, s{sT}, 1")
        e(f"s_mul_i32 s{sT}, s{sT}, {stride}")
        e(f"s_add_u32 s{sT}, s{sT}, {base}")
    e(f"s_cmp_ge_u32 s{sCol}, 10")
    e(f"s_cbranch_scc1 {name}_v")
    e(f"s_cmp_ge_u32 s{sCol}, 5")
    e(f"s_cselect_b32 s{sScale}, 1.0, {fhex(math.log2(math.e) / math.sqrt(20.0))}")
    e(f"s_movk_i32 s{sStride}, 1280")
    e(f"s_cselect_b32 s{sStride}, 2560, s{sStride}")
    e(f"s_cselect_b32 s{sBase}, {KV_OFF}, {QF_OFF}")
    e(f"s_cselect_b32 s{sT}, 5, 0")
    e(f"s_sub_u32 s{sT}, s{sCol}, s{sT}")
    e(f"s_lshl_b32 s{sT}, s{sT}, 5")
    e(f"s_lshl_b32 s{sT2}, s{sWc}, 4")
    e(f"s_add_u32 s{sT}, s{sT}, s{sT2}")
    e(f"s_lshl_b32 s{sT3}, s{sStride}, 6")
    e(f"s_sub_u32 s{sT3}, s{sT3}, 1280")
    e(f"v_add_u32 v{vT}, s{sT}, v{vH}")
    e(f"v_lshlrev_b32 v{vT+2}, 3, v{vR}")
    for q in range(8):
        if q: e(f"v_add_u32 v{vT}, 2, v{vT}")
        e(f"v_mul_u32_u24 v{vT+1}, 0xcccd, v{vT}")
        e(f"v_lshrrev_b32 v{vT+1}, 18, v{vT+1}")
        e(f"v_mul_lo_u32 v{vT+1}, v{vT+1}, s{sT3}")
        e(f"v_lshl_add_u32 v{SO+q}, v{vT}, 8, v{vT+2}")
        e(f"v_add_u32 v{SO+q}, v{SO+q}, v{vT+1}")
    e(f"s_lshl_b32 s{sT}, s{sWr}, 8")
    e(f"s_add_u32 s{sT}, s{sT}, {ST_M}")
    e(f"v_lshl_add_u32 v12, v{vR}, 2, s{sT}")
    e(f"s_lshl_b32 s{sT}, s{sWc}, 8")
    e(f"s_add_u32 s{sT}, s{sT}, {ST_C}")
    e(f"v_lshl_add_u32 v13, v{vH}, 4, s{sT}")
    mainloop(False)
    CS = FR
    e("s_barrier")
    e(f"ds_read_b32 v{vT+4}, v12"); e(f"ds_read_b32 v{vT+5}, v12 offset:512")
    e(f"ds_read_b32 v{vT+6}, v12 offset:128"); e(f"ds_read_b32 v{vT+7}, v12 offset:640")
    for q in range(8): e(f"ds_read_b128 {vr(CS + q*4, 4)}, v13 offset:{q*32}")
    e("s_waitcnt lgkmcnt(4)")
    e(f"v_mul_f32 v{vT+5}, s{sScale}, v{vT+5}")
    e(f"v_mul_f32 v{vT+7}, s{sScale}, v{vT+7}")
    for ct in range(2):
        if ct: e("s_waitcnt lgkmcnt(0)")
        for tt in range(2):
            tokbase(tt, f"s{sStride}", f"s{sBase}")
            acc = ACC + (tt*2 + ct) * 16
            for i in range(0, 16, 2):
                e(f"v_pk_fma_f32 {vr(acc+i,2)}, {vr(vT+4+2*tt,2)}, {vr(CS+ct*16+i,2)}, {vr(acc+i,2)} op_sel_hi:[0,1,1] neg_lo:[1,0,0] neg_hi:[1,0,0]")
            for i in range(0, 16, 2):
                e(f"v_pk_mul_f32 {vr(acc+i,2)}, {vr(acc+i,2)}, {vr(vT+4+2*tt,2)} op_sel:[0,1] op_sel_hi:[1,1]")
            for q in range(4):
                e(f"v_cvt_pk_bf16_f32 v{acc+4*q}, v{acc+4*q}, v{acc+4*q+1}")
                e(f"v_cvt_pk_bf16_f32 v{acc+4*q+1}, v{acc+4*q+2}, v{acc+4*q+3}")
                e(f"buffer_store_dwordx2 {vr(acc+4*q,2)}, v{SO+ct*4+q}, s[{sWS}:{sWS+3}], s{sT} offen {ST}")
    e.stamp(7)
    e.stamp_out(8, 0, sWS, sWave)
    e("s_endpgm")
    e.label(f"{name}_v")
    e(f"s_sub_u32 s{sT}, s{sCol}, 10")
    e(f"s_lshl_b32 s{sT}, s{sT}, 7")
    e(f"s_lshl_b32 s{sT2}, s{sWc}, 6")
    e(f"s_add_u32 s{sT}, s{sT}, s{sT2}")
    e(f"s_mov_b32 s{sT3}, {64*2560 - 320}")
    e(f"v_add_u32 v{vT}, s{sT}, v{vR}")
    e(f"v_mul_u32_u24 v{vT+2}, 320, v{vH}")
    for ct in range(2):
        if ct: e(f"v_add_u32 v{vT}, 32, v{vT}")
        e(f"v_mul_u32_u24 v{vT+1}, 0xcccd, v{vT}")
        e(f"v_lshrrev_b32 v{vT+1}, 20, v{vT+1}")
        e(f"v_mul_lo_u32 v{vT+1}, v{vT+1}, s{sT3}")
        e(f"v_lshl_add_u32 v{SO+ct}, v{vT}, 4, v{vT+2}")
        e(f"v_add_u32 v{SO+ct}, v{SO+ct}, v{vT+1}")
    e(f"s_lshl_b32 s{sT}, s{sWr}, 8")
    e(f"s_add_u32 s{sT}, s{sT}, {ST_M}")
    e(f"v_lshl_add_u32 v12, v{vH}, 4, s{sT}")
    e(f"s_lshl_b32 s{sT}, s{sWc}, 8")
    e(f"s_add_u32 s{sT}, s{sT}, {ST_C}")
    e(f"v_lshl_add_u32 v13, v{vR}, 2, s{sT}")
    mainloop(True)
    RM, RR = FR, FR + 32
    e("s_barrier")
    e(f"ds_read_b32 v{vT+4}, v13"); e(f"ds_read_b32 v{vT+5}, v13 offset:128")
    for tt in range(2):
        if tt: e("s_waitcnt lgkmcnt(4)")
        for q in range(4):
            e(f"ds_read_b128 {vr(RM + tt*16 + q*4, 4)}, v12 offset:{tt*128 + q*32}")
            e(f"ds_read_b128 {vr(RR + tt*16 + q*4, 4)}, v12 offset:{512 + tt*128 + q*32}")
    for tt in range(2):
        e(f"s_waitcnt lgkmcnt({8 - 8*tt})")
        tokbase(tt, 2560, KV_OFF + 1280)
        for ct in range(2):
            acc = ACC + (tt*2 + ct) * 16
            for i in range(0, 16, 2):
                e(f"v_pk_fma_f32 {vr(acc+i,2)}, {vr(RM+tt*16+i,2)}, {vr(vT+4,2)}, {vr(acc+i,2)} op_sel:[0,{ct},0] op_sel_hi:[1,{ct},1] neg_lo:[1,0,0] neg_hi:[1,0,0]")
            for i in range(0, 16, 2):
                e(f"v_pk_mul_f32 {vr(acc+i,2)}, {vr(acc+i,2)}, {vr(RR+tt*16+i,2)}")
            for p in range(2):
                for j in range(4):
                    e(f"v_cvt_pk_bf16_f32 v{acc+8*p+j}, v{acc+8*p+2*j}, v{acc+8*p+2*j+1}")
                e(f"buffer_store_dwordx4 {vr(acc+8*p,4)}, v{SO+ct}, s[{sWS}:{sWS+3}], s{sT} offen offset:{640*p} {cfg.get('v_store', ST)}")
    e.stamp(7)
    e.stamp_out(8, 0, sWS, sWave)
    e.label(f"{name}_end")
    e("s_endpgm")
    return e.l, dict(vgpr=168, grid=256, block=768, lds=K1_LDS)
```

```python
from common import *
from gemm16 import *
K2_LDS = 51200
NATT = 512
NMLP1 = 216
NMLP = 256
OOB = 0x7f000000

def gen_attn(e, name, cfg):
    ST = cfg.get("k2_store", "sc1")
    sWS = 8
    sWave, sHead, sQb, sKV, sT, sT2, sIt, sCur, sQo = 20, 21, 22, 23, 24, 25, 26, 27, 28
    sMV, sML, sMH = 30, 32, 34
    sOff, sRot, sLds, sCnt, sHb = 36, 37, 38, 39, 40
    vL, vR, vH = 1, 2, 3
    vK0, vK1, vV = 4, 5, 6
    vQ = vK1
    _ = 0
    vT = 7
    Q0 = 12
    Q1 = 28
    O = 36
    S = 100
    KV = 132
    def K0(b): return KV + 14*b
    def V0(b): return KV + 14*b + 4
    def V1(b): return KV + 14*b + 8
    def K1(b): return KV + 14*b + 12
    M = 160
    lK0, lK1, lV = 164, 165, 166
    lQ = lK1
    _ = 0
    srd = f"s[{sWS}:{sWS+3}]"
    if cfg.get("start_prio", 0):
        e("s_cmp_ge_u32 s2, 256")
        e(f"s_cbranch_scc1 {name}_lo")
        e("s_setprio 3")
        e.label(f"{name}_lo")
    e(f"v_and_b32 v{vL}, 63, v0")
    e(f"v_lshrrev_b32 v{vT}, 6, v0")
    e(f"v_and_b32 v{vR}, 31, v0")
    e(f"v_readfirstlane_b32 s{sWave}, v{vT}")
    e(f"v_lshlrev_b32 v{vK0}, 4, v{vL}")
    e(f"v_lshlrev_b32 v{vQ}, 3, v{vL}")
    e(f"s_and_b32 s{sHead}, s2, 7")
    e(f"s_lshl_b32 s{sHead}, s{sHead}, 2")
    e(f"s_bfe_u32 s{sT}, s2, 0x20003")
    e(f"s_add_u32 s{sHead}, s{sHead}, s{sT}")
    e(f"s_lshr_b32 s{sQb}, s2, 5")
    e(f"s_mov_b32 s{sMV}, 0x000fffff"); e(f"s_mov_b32 s{sMV+1}, 0x000fffff")
    e(f"s_mov_b32 s{sML}, -1"); e(f"s_mov_b32 s{sML+1}, 0")
    e(f"s_mov_b32 s{sMH}, 0"); e(f"s_mov_b32 s{sMH+1}, -1")
    e(f"s_lshl_b32 s{sT}, s{sHead}, 6")
    e(f"s_lshl_b32 s{sT2}, s{sQb}, 2")
    e(f"s_add_u32 s{sT2}, s{sT2}, s{sT}")
    e(f"s_mul_i32 s{sQo}, s{sT2}, 1280")
    e(f"s_mul_i32 s{sHb}, s{sT}, 2560")
    e(f"s_add_u32 s{sHb}, s{sHb}, {KV_OFF}")
    e(f"s_mul_i32 s{sT}, s{sWave}, {16*2560}")
    e(f"s_add_u32 s{sKV}, s{sHb}, s{sT}")
    e(f"s_mul_i32 s{sT}, s{sQb}, 2560")
    e(f"s_add_u32 s{sCur}, s{sHb}, s{sT}")
    e(f"s_mul_i32 s{sLds}, s{sWave}, 12288")
    e(f"s_mov_b32 s{sRot}, s{sQb}")
    e(f"s_mov_b32 s{sCnt}, 0")
    for t in range(4):
        e(f"v_mov_b32 v{Q1+2*t}, 0"); e(f"v_mov_b32 v{Q1+2*t+1}, 0")
    e(f"v_mov_b32 v{K1(1)}, 0x3f803f80"); e(f"v_mov_b32 v{K1(1)+1}, 0x3f80")
    e("s_waitcnt lgkmcnt(0)")
    e.srd(sWS, 4, WS_USED)
    def loadK(b, soff, tag):
        e.vm(f"buffer_load_dwordx2 {vr(K0(b),2)}, v{vQ}, {srd}, s{soff} offen", tag)
        e.vm(f"buffer_load_dwordx2 {vr(K0(b)+2,2)}, v{vQ}, {srd}, s{soff} offen offset:512", tag)
        e(f"s_mov_b64 exec, s[{sML}:{sML+1}]")
        e.vm(f"buffer_load_dwordx2 {vr(K1(b),2)}, v{vK1}, {srd}, s{soff} offen offset:1024", tag)
        e("s_mov_b64 exec, -1")
    def dma(slot, tag="d", skip=None):
        if skip:
            e(f"s_cmp_ge_u32 s{sCnt}, 16")
            e(f"s_cbranch_scc1 {skip}")
        e(f"s_mul_i32 s{sOff}, s{sRot}, 2560")
        e(f"s_add_u32 s{sOff}, s{sOff}, s{sKV}")
        e(f"s_add_u32 m0, s{sLds}, {slot*2560}")
        e(f"s_add_u32 s{sRot}, s{sRot}, 1")
        e.vm(f"buffer_load_dwordx4 v{vK0}, {srd}, s{sOff} offen lds", tag)
        e.vm(f"buffer_load_dwordx4 v{vK0}, {srd}, s{sOff} offen offset:1024 lds", tag)
        e(f"s_mov_b64 exec, s[{sML}:{sML+1}]")
        e.vm(f"buffer_load_dwordx4 v{vK0}, {srd}, s{sOff} offen offset:2048 lds", tag)
        e("s_mov_b64 exec, -1")
        e(f"s_and_b32 s{sRot}, s{sRot}, 15")
        e(f"s_add_u32 s{sCnt}, s{sCnt}, 1")
        if skip and cfg.get("pf_w2", 0) == 2:
            e(f"s_cmp_lg_u32 s{sCnt}, s53")
            e(f"s_cbranch_scc1 {skip}")
            e(f"buffer_load_dword v{M+1}, v{M}, s[48:51], s52 offen")
        if skip: e.label(skip)
    def ldsread(slot, b):
        o = slot * 2560
        e(f"ds_read2st64_b64 {vr(K0(b),4)}, v{lQ} offset0:{o//512} offset1:{o//512+1}")
        e(f"s_mov_b64 exec, s[{sML}:{sML+1}]")
        e(f"ds_read_b64 {vr(K1(b),2)}, v{lK1} offset:{o+1024}")
        e(f"s_mov_b64 exec, s[{sMV}:{sMV+1}]")
        e(f"ds_read_b128 {vr(V0(b),4)}, v{lV} offset:{o+1280}")
        e(f"ds_read_b128 {vr(V1(b),4)}, v{lV} offset:{o+1920}")
        e("s_mov_b64 exec, -1")
    def QK1(sb, t, kb): return f"v_mfma_f32_32x32x16_bf16 {vr(S+16*sb,16)}, {vr(K0(kb),4)}, {vr(Q0+4*t,4)}, 0"
    def QK2(sb, t, kb): return f"v_mfma_f32_32x32x8bf16_1k {vr(S+16*sb,16)}, {vr(K1(kb),2)}, {vr(Q1+2*t,2)}, {vr(S+16*sb,16)}"
    def PV1(sb, t, kb): return f"v_mfma_f32_32x32x16_bf16 {vr(O+16*t,16)}, {vr(V0(kb),4)}, {vr(S+16*sb,4)}, {vr(O+16*t,16)}"
    def PV2(sb, t, kb): return f"v_mfma_f32_32x32x16_bf16 {vr(O+16*t,16)}, {vr(V1(kb),4)}, {vr(S+16*sb+8,4)}, {vr(O+16*t,16)}"
    def tilemax(s, dst, first):
        if first:
            e(f"v_max3_f32 v{dst}, v{s}, v{s+1}, v{s+2}"); rest = list(range(3, 16))
        else:
            rest = list(range(16))
        while len(rest) >= 2:
            e(f"v_max3_f32 v{dst}, v{dst}, v{s+rest[0]}, v{s+rest[1]}"); rest = rest[2:]
        if rest: e(f"v_max_f32 v{dst}, v{dst}, v{s+rest[0]}")
    def setslots(t, m):
        e(f"v_sub_f32 v{vT}, 0, v{m}")
        e(f"v_cvt_pk_bf16_f32 v{vT+1}, v{vT}, v{vT}")
        e(f"v_and_b32 v{vT+2}, 0xffff0000, v{vT+1}")
        e(f"v_sub_f32 v{vT}, v{vT}, v{vT+2}")
        e(f"v_cvt_pk_bf16_f32 v{Q1+2*t}, v{vT+2}, v{vT}")
        e(f"v_and_b32 v{vT+2}, 0xffff0000, v{Q1+2*t}")
        e(f"v_sub_f32 v{vT}, v{vT}, v{vT+2}")
        e(f"v_cvt_pk_bf16_f32 v{Q1+2*t+1}, v{vT}, 0")
    loadK(1, sCur, "q")
    for t in range(4):
        e(f"s_xor_b32 s{44+t}, s{sWave}, {t}")
        e(f"s_mul_i32 s{44+t}, s{44+t}, 1280")
        e(f"s_add_u32 s{44+t}, s{44+t}, s{sQo}")
        e.vm(f"buffer_load_dwordx2 {vr(Q0+4*t,2)}, v{vQ}, {srd}, s{44+t} offen", "q")
        e.vm(f"buffer_load_dwordx2 {vr(Q0+4*t+2,2)}, v{vQ}, {srd}, s{44+t} offen offset:512", "q")
    e(f"s_mov_b64 exec, s[{sML}:{sML+1}]")
    for t in range(4):
        e.vm(f"buffer_load_dwordx2 {vr(Q1+2*t,2)}, v{vK1}, {srd}, s{44+t} offen offset:1024", "q")
    e("s_mov_b64 exec, -1")
    for s in range(4): dma(s, f"d{s}")
    e(f"v_lshrrev_b32 v{vH}, 5, v{vL}")
    e(f"v_mul_u32_u24 v{vV}, 320, v{vH}")
    e(f"v_lshl_add_u32 v{vV}, v{vR}, 4, v{vV}")
    e(f"v_add_u32 v{lK0}, s{sLds}, v{vK0}")
    e(f"v_add_u32 v{lK1}, s{sLds}, v{vK1}")
    e(f"v_add_u32 v{lV}, s{sLds}, v{vV}")
    e(f"v_cmp_eq_u32 vcc, 20, v{vR}")
    e(f"v_mov_b32 v{vT}, 0x3f803f80")
    e(f"v_mov_b32 v{K1(0)}, 0x3f803f80"); e(f"v_mov_b32 v{K1(0)+1}, 0x3f80")
    for b in range(2):
        for i in range(8):
            e(f"v_cndmask_b32 v{V0(b)+i}, 0, v{vT}, vcc")
    for i in range(4):
        e(f"v_mov_b32 v{S+16+8+i}, 0")
    e.stamp(1)
    e.vmwait("q")
    e.stamp(2)
    for t in range(4):
        e(f"v_mfma_f32_32x32x16_bf16 {vr(O+16*t,16)}, {vr(K0(1),4)}, {vr(Q0+4*t,4)}, 0")
    for t in range(4):
        e(f"v_mfma_f32_32x32x8bf16_1k {vr(O+16*t,16)}, {vr(K1(1),2)}, {vr(Q1+2*t,2)}, {vr(O+16*t,16)}")
    e.vmwait("d0")
    ldsread(0, 0)
    for t in range(4):
        tilemax(O + 16*t, M + t, True)
    for t in range(4):
        e(f"v_mov_b32 v{S+t}, v{M+t}")
    for t in range(4):
        e(f"v_permlane32_swap_b32 v{M+t}, v{S+t}")
    e(f"s_mov_b64 exec, s[{sMH}:{sMH+1}]")
    for t in range(4):
        e(f"v_max_f32 v{M+t}, v{M+t}, v{S+t}")
        setslots(t, M + t)
    e("s_mov_b64 exec, -1")
    e("s_waitcnt lgkmcnt(0)")
    e(QK1(0, 0, 0)); e(QK2(0, 0, 0))
    dma(0, "d4")
    for t in range(4):
        e(f"v_mfma_f32_32x32x8bf16_1k {vr(O+16*t,16)}, {vr(S+24,2)}, {vr(S+24,2)}, 0")
    if cfg.get("pf_w2", 0) == 2:
        e.srd(48, 6, 1728 * 4096)
        e(f"s_lshr_b32 s{sT}, s2, 3")
        e(f"s_lshl_b32 s{sT}, s{sT}, 2")
        e(f"s_add_u32 s{sT}, s{sT}, s{sWave}")
        e(f"s_mul_i32 s52, s{sT}, {7*4096}")
        e(f"s_bfe_u32 s{sT}, s2, 0x20001")
        e(f"s_lshl_b32 s{sT}, s{sT}, 10")
        e(f"s_add_u32 s52, s52, s{sT}")
        e(f"v_lshrrev_b32 v{M}, 3, v{vL}")
        e(f"v_min_u32 v{M}, 6, v{M}")
        e(f"v_lshlrev_b32 v{M}, 12, v{M}")
        e(f"v_and_b32 v{M+1}, 7, v{vL}")
        e(f"v_lshl_add_u32 v{M}, v{M+1}, 7, v{M}")
        e(f"s_lshr_b32 s53, s2, 8")
        e(f"s_lshl_b32 s53, s53, 2")
        e(f"s_add_u32 s53, s53, s{sWave}")
        e(f"s_add_u32 s53, s53, {cfg.get('pf_w2_at', 8)}")
    e.stamp(3)
    e(f"s_mov_b32 s{sIt}, 4")
    AP = cfg.get("attn_prio", [3, 2, 1, 0])
    e(f"s_setprio {AP[0]}")
    e(".p2align 6")
    e.label(f"{name}_loop")
    for kt in range(4):
        kb = kt % 2
        for q in range(4):
            sb = q % 2; s = S + 16*sb
            ex = lambda i: f"v_exp_f32 v{s+i}, v{s+i}"
            cv = lambda i: f"v_cvt_pk_bf16_f32 v{s+(i//4)*8+i%4}, v{s+2*i}, v{s+2*i+1}"
            pq, pkb = (q - 1, kb) if q > 0 else (3, 1 - kb)
            nq, nkb = (q + 1, kb) if q < 3 else (0, 1 - kb)
            e(ex(0)); e(ex(1)); e(PV2(1 - sb, pq, pkb))
            if q == 1 and not cfg.get("attn_nolds"):
                if kt < 3:
                    e(f"s_cmp_eq_u32 s{sIt}, 1")
                    e(f"s_cbranch_scc0 {name}_w{kt}")
                    e(f"s_waitcnt vmcnt({6 - 3*kt})")
                    e.label(f"{name}_w{kt}")
                e("s_waitcnt vmcnt(9)")
                ldsread((kt + 1) % 4, 1 - kb)
            e(ex(2)); e(ex(3)); e(cv(0)); e(cv(1)); e(ex(4))
            if q == 3:
                e("s_waitcnt lgkmcnt(0)")
            e(QK1(1 - sb, nq, nkb))
            if q == 3 and not cfg.get("attn_nodma"):
                dma((kt + 1) % 4, skip=f"{name}_sk{kt}")
            e(ex(5)); e(ex(6)); e(ex(7)); e(cv(2)); e(cv(3)); e(ex(8))
            e(QK2(1 - sb, nq, nkb))
            e(ex(9)); e(ex(10)); e(ex(11)); e(cv(4)); e(cv(5)); e(ex(12)); e(ex(13))
            e(PV1(sb, q, kb))
            if kt == 3 and q == 3:
                if True:
                    e(f"s_cmp_eq_u32 s{sIt}, 4")
                    e(f"s_setprio {AP[1]}")
                    e(f"s_cbranch_scc1 {name}_pr")
                    e(f"s_cmp_eq_u32 s{sIt}, 3")
                    e(f"s_setprio {AP[2]}")
                    e(f"s_cbranch_scc1 {name}_pr")
                    e(f"s_setprio {AP[3]}")
                    e.label(f"{name}_pr")
                e(f"s_sub_u32 s{sIt}, s{sIt}, 1")
                e(f"s_cmp_lg_u32 s{sIt}, 0")
            e(ex(14)); e(ex(15)); e(cv(6)); e(cv(7))
    e(f"s_cbranch_scc1 {name}_loop")
    e(PV2(1, 3, 1))
    e("s_setprio 3")
    e.stamp(4)
    for t in range(1, 4):
        for j in range(3):
            e(f"ds_write_b128 v{lK0}, {vr(O+16*t+4*j,4)} offset:{(t-1)*3072 + j*1024}")
    for t in range(1, 4):
        e(f"s_xor_b32 s{sT}, s{sWave}, {t}")
        e(f"s_mul_i32 s{sT}, s{sT}, 12288")
        e(f"v_add_u32 v{M+t}, s{sT}, v{vK0}")
    e(f"s_lshl_b32 s{sIt}, s{sQb}, 2")
    e(f"s_add_u32 s{sIt}, s{sIt}, s{sWave}")
    e(f"s_lshl_b32 s{sIt}, s{sIt}, 8")
    e(f"s_lshl_b32 s{sRot}, s{sHead}, 14")
    e(f"s_add_u32 s{sRot}, s{sRot}, s{sIt}")
    e(f"s_add_u32 s{sRot}, s{sRot}, {OR_OFF}")
    e(f"s_lshl_b32 s{sCur}, s{sHead}, 16")
    e(f"s_lshl_b32 s{sIt}, s{sIt}, 1")
    e(f"s_add_u32 s{sCur}, s{sCur}, s{sIt}")
    e(f"s_add_u32 s{sCur}, s{sCur}, {O_OFF}")
    e("s_waitcnt lgkmcnt(0)")
    e("s_barrier")
    for t in range(1, 4):
        for j in (2, 0, 1):
            e(f"ds_read_b128 {vr(O+16*t+4*j,4)}, v{M+t} offset:{(t-1)*3072 + j*1024}")
    for t in range(1, 4):
        e(f"s_waitcnt lgkmcnt({9 - 3*t})")
        for i in range(12):
            e(f"v_add_f32 v{O+i}, v{O+i}, v{O+16*t+i}")
    def bcast_l():
        e(f"v_mov_b32 v{vT+2}, v{O+8}")
        e(f"v_mov_b32 v{vT+3}, v{O+8}")
        e(f"v_permlane32_swap_b32 v{vT+2}, v{vT+3}")
    bcast_l()
    e(f"v_add_f32 v{vT+2}, |v{O}|, |v{O+1}|")
    for i in range(2, 12):
        e(f"v_add_f32 v{vT+2}, v{vT+2}, |v{O+i}|")
    e(f"v_mov_b32 v{vT+4}, 0x7f000000")
    e(f"v_cmp_nlt_f32 vcc, v{vT+2}, v{vT+4}")
    e(f"s_mov_b64 s[42:43], vcc")
    e(f"v_mov_b32 v{vT+4}, 0x5f800000")
    e(f"v_cmp_nle_f32 vcc, v{vT+3}, v{vT+4}")
    e(f"s_or_b64 s[42:43], s[42:43], vcc")
    e(f"v_cmp_nge_f32 vcc, v{vT+3}, 0.5")
    e(f"s_or_b64 s[42:43], s[42:43], vcc")
    if cfg.get("force_fallback"): e(f"s_branch {name}_fallback")
    e(f"s_cbranch_scc1 {name}_fallback")
    e.label(f"{name}_fin")
    e(f"v_rcp_f32 v{vT+3}, v{vT+3}")
    e(f"v_lshlrev_b32 v{vT}, 4, v{vR}")
    e(f"v_lshl_add_u32 v{vT+1}, v{vH}, 15, v{vT}")
    for i in range(12):
        e(f"v_mul_f32 v{O+i}, v{O+i}, v{vT+3}")
    for i in range(6):
        e(f"v_cvt_pk_bf16_f32 v{O+i}, v{O+2*i}, v{O+2*i+1}")
    e(f"buffer_store_dwordx4 {vr(O,4)}, v{vT+1}, {srd}, s{sCur} offen sc1")
    e(f"s_mov_b64 exec, s[{sML}:{sML+1}]")
    e(f"buffer_store_dwordx2 {vr(O+4,2)}, v{vQ}, {srd}, s{sRot} offen sc1")
    e.stamp(5)
    e(f"s_lshl_b32 s{sT}, s{sQb}, 7")
    e(f"s_add_u32 s{sT}, s{sT}, {CNT_OFF + 1024}")
    e(f"s_cmp_eq_u32 s{sWave}, 0")
    e(f"s_cselect_b32 s{sT}, s{sT}, {OOB}")
    e(f"v_mov_b32 v{vT}, 0")
    e(f"v_mov_b32 v{vT+1}, 1")
    e("s_waitcnt vmcnt(0)")
    e("s_barrier")
    e("s_mov_b64 exec, 1")
    e(f"buffer_atomic_add v{vT+1}, v{vT}, {srd}, s{sT} offen sc1")
    e.stamp_out(6, 1, sWS, sWave)
    e("s_endpgm")
    e.label(f"{name}_fallback")
    e(f"s_mul_i32 s{sT}, s{sWave}, 1280")
    e(f"s_add_u32 s{sT}, s{sT}, s{sQo}")
    e(f"v_mov_b32 v{Q1}, 0"); e(f"v_mov_b32 v{Q1+1}, 0")
    e(f"buffer_load_dwordx2 {vr(Q0,2)}, v{vQ}, {srd}, s{sT} offen")
    e(f"buffer_load_dwordx2 {vr(Q0+2,2)}, v{vQ}, {srd}, s{sT} offen offset:512")
    e(f"s_mov_b64 exec, s[{sML}:{sML+1}]")
    e(f"buffer_load_dwordx2 {vr(Q1,2)}, v{vK1}, {srd}, s{sT} offen offset:1024")
    e("s_mov_b64 exec, -1")
    e(f"v_mov_b32 v{M}, 0xff800000")
    e(f"s_mov_b32 s{sOff}, s{sHb}")
    e(f"s_mov_b32 s{sIt}, 64")
    e.label(f"{name}_f1")
    loadK(0, sOff, "x")
    e("s_waitcnt vmcnt(0)")
    e(QK1(0, 0, 0)); e(QK2(0, 0, 0))
    tilemax(S, M, False)
    e(f"s_add_u32 s{sOff}, s{sOff}, 2560")
    e(f"s_sub_u32 s{sIt}, s{sIt}, 1")
    e(f"s_cmp_lg_u32 s{sIt}, 0")
    e(f"s_cbranch_scc1 {name}_f1")
    xhalf(e, M, vT, "v_max_f32")
    e(f"s_mov_b64 exec, s[{sMH}:{sMH+1}]")
    setslots(0, M)
    e("s_mov_b64 exec, -1")
    for i in range(16): e(f"v_mov_b32 v{O+i}, 0")
    e(f"s_mov_b32 s{sOff}, s{sHb}")
    e(f"s_mov_b32 s{sIt}, 64")
    e.label(f"{name}_f2")
    loadK(0, sOff, "x")
    e(f"s_mov_b64 exec, s[{sMV}:{sMV+1}]")
    e(f"buffer_load_dwordx4 {vr(V0(0),4)}, v{vV}, {srd}, s{sOff} offen offset:1280")
    e(f"buffer_load_dwordx4 {vr(V1(0),4)}, v{vV}, {srd}, s{sOff} offen offset:1920")
    e("s_mov_b64 exec, -1")
    e("s_waitcnt vmcnt(0)")
    e(QK1(0, 0, 0)); e(QK2(0, 0, 0))
    for i in range(16): e(f"v_exp_f32 v{S+i}, v{S+i}")
    for i in range(8): e(f"v_cvt_pk_bf16_f32 v{S+(i//4)*8+i%4}, v{S+2*i}, v{S+2*i+1}")
    e(PV1(0, 0, 0)); e(PV2(0, 0, 0))
    e(f"s_add_u32 s{sOff}, s{sOff}, 2560")
    e(f"s_sub_u32 s{sIt}, s{sIt}, 1")
    e(f"s_cmp_lg_u32 s{sIt}, 0")
    e(f"s_cbranch_scc1 {name}_f2")
    e("s_nop 15")
    bcast_l()
    e(f"s_branch {name}_fin")

def gen_mlp(e, name, cfg):
    sWS, sW, sB1 = 8, 12, 16
    sWave, sDt, sFt, sT, sT2, sIt, sPo, sWo, sM0, sPb, sWb, sKw, sKp, sN, sW2, sG = range(20, 36)
    vP, vWs, vB, vT = 1, 2, 3, 7
    ACC, WF, PF = 12, 92, 124
    g = G16(e, ACC, WF, PF, vP, vWs, vB, vT, sWave, sM0, sT)
    def prefetch(srd, ptr, size, rowstride, colexpr, nrows_per_wave, D):
        e.srd(srd, ptr, size)
        colexpr()
        e(f"s_lshr_b32 s{sT2}, s{sG}, 3")
        e(f"s_lshl_b32 s{sT2}, s{sT2}, 2")
        e(f"s_add_u32 s{sT2}, s{sT2}, s{sWave}")
        e(f"s_mul_i32 s{sT2}, s{sT2}, {nrows_per_wave*rowstride}")
        e(f"s_add_u32 s{sT}, s{sT}, s{sT2}")
        e(f"v_and_b32 v{vT+2}, 63, v0")
        e(f"v_lshlrev_b32 v{vT+2}, 4, v{vT+2}")
        for n in range(nrows_per_wave):
            e(f"buffer_load_dwordx4 {vr(D+4*(n%4),4)}, v{vT+2}, s[{srd}:{srd+3}], s{sT} offen")
            e(f"s_add_u32 s{sT}, s{sT}, {rowstride}")
    def pf_w(ptr, size, rs, colshift_code, qrows, first, nunits, lab):
        e.srd(44, ptr, size)
        colshift_code()
        e(f"s_lshr_b32 s{sKp}, s{sG}, 3")
        e(f"s_sub_u32 s{sKp}, s{sKp}, 27")
        e(f"s_lshl_b32 s{sKp}, s{sKp}, 2")
        e(f"s_add_u32 s{sKp}, s{sKp}, s{sWave}")
        e(f"s_add_u32 s{sKp}, s{sKp}, {first}")
        e(f"v_bfe_u32 v{vT}, v0, 3, 3")
        e(f"v_mul_u32_u24 v{vT}, {rs}, v{vT}")
        e(f"v_and_b32 v{vT+1}, 7, v0")
        e(f"v_lshl_add_u32 v{vT}, v{vT+1}, 7, v{vT}")
        e.label(lab)
        e(f"s_lshr_b32 s{sT}, s{sKp}, 4")
        e(f"s_lshl_b32 s{sT}, s{sT}, 2")
        e(f"s_and_b32 s{sT2}, s{sKp}, 3")
        e(f"s_add_u32 s{sT}, s{sT}, s{sT2}")
        e(f"s_lshl_b32 s{sT}, s{sT}, 3")
        e(f"s_bfe_u32 s{sT2}, s{sKp}, 0x20002")
        e(f"s_mul_i32 s{sT2}, s{sT2}, {qrows}")
        e(f"s_add_u32 s{sT}, s{sT}, s{sT2}")
        e(f"s_mul_i32 s{sT}, s{sT}, {rs}")
        e(f"s_add_u32 s{sT}, s{sT}, s{sKw}")
        e(f"buffer_load_dword v{PF}, v{vT}, s[44:47], s{sT} offen")
        e(f"s_waitcnt vmcnt({cfg.get('pf_depth', 2)})")
        e(f"s_add_u32 s{sKp}, s{sKp}, 20")
        e(f"s_cmp_lt_u32 s{sKp}, {nunits}")
        e(f"s_cbranch_scc1 {lab}")
    def pf_w1():
        def col():
            e(f"s_bfe_u32 s{sKw}, s{sG}, 0x20001")
            e(f"s_mul_i32 s{sKw}, s{sKw}, 27")
            e(f"s_lshr_b32 s{sKw}, s{sKw}, 2")
            e(f"s_lshl_b32 s{sKw}, s{sKw}, 7")
        pf_w(6, 2048 * 3456, 3456, col, 512, 16 * cfg.get("pf1_first", 4), 256, name + "_pf1")
    def pf_w2():
        e.srd(44, 42, 1728 * 4096)
        e(f"s_bfe_u32 s{sT}, s{sG}, 0x20001")
        e(f"s_lshl_b32 s{sT}, s{sT}, 10")
        e(f"s_lshr_b32 s{sT2}, s{sG}, 3")
        e(f"s_lshl_b32 s{sT2}, s{sT2}, 2")
        e(f"s_add_u32 s{sT2}, s{sT2}, s{sWave}")
        e(f"s_mul_i32 s{sT2}, s{sT2}, {14*4096}")
        e(f"s_add_u32 s{sT}, s{sT}, s{sT2}")
        e(f"v_bfe_u32 v{vT}, v0, 3, 3")
        e(f"v_lshlrev_b32 v{vT}, 12, v{vT}")
        e(f"v_and_b32 v{vT+1}, 7, v0")
        e(f"v_lshl_add_u32 v{vT}, v{vT+1}, 7, v{vT}")
        e(f"buffer_load_dword v{PF}, v{vT}, s[44:47], s{sT} offen")
        e(f"s_add_u32 s{sT}, s{sT}, {8*4096}")
        e("s_mov_b32 exec_hi, 0xffff")
        e(f"buffer_load_dword v{PF}, v{vT}, s[44:47], s{sT} offen")
        e("s_mov_b64 exec, -1")
    e("s_mov_b32 s48, -1"); e("s_mov_b32 s49, 0xff")
    e(f"v_lshrrev_b32 v{vT}, 6, v0")
    e(f"s_sub_u32 s{sG}, s2, {NATT}")
    e(f"v_readfirstlane_b32 s{sWave}, v{vT}")
    g.setup_p(10240)
    e(f"s_mul_i32 s{sM0}, s{sWave}, 12288")
    e(f"s_cmp_ge_u32 s{sG}, {NMLP1}")
    e(f"s_cbranch_scc1 {name}_skip1")
    e(f"s_and_b32 s{sT2}, s{sG}, 7")
    e(f"s_lshr_b32 s{sT}, s{sG}, 3")
    e(f"s_lshr_b32 s{sDt}, s{sT2}, 1")
    e(f"s_mul_i32 s{sDt}, s{sDt}, 27")
    e(f"s_add_u32 s{sT}, s{sT}, s{sDt}")
    e(f"s_lshr_b32 s{sFt}, s{sT}, 2")
    e(f"s_and_b32 s{sT}, s{sT}, 3")
    e(f"s_and_b32 s{sDt}, s{sT2}, 1")
    e(f"s_lshl_b32 s{sDt}, s{sDt}, 2")
    e(f"s_add_u32 s{sDt}, s{sDt}, s{sT}")
    e(f"s_lshl_b32 s{sKw}, s{sT}, 2")
    e(f"s_mul_i32 s{sT}, s{sFt}, 5")
    e(f"s_lshr_b32 s{sT}, s{sT}, 1")
    e(f"s_add_u32 s{sKw}, s{sKw}, s{sT}")
    e(f"s_and_b32 s{sKw}, s{sKw}, {15 if cfg.get('mlp_rot', 0) else 0}")
    e(f"s_mov_b32 s{sKp}, s{sKw}")
    e(f"s_mov_b32 s{sN}, 16")
    e(f"s_mul_i32 s{sPb}, s{sWave}, {64*10240}")
    e(f"s_mul_i32 s{sT}, s{sDt}, 1280")
    e(f"s_add_u32 s{sPb}, s{sPb}, s{sT}")
    e(f"s_add_u32 s{sPb}, s{sPb}, {HT_OFF}")
    g.setup_w(3456)
    e(f"s_mul_i32 s{sWb}, s{sWave}, {512*3456}")
    e(f"s_lshl_b32 s{sT}, s{sFt}, 7")
    e(f"s_add_u32 s{sWb}, s{sWb}, s{sT}")
    g.setup_tr()
    e("s_waitcnt lgkmcnt(0)")
    e.srd(sWS, 4, WS_USED)
    e.srd(sW, 6, 2048 * 3456)
    e.srd(sB1, 38, 1728 * 2)
    e(f"s_setprio {cfg.get('mlp_prio_ld', 0)}")
    e.vmq = []
    c1 = Stream(g, 16, sW, sWS, 3456, 40960, "", True, sKw, sKp, sN, sWb, sPb, sWo, sPo, sW2, False)
    c1.advW(0)
    for n in range(4): c1.dmaW(0, n)
    c1.advP(0)
    for td in range(5): c1.ldP(0, td)
    c1.advW(1)
    for n in range(4): c1.dmaW(1, n)
    c1.advP(1)
    for td in range(5): c1.ldP(1, td)
    c1.advW(2)
    for n in range(4): c1.dmaW(2, n)
    e(f"s_lshl_b32 s{sT}, s{sWave}, 5")
    e(f"s_lshl_b32 s{sT2}, s{sFt}, 7")
    e(f"s_add_u32 s{sT}, s{sT}, s{sT2}")
    e(f"v_bfe_u32 v{vT}, v0, 4, 2")
    e(f"v_lshlrev_b32 v{vT}, 3, v{vT}")
    e.vm(f"buffer_load_dwordx2 v[10:11], v{vT}, s[{sB1}:{sB1+3}], s{sT} offen", "b")
    e.stamp(1)
    e(f"s_setprio {cfg.get('mlp_prio_loop', 2)}")
    c1.run()
    e(f"s_setprio {cfg.get('mlp_prio_epi', 3)}")
    e.stamp(2)
    if cfg.get("pf_w2", 0) == 1: pf_w2()
    g.reduce()
    c0 = -2.0 * math.log2(math.e) * math.sqrt(2.0 / math.pi)
    cc = c0 * 0.044715
    e(f"s_mov_b32 s{sIt}, {fhex(cc)}")
    e(f"v_mov_b32 v{vT+1}, {fhex(c0)}")
    R = ACC; T = ACC + 20; BF = ACC + 40
    for j in range(2):
        e(f"v_lshlrev_b32 v{BF+2*j}, 16, v{10+j}")
        e(f"v_and_b32 v{BF+2*j+1}, 0xffff0000, v{10+j}")
    e(f"v_bfe_u32 v{vT}, v0, 5, 1")
    e(f"v_mul_u32_u24 v{vB}, 10240, v{vT}")
    e(f"v_and_b32 v{vT}, 15, v0")
    e(f"v_lshl_add_u32 v{vB}, v{vT}, 4, v{vB}")
    e(f"v_bfe_u32 v{vT}, v0, 4, 1")
    e(f"v_lshl_add_u32 v{vB}, v{vT}, 3, v{vB}")
    e(f"s_lshl_b32 s{sT}, s{sFt}, 2")
    e(f"s_add_u32 s{sT}, s{sT}, s{sWave}")
    e(f"s_mul_i32 s{sT}, s{sT}, 20480")
    e(f"s_mul_i32 s{sT2}, s{sDt}, 1280")
    e(f"s_add_u32 s{sT}, s{sT}, s{sT2}")
    e(f"s_add_u32 s{sT}, s{sT}, {U_OFF}")
    for lo, hi in ((0, 8), (8, 20)):
        rg = range(lo, hi)
        for i in rg: e(f"v_add_f32 v{R+i}, v{R+i}, v{BF+i%4}")
        for i in rg: e(f"v_mul_f32 v{T+i}, v{R+i}, v{R+i}")
        for i in rg: e(f"v_fma_f32 v{T+i}, v{T+i}, s{sIt}, v{vT+1}")
        for i in rg: e(f"v_mul_f32 v{T+i}, v{T+i}, v{R+i}")
        for i in rg: e(f"v_exp_f32 v{T+i}, v{T+i}")
        for i in rg: e(f"v_add_f32 v{T+i}, 1.0, v{T+i}")
        for i in rg: e(f"v_rcp_f32 v{T+i}, v{T+i}")
        for i in rg: e(f"v_mul_f32 v{R+i}, v{R+i}, v{T+i}")
        for td in range(lo // 4, hi // 4):
            e(f"v_cvt_pk_bf16_f32 v{R+4*td}, v{R+4*td}, v{R+4*td+1}")
            e(f"v_cvt_pk_bf16_f32 v{R+4*td+1}, v{R+4*td+2}, v{R+4*td+3}")
            e(f"buffer_store_dwordx2 {vr(R+4*td,2)}, v{vB}, s[{sWS}:{sWS+3}], s{sT} offen offset:{td*256} sc1")
    e("s_waitcnt vmcnt(0)")
    e("s_barrier")
    e(f"s_cmp_lg_u32 s{sWave}, 0")
    e(f"s_cbranch_scc1 {name}_p2")
    e(f"s_lshl_b32 s{sT}, s{sDt}, 7")
    e(f"s_add_u32 s{sT}, s{sT}, {CNT_OFF}")
    e(f"v_mov_b32 v{vT}, 0")
    e(f"v_mov_b32 v{vT+1}, 1")
    e("s_mov_b64 exec, 1")
    e(f"buffer_atomic_add v{vT+1}, v{vT}, s[{sWS}:{sWS+3}], s{sT} offen sc1")
    e("s_mov_b64 exec, -1")
    e(f"s_branch {name}_p2")
    e.label(f"{name}_skip1")
    e(f"s_setprio {cfg.get('pf_prio', 0)}")
    e("s_waitcnt lgkmcnt(0)")
    e.srd(sWS, 4, WS_USED)
    e.stamp(1)
    if cfg.get("pf2_w1", 1): pf_w1()
    if cfg.get("pf_w2", 0) == 1: pf_w2()
    e.stamp(2)
    e.label(f"{name}_p2")
    e.stamp(3)
    e.srd(sW, 42, 1728 * 4096)
    sSt = sFt
    e(f"s_bfe_u32 s{sSt}, s{sG}, 0x20001")
    e(f"s_lshl_b32 s{sSt}, s{sSt}, 3")
    e(f"s_bfe_u32 s{sT}, s{sG}, 0x30003")
    e(f"s_add_u32 s{sSt}, s{sSt}, s{sT}")
    e(f"s_and_b32 s{sDt}, s{sG}, 1")
    e(f"s_lshl_b32 s{sDt}, s{sDt}, 2")
    e(f"s_lshr_b32 s{sKp}, s{sG}, 6")
    e(f"s_add_u32 s{sDt}, s{sDt}, s{sKp}")
    e(f"s_cmp_ge_u32 s{sWave}, 2")
    e(f"s_cselect_b32 s{sN}, 13, 14")
    e(f"s_mul_i32 s{sT2}, s{sWave}, 14")
    e(f"s_cmp_eq_u32 s{sWave}, 3")
    e(f"s_cselect_b32 s{sIt}, 1, 0")
    e(f"s_sub_u32 s{sT2}, s{sT2}, s{sIt}")
    e(f"s_mul_i32 s{sKw}, s{sT}, 3")
    e(f"s_lshr_b32 s{sKw}, s{sKw}, 1")
    e(f"s_mul_i32 s{sT}, s{sKp}, 3")
    e(f"s_add_u32 s{sKw}, s{sKw}, s{sT}")
    e(f"s_cmp_ge_u32 s{sKw}, 13")
    e(f"s_cselect_b32 s{sT}, 13, 0")
    e(f"s_sub_u32 s{sKw}, s{sKw}, s{sT}")
    if not cfg.get("mlp_rot2", 1): e(f"s_mov_b32 s{sKw}, 0")
    e(f"s_mov_b32 s{sKp}, s{sKw}")
    e(f"s_mul_i32 s{sPb}, s{sT2}, 40960")
    e(f"s_mul_i32 s{sT}, s{sDt}, 1280")
    e(f"s_add_u32 s{sPb}, s{sPb}, s{sT}")
    e(f"s_add_u32 s{sPb}, s{sPb}, {U_OFF}")
    e(f"s_mul_i32 s{sWb}, s{sT2}, {32*4096}")
    e(f"s_lshl_b32 s{sT}, s{sSt}, 7")
    e(f"s_add_u32 s{sWb}, s{sWb}, s{sT}")
    g.setup_w(4096)
    e.vmq = []
    c2 = Stream(g, 14, sW, sWS, 4096, 40960, "sc1", False, sKw, sKp, sN, sWb, sPb, sWo, sPo, sW2, True)
    c2.preW()
    g.setup_tr()
    def poll(idx_sgpr, base, target, lab):
        e(f"s_cmp_lg_u32 s{sWave}, 0")
        e(f"s_cbranch_scc1 {lab}_go")
        e(f"s_lshl_b32 s{sT}, s{idx_sgpr}, 7")
        e(f"s_add_u32 s{sT}, s{sT}, {base}")
        e(f"v_mov_b32 v{vT}, 0")
        e(f"s_mov_b32 s{sIt}, 0x40000")
        e.label(f"{lab}_poll")
        e(f"buffer_load_dword v{vT+1}, v{vT}, s[{sWS}:{sWS+3}], s{sT} offen sc1")
        e("s_waitcnt vmcnt(0)")
        e(f"v_readfirstlane_b32 s{sT2}, v{vT+1}")
        e(f"s_cmp_ge_u32 s{sT2}, {target}")
        e(f"s_cbranch_scc1 {lab}_go")
        e(f"s_sleep {cfg.get('poll_sleep', 4)}")
        e(f"s_sub_u32 s{sIt}, s{sIt}, 1")
        e(f"s_cmp_lg_u32 s{sIt}, 0")
        e(f"s_cbranch_scc1 {lab}_poll")
        e.label(f"{lab}_go")
        e("s_barrier")
    if cfg.get("pf_wo", 1):
        e(f"v_and_b32 v{vT+1}, 63, v0")
        e(f"v_min_u32 v{vT+1}, 24, v{vT+1}")
        e(f"s_and_b32 s{sT}, s{sSt}, 7")
        e(f"s_lshl_b32 s{sT}, s{sT}, 2")
        e(f"s_add_u32 s{sT}, s{sT}, s{sWave}")
        e(f"s_mul_i32 s{sT}, s{sT}, 25")
        e(f"v_add_u32 v{vT+1}, s{sT}, v{vT+1}")
        e(f"v_mul_u32_u24 v{vT+2}, 0xcccd, v{vT+1}")
        e(f"v_lshrrev_b32 v{vT+2}, 19, v{vT+2}")
        e(f"v_mul_u32_u24 v{vT+2}, {10240 - 1280}, v{vT+2}")
        e(f"v_lshl_add_u32 v{vT+2}, v{vT+1}, 7, v{vT+2}")
        e(f"s_mul_i32 s{sT}, s{sDt}, 1280")
        e(f"s_add_u32 s{sT}, s{sT}, {WOT_OFF}")
        e(f"buffer_load_dword v{PF}, v{vT+2}, s[{sWS}:{sWS+3}], s{sT} offen")
        e.srd(44, 52, 2048 * 1280)
        e(f"v_and_b32 v{vT+1}, 15, v0")
        e(f"v_mul_u32_u24 v{vT+1}, 1280, v{vT+1}")
        e(f"v_bfe_u32 v{vT+2}, v0, 4, 2")
        e(f"v_mul_u32_u24 v{vT+2}, 52, v{vT+2}")
        e(f"v_add_u32 v{vT+1}, v{vT+1}, v{vT+2}")
        e(f"s_lshl_b32 s{sT}, s{sSt}, 2")
        e(f"s_add_u32 s{sT}, s{sT}, s{sWave}")
        e(f"s_mul_i32 s{sT}, s{sT}, {16*1280}")
        e(f"s_mul_i32 s{sT2}, s{sDt}, 160")
        e(f"s_add_u32 s{sT}, s{sT}, s{sT2}")
        e(f"buffer_load_dword v{PF}, v{vT+1}, s[44:47], s{sT} offen")
    poll(sDt, CNT_OFF, 27, name + "_u")
    e.stamp(4)
    c2.preP()
    e(f"s_setprio {cfg.get('mlp_prio_loop', 2)}")
    c2.run()
    e(f"s_setprio {cfg.get('mlp_prio_epi', 3)}")
    e.stamp(5)
    sX, sOUT, sAo, sOo, sRo, sXo, sQb = 44, 56, sWb, sPb, sPo, sWo, sN
    XR, OF, AF = PF, 32, 112
    vXo, vOp, vOr, vLa = vWs, vB, vB + 1, vB + 2
    e.srd(sX, 52, 2048 * 1280)
    e.srd(sB1, 54, 4096)
    e(f"v_and_b32 v{vT+1}, 15, v0")
    e(f"v_bfe_u32 v{vT}, v0, 4, 2")
    e(f"v_lshlrev_b32 v{vT+2}, 1, v{vT+1}")
    e(f"v_mul_u32_u24 v{vXo}, 1280, v{vT+1}")
    e(f"v_lshl_add_u32 v{vXo}, v{vT}, 3, v{vXo}")
    e(f"s_lshl_b32 s{sT}, s{sSt}, 2")
    e(f"s_add_u32 s{sT}, s{sT}, s{sWave}")
    e(f"s_lshl_b32 s{sOo}, s{sT}, 8")
    e(f"s_add_u32 s{sOo}, s{sOo}, {O_OFF}")
    e(f"s_lshl_b32 s{sRo}, s{sT}, 7")
    e(f"s_add_u32 s{sRo}, s{sRo}, {OR_OFF}")
    e(f"s_mul_i32 s{sXo}, s{sT}, {16*1280}")
    e(f"s_lshl_b32 s{sT2}, s{sT}, 5")
    e(f"s_mul_i32 s{sT}, s{sDt}, 160")
    e(f"s_add_u32 s{sXo}, s{sXo}, s{sT}")
    for td in range(5):
        e(f"buffer_load_dwordx2 {vr(XR+2*td,2)}, v{vXo}, s[{sX}:{sX+3}], s{sXo} offen offset:{td*32}")
    e(f"buffer_load_ushort v{XR+10}, v{vT+2}, s[{sB1}:{sB1+3}], s{sT2} offen")
    g.reduce()
    e("s_barrier")
    e(f"s_mul_i32 s{sAo}, s{sDt}, 1280")
    e(f"s_add_u32 s{sAo}, s{sAo}, {WOT_OFF}")
    e.vmq = []
    sA7 = [12, 13, 14, 15, 36, 37, 40]
    for n in range(7):
        e(f"s_add_u32 s{sT}, s{sWave}, {4*n}")
        if n == 6: e(f"s_min_u32 s{sT}, s{sT}, 24"); e(f"s_lshl_b32 s41, s{sT}, 10")
        e(f"s_mul_i32 s{sT2}, s{sT}, 52")
        e(f"s_lshr_b32 s{sT2}, s{sT2}, 8")
        e(f"s_mul_i32 s{sT2}, s{sT2}, {40960 - 1280}")
        e(f"s_lshl_b32 s{sT}, s{sT}, 8")
        e(f"s_add_u32 s{sT}, s{sT}, s{sT2}")
        e(f"s_add_u32 s{sA7[n]}, s{sT}, s{sAo}")
    e(f"s_lshl_b32 s{sM0}, s{sWave}, 10")
    def dmaA1(c, n):
        e(f"s_add_u32 m0, s{sM0 if n < 6 else 41}, {(c%2)*25600 + (n*4096 if n < 6 else 0)}")
        e.vm(f"buffer_load_dwordx4 v{vP}, s[{sWS}:{sWS+3}], s{sA7[n]} offen lds", f"a{c}")
        e(f"s_add_u32 s{sA7[n]}, s{sA7[n]}, {5*40960}")
    def dmaA(c):
        for n in range(7): dmaA1(c, n)
    dmaA(0); dmaA(1)
    if cfg.get("pf_wo2", 1):
        e(f"v_and_b32 v{vT+1}, 63, v0")
        e(f"v_min_u32 v{vT+1}, 49, v{vT+1}")
        e(f"v_mul_u32_u24 v{vT+2}, 0xcccd, v{vT+1}")
        e(f"v_lshrrev_b32 v{vT+2}, 19, v{vT+2}")
        e(f"v_mul_u32_u24 v{vB+3}, {10240 - 1280}, v{vT+2}")
        e(f"v_lshl_add_u32 v{vB+3}, v{vT+1}, 7, v{vB+3}")
        e(f"s_mul_i32 s{sT}, s{sWave}, 102400")
        e(f"s_add_u32 s{sT}, s{sT}, s{sAo}")
        e(f"s_add_u32 s{sT}, s{sT}, 409600")
        for c in range(2):
            e.vm(f"buffer_load_dword v{AF}, v{vB+3}, s[{sWS}:{sWS+3}], s{sT} offen", "t")
            e(f"s_add_u32 s{sT}, s{sT}, 51200")
    e(f"v_mov_b32 v{vLa}, v{vT}")
    e(f"v_bfe_u32 v{vT}, v0, 4, 2")
    e(f"v_and_b32 v{vT+1}, 15, v0")
    e(f"v_lshlrev_b32 v{vOp}, 15, v{vT}")
    e(f"v_lshl_add_u32 v{vOr}, v{vT+1}, 3, v{vOp}")
    e(f"v_lshl_add_u32 v{vOp}, v{vT+1}, 4, v{vOp}")
    e.srd(sOUT, 50, 2048 * 1280)
    e(f"s_waitcnt vmcnt({len(e.vmq)})")
    X = OF
    e(f"v_lshlrev_b32 v{XR+10}, 16, v{XR+10}")
    for i in range(10):
        e(f"v_lshlrev_b32 v{X+2*i}, 16, v{XR+i}")
        e(f"v_and_b32 v{X+2*i+1}, 0xffff0000, v{XR+i}")
    for i in range(20): e(f"v_add_f32 v{ACC+i}, v{ACC+i}, v{XR+10}")
    for i in range(20): e(f"v_add_f32 v{ACC+i}, v{ACC+i}, v{X+i}")
    e(f"s_lshr_b32 s{sQb}, s{sSt}, 1")
    e("s_waitcnt vmcnt(0)")
    e.vmq = []
    e.stamp(6)
    poll(sQb, CNT_OFF + 1024, 32, name + "_o")
    e.stamp(7)
    def ldo(k):
        if k % 5 < 4:
            e.vm(f"buffer_load_dwordx4 {vr(OF+4*k,4)}, v{vOp}, s[{sWS}:{sWS+3}], s{sOo} offen sc1", f"o{k}")
            e(f"s_add_u32 s{sOo}, s{sOo}, {4*32768}")
        else:
            e.vm(f"buffer_load_dwordx2 {vr(OF+4*k,2)}, v{vOr}, s[{sWS}:{sWS+3}], s{sRo} offen sc1", f"o{k}")
            e(f"s_add_u32 s{sRo}, s{sRo}, 16384")
            e.vm(f"buffer_load_dwordx2 {vr(OF+4*k+2,2)}, v{vOr}, s[{sWS}:{sWS+3}], s{sRo} offen sc1", f"o{k}")
            e(f"s_add_u32 s{sRo}, s{sRo}, {7*16384}")
    NPRE = cfg.get("p3_pre", 10)
    for k in range(NPRE): ldo(k)
    pend = [(lambda k=k: ldo(k)) for k in range(NPRE, 20)]
    NR = 14
    def rd(f):
        e(f"ds_read_b128 {vr(AF+4*(f%NR),4)}, v{vLa} offset:{((f//25)%2)*25600 + (f%25)*1024}")
    if cfg.get("p3s"): e.stamp(1)
    nrd = 0
    for k in range(20):
        if k in (5, 10):
            e("s_barrier")
            pend = [(lambda n=n, c=k//5+1: dmaA1(c, n)) for n in range(7)] + pend
        if k in (9, 14):
            while pend: pend.pop(0)()
            e.vmwait(f"a{(k+1)//5}")
            e("s_barrier")
        if k == 15:
            e("s_barrier")
            e(f"v_and_b32 v{vT}, 15, v0")
            e(f"v_mul_u32_u24 v{vOp}, 176, v{vT}")
            e(f"v_bfe_u32 v{vT}, v0, 4, 2")
            e(f"v_lshl_add_u32 v{vOp}, v{vT}, 3, v{vOp}")
            e(f"s_mul_i32 s{sT}, s{sWave}, 2816")
            e(f"v_add_u32 v{vOp}, s{sT}, v{vOp}")
            for n in range(3):
                e(f"v_and_b32 v{vT}, 63, v0")
                e(f"v_add_u32 v{vT}, {64*n}, v{vT}")
                e(f"v_mul_u32_u24 v{vT+1}, 0xcccd, v{vT}")
                e(f"v_lshrrev_b32 v{vT+1}, 19, v{vT+1}")
                e(f"v_lshlrev_b32 v{vT}, 4, v{vT}")
                e(f"v_mul_u32_u24 v{OF+4+n}, {1280-160}, v{vT+1}")
                e(f"v_add_u32 v{OF+4+n}, v{OF+4+n}, v{vT}")
                e(f"v_lshl_add_u32 v{OF+n}, v{vT+1}, 4, v{vT}")
                e(f"v_add_u32 v{OF+n}, s{sT}, v{OF+n}")
        lim = 50 if k < 9 else (75 if k < 14 else 100)
        while nrd < min(5*k + 9, lim): rd(nrd); nrd += 1
        e.vmwait(f"o{k}", f"lgkmcnt({nrd - 5*k - 5})")
        if cfg.get("p3s") and k in (0, 5, 10, 15): e.stamp({0: 2, 5: 3, 10: 4, 15: 5}[k])
        for td in range(5):
            f = 5*k + td
            a = vr(ACC + 4*td, 4)
            e(f"v_mfma_f32_16x16x32_bf16 {a}, {vr(AF+4*(f%NR),4)}, {vr(OF+4*k,4)}, {a}")
            if nrd < min(f + NR, lim): rd(nrd); nrd += 1
            if pend and td % 2 == 0: pend.pop(0)()
    e.stamp(8)
    for td in range(5):
        a = ACC + 4*td
        e(f"v_cvt_pk_bf16_f32 v{a}, v{a}, v{a+1}")
        e(f"v_cvt_pk_bf16_f32 v{a+1}, v{a+2}, v{a+3}")
        e(f"ds_write_b64 v{vOp}, {vr(a,2)} offset:{td*32}")
    e("s_waitcnt lgkmcnt(0)")
    for n in range(3): e(f"ds_read_b128 {vr(OF+16+4*n,4)}, v{OF+n}")
    for n in range(3):
        e(f"s_waitcnt lgkmcnt({2-n})")
        if n == 2: e("s_mov_b32 exec_hi, 0")
        e(f"buffer_store_dwordx4 {vr(OF+16+4*n,4)}, v{OF+4+n}, s[{sOUT}:{sOUT+3}], s{sXo} offen {cfg.get('out_store', '')}")
    e.stamp_out(9, 1, sWS, sWave)
    e("s_endpgm")

def gen_k2(name, cfg):
    e = Em(cfg)
    e(f"s_cmp_ge_u32 s2, {NATT + NMLP}")
    e(f"s_cbranch_scc1 {name}_end")
    e.stamp(0)
    e("s_load_dwordx2 s[4:5], s[0:1], 80")
    if cfg.get("agb", 0):
        e("s_cmp_ge_u32 s2, 256")
        e("s_cselect_b32 s3, 0x300, 0")
        e("s_xor_b32 s2, s2, s3")
        e("s_setprio 3")
    e(f"s_cmp_ge_u32 s2, {NATT}")
    e(f"s_cbranch_scc1 {name}_mlp")
    if cfg.get("no_attn"): e("s_endpgm")
    e("s_load_dwordx2 s[6:7], s[0:1], 48")
    gen_attn(e, name + "_a", cfg)
    e.label(f"{name}_mlp")
    if cfg.get("no_mlp"): e("s_endpgm")
    e(f"s_setprio {cfg.get('mlp_prio_pro', 3)}")
    e("s_load_dwordx2 s[6:7], s[0:1], 32")
    e("s_load_dwordx2 s[38:39], s[0:1], 40")
    e("s_load_dwordx2 s[42:43], s[0:1], 48")
    e("s_load_dwordx2 s[52:53], s[0:1], 0")
    e("s_load_dwordx2 s[54:55], s[0:1], 56")
    e("s_load_dwordx2 s[50:51], s[0:1], 64")
    gen_mlp(e, name + "_m", cfg)
    e.label(f"{name}_end")
    e("s_endpgm")
    return e.l, dict(vgpr=168, grid=NATT + NMLP, block=256, lds=K2_LDS)
```

```python
import struct, math

QF_OFF = 0x000000
KV_OFF = 0x280000
HT_OFF = 0x780000
U_OFF  = 0xA00000
O_OFF  = 0xC20000
OR_OFF = 0xE20000
Z_OFF  = 0xEA0000
WOT_OFF = 0x13C0000
RS_OFF  = 0x14A0000
CNT_OFF = 0x14C0000
WS_USED = 0x1700000
STAMP_OFF = 0x1500000

def f2u(x):
    return struct.unpack("<I", struct.pack("<f", x))[0]
def fhex(x):
    return "0x%08x" % f2u(x)

class Em:
    def __init__(self, cfg={}):
        self.stamps = cfg.get('stamp', False)
        self.dbgout = cfg.get('dbgout', False)
        self.l = []
        self.vmq = []
    def __call__(self, s):
        for ln in s.split("\n"):
            ln = ln.strip()
            if not ln: continue
            self.l.append(ln if ln.endswith(":") or ln.startswith(".") else "    " + ln)
    def label(self, n): self.l.append(n + ":")
    def vm(self, s, tag):
        self(s); self.vmq.append(tag)
    def vmwait(self, tag, extra=""):
        tags = tag if isinstance(tag, (tuple, list, set)) else (tag,)
        idx = max([i for i, t in enumerate(self.vmq) if t in tags], default=-1)
        n = len(self.vmq) - 1 - idx
        self.vmq = self.vmq[idx + 1:]
        assert n <= 63, n
        self(f"s_waitcnt vmcnt({n}) {extra}".strip())
        return n
    def stamp(self, i):
        if not self.stamps: return
        assert i <= 8
        self(f"s_memrealtime s[{62+4*i}:{63+4*i}]")
        self(f"s_memtime s[{64+4*i}:{65+4*i}]")
        self("s_waitcnt lgkmcnt(0)")
    def stamp_out(self, n, kidx, srd, swave):
        if not self.stamps: return
        self("s_waitcnt vmcnt(0)")
        self.stamp(n)
        self("s_mov_b64 exec, 1")
        self(f"s_lshl_b32 s100, s2, 2")
        self(f"s_add_u32 s100, s100, s{swave}")
        self(f"s_lshl_b32 s100, s100, 7")
        self(f"s_add_u32 s100, s100, {STAMP_OFF + kidx * 1024 * 512}")
        self("v_mov_b32 v1, 0")
        for i in range(n + 1):
            self(f"v_mov_b32 v2, s{62+4*i}")
            self(f"buffer_store_dword v2, v1, s[{srd}:{srd+3}], s100 offen offset:{4*i}")
            self(f"v_mov_b32 v3, s{64+4*i}")
            self(f"buffer_store_dword v3, v1, s[{srd}:{srd+3}], s100 offen offset:{64+4*i}")
    def uniq(self, p):
        self.nlab = getattr(self, "nlab", 0) + 1
        return f"L{p}{self.nlab}"
    def srd(self, d, lo, size):
        self(f"s_mov_b32 s{d}, s{lo}")
        self(f"s_and_b32 s{d+1}, s{lo+1}, 0xffff")
        self(f"s_mov_b32 s{d+2}, {size}")
        self(f"s_mov_b32 s{d+3}, 0x00020000")

def vr(a, n):
    return f"v[{a}:{a+n-1}]" if n > 1 else f"v{a}"

def kernel_header(name):
    return [f".globl {name}", ".p2align 8", f".type {name},@function", f"{name}:"]

def descriptor(name, vgpr, sgpr=102, agpr=0):
    acc = (vgpr + 3) // 4 * 4
    return f""".p2align 6
.amdhsa_kernel {name}
  .amdhsa_next_free_vgpr {acc + agpr if agpr else vgpr}
  .amdhsa_next_free_sgpr {sgpr}
  .amdhsa_accum_offset {acc}
  .amdhsa_group_segment_fixed_size 0
  .amdhsa_kernarg_size 88
  .amdhsa_user_sgpr_count 2
  .amdhsa_user_sgpr_kernarg_segment_ptr 1
  .amdhsa_system_sgpr_workgroup_id_x 1
.end_amdhsa_kernel"""

def red32(e, s, t):
    e(f"v_add_f32_dpp v{t}, v{s}, v{s} quad_perm:[1,0,3,2] row_mask:0xf bank_mask:0xf")
    e(f"v_add_f32_dpp v{s}, v{t}, v{t} quad_perm:[2,3,0,1] row_mask:0xf bank_mask:0xf")
    e(f"v_add_f32_dpp v{t}, v{s}, v{s} row_half_mirror row_mask:0xf bank_mask:0xf")
    e(f"v_add_f32_dpp v{s}, v{t}, v{t} row_mirror row_mask:0xf bank_mask:0xf")
    e(f"v_mov_b32 v{t}, v{s}")
    e(f"v_permlane16_swap_b32 v{s}, v{t}")
    e(f"v_add_f32 v{s}, v{s}, v{t}")

def xhalf(e, s, t, op="v_add_f32"):
    e(f"v_mov_b32 v{t}, v{s}")
    e(f"v_permlane32_swap_b32 v{s}, v{t}")
    e(f"{op} v{s}, v{s}, v{t}")

def touch_code(e, first, last, vidx, va, sa, uniq):
    e(f"s_getpc_b64 s[{sa}:{sa+1}]")
    e.label(uniq)
    e(f"s_add_u32 s{sa}, s{sa}, {first}-{uniq}")
    e(f"s_addc_u32 s{sa+1}, s{sa+1}, ({first}-{uniq})>>32")
    e(f"v_min_u32 v{va}, ({last}-{first})>>7, v{vidx}")
    e(f"v_lshlrev_b32 v{va}, 7, v{va}")
    e(f"v_mov_b32 v{va+1}, s{sa+1}")
    e(f"v_add_co_u32 v{va}, vcc, s{sa}, v{va}")
    e(f"v_addc_co_u32 v{va+1}, vcc, 0, v{va+1}, vcc")
    e(f"global_load_dword v{va+2}, v[{va}:{va+1}], off")

SY = 131072 + 10688
SY_A, SY_G, SY_B, SY_READY, SY_DONE, SY_PQ, SY_PH, SY_PA, SY_PB, SY_ST, SY_LD = [SY + 4*i for i in range(11)]
FL_Q, FL_U, FL_O, FL_H = CNT_OFF, CNT_OFF + 0x8000, CNT_OFF + 0x10000, CNT_OFF + 0x20000
S_BAR, S_SPIN, S_TMP = 60, 61, 59
SPIN = 0x100000

def lds_wait(e, addr, target, va, sleep=1):
    l = e.uniq("w")
    e("s_mov_b64 exec, 1")
    e(f"v_mov_b32 v{va}, {addr}")
    e(f"s_mov_b32 s{S_SPIN}, {SPIN}")
    e.label(l)
    e(f"ds_read_b32 v{va+1}, v{va}")
    e("s_waitcnt lgkmcnt(0)")
    e(f"v_readfirstlane_b32 s{S_TMP}, v{va+1}")
    e(f"s_cmp_ge_u32 s{S_TMP}, {target}")
    e(f"s_cbranch_scc1 {l}x")
    e(f"s_sleep {sleep}")
    e(f"s_sub_u32 s{S_SPIN}, s{S_SPIN}, 1")
    e(f"s_cmp_lg_u32 s{S_SPIN}, 0")
    e(f"s_cbranch_scc1 {l}")
    e.label(l + "x")
    e("s_mov_b64 exec, -1")

def lds_add(e, addr, va):
    e("s_mov_b64 exec, 1")
    e(f"v_mov_b32 v{va}, {addr}")
    e(f"v_mov_b32 v{va+1}, 1")
    e(f"ds_add_u32 v{va}, v{va+1}")
    e("s_mov_b64 exec, -1")

def gbar(e, addr, va, sleep=1):
    lds_add(e, addr, va)
    e(f"s_add_u32 s{S_BAR}, s{S_BAR}, 4")
    lds_wait(e, addr, f"s{S_BAR}", va, sleep)

def publish(e, addr, n, srd, soff, va, atomic=False):
    l = e.uniq("p")
    e("s_mov_b64 exec, 1")
    e(f"v_mov_b32 v{va}, {addr}")
    e(f"v_mov_b32 v{va+1}, 1")
    e("s_waitcnt vmcnt(0)")
    e(f"ds_add_rtn_u32 v{va}, v{va}, v{va+1}")
    e("s_waitcnt lgkmcnt(0)")
    e(f"v_readfirstlane_b32 s{S_TMP}, v{va}")
    e(f"s_cmp_lg_u32 s{S_TMP}, {n-1}")
    e(f"s_cbranch_scc1 {l}")
    e(f"v_mov_b32 v{va}, 0")
    e(f"{'buffer_atomic_add' if atomic else 'buffer_store_dword'} v{va+1}, v{va}, s[{srd}:{srd+3}], s{soff} offen sc1")
    e.label(l)
    e("s_mov_b64 exec, -1")

def gwait(e, srd, soff, shift, nlanes, target, va, sleep=2, second=None):
    l = e.uniq("g")
    if shift is not None:
        e(f"v_and_b32 v{va}, 63, v0")
        e(f"v_lshlrev_b32 v{va}, {shift}, v{va}")
    e(f"s_mov_b32 exec_lo, {hex((1 << min(nlanes, 32)) - 1)}")
    e(f"s_mov_b32 exec_hi, {hex((1 << max(nlanes - 32, 0)) - 1)}")
    e(f"s_mov_b32 s{S_SPIN}, {SPIN // 4}")
    e.label(l)
    e(f"buffer_load_dword v{va+1}, v{va}, s[{srd}:{srd+3}], {soff} offen sc1")
    if second: e(f"buffer_load_dword v{second+1}, v{second}, s[{srd}:{srd+3}], {soff} offen sc1")
    e("s_waitcnt vmcnt(0)")
    if second: e(f"v_min_u32 v{va+1}, v{va+1}, v{second+1}")
    e(f"v_cmp_gt_u32 vcc, {target}, v{va+1}")
    e(f"s_cbranch_vccz {l}x")
    e(f"s_sleep {sleep}")
    e(f"s_sub_u32 s{S_SPIN}, s{S_SPIN}, 1")
    e(f"s_cmp_lg_u32 s{S_SPIN}, 0")
    e(f"s_cbranch_scc1 {l}")
    e.label(l + "x")
    e("s_mov_b64 exec, -1")
```

```python
from common import *
HB = 131072
ST_M = HB + 8 * 1344
ST_R = ST_M + 512
ST_C = ST_R + 512
K1_LDS = ST_C + 512
EPS = 1e-5
OOB = 0x7f000000

def gen_p1(e, name, cfg):
    ST = "sc1"
    sX, sW, sWS, sDbg = 8, 12, 16, 44
    sWave, sRow, sCol, sXo, sWo, sM0, sT, sOnes, sWr, sWc = 20, 21, 22, 23, 24, 25, 26, 27, 28, 29
    sScale, sStride, sBase, sT2, sT3, sRot, sR1, sR2 = 30, 31, 32, 33, 34, 35, 38, 39
    vL, vR, vH = 1, 2, 3
    vXa, vWa, SO, vT = 4, 20, 24, 32
    ACC, FR = 40, 104
    e("s_cmp_ge_u32 s2, 256")
    e(f"s_cbranch_scc1 {name}_end")
    e.stamp(0)
    e("s_load_dwordx4 s[4:7], s[0:1], 0")
    e("s_load_dwordx2 s[36:37], s[0:1], 80")
    e("s_load_dwordx2 s[54:55], s[0:1], 72")
    if cfg.get("pf_code", 1):
        touch_code(e, name, "code_end", 0, 164, 40, name + "_pc0")
    e(f"v_and_b32 v{vL}, 63, v0")
    e(f"v_lshrrev_b32 v{vT}, 6, v0")
    e(f"v_and_b32 v{vR}, 31, v0")
    e(f"v_readfirstlane_b32 s{sWave}, v{vT}")
    e(f"v_lshrrev_b32 v{vH}, 5, v{vL}")
    e("s_and_b32 s3, s2, 7")
    e(f"s_lshr_b32 s{sT}, s2, 3")
    e(f"s_lshr_b32 s{sRow}, s3, 1")
    e(f"s_lshl_b32 s{sRow}, s{sRow}, 2")
    e(f"s_and_b32 s{sT2}, s{sT}, 3")
    e(f"s_add_u32 s{sRow}, s{sRow}, s{sT2}")
    e(f"s_and_b32 s{sCol}, s3, 1")
    e(f"s_lshl_b32 s{sCol}, s{sCol}, 3")
    e(f"s_lshr_b32 s{sT2}, s{sT}, 2")
    e(f"s_add_u32 s{sCol}, s{sCol}, s{sT2}")
    e(f"s_bfe_u32 s{sWr}, s{sWave}, 0x10001")
    e(f"s_and_b32 s{sWc}, s{sWave}, 1")
    e(f"s_mov_b32 s{sOnes}, 0x3f803f80")
    e(f"s_mov_b32 s{S_BAR}, 0")
    e(f"s_cmp_eq_u32 s{sCol}, 15")
    e(f"s_cselect_b32 s58, 8, {4 if cfg.get('late_poll', 1) else 0}")
    e(f"s_cmp_ge_u32 s{sWave}, 8")
    e(f"s_cbranch_scc1 {name}_side")
    e(f"s_cmp_eq_u32 s{sCol}, 15")
    e(f"s_cbranch_scc1 {name}_idle")
    e(f"s_cmp_lt_u32 s{sWave}, 4")
    e(f"s_cbranch_scc1 {name}_comp")

    vXs, vWs = 4, 8
    e(f"s_sub_u32 s{sWave}, s{sWave}, 4")
    e("s_load_dwordx2 s[40:41], s[0:1], 32")
    e(f"v_lshrrev_b32 v{vT}, 3, v{vL}")
    e(f"s_lshl_b32 s{sT}, s{sWave}, 3")
    e(f"v_add_u32 v{vT}, s{sT}, v{vT}")
    e(f"v_mul_u32_u24 v{vT}, 1280, v{vT}")
    e(f"v_lshrrev_b32 v{vT+1}, 4, v{vL}")
    e(f"s_lshl_b32 s{sT}, s{sWc}, 2")
    e(f"v_add_u32 v{vT+2}, s{sT}, v{vT+1}")
    e(f"v_and_b32 v{vT+3}, 7, v{vL}")
    e(f"v_xor_b32 v{vT+2}, v{vT+2}, v{vT+3}")
    e(f"v_lshl_add_u32 v{vXs}, v{vT+2}, 4, v{vT}")
    for n in range(1, 4): e(f"v_add_u32 v{vXs+n}, {n*32*1280}, v{vXs}")
    e(f"s_lshl_b32 s{sT}, s{sWave}, 2")
    e(f"v_add_u32 v{vT}, s{sT}, v{vT+1}")
    e(f"v_mul_u32_u24 v{vT}, 3840, v{vT}")
    e(f"v_bfe_u32 v{vT+2}, v{vL}, 2, 2")
    e(f"v_xor_b32 v{vT+2}, v{vT+2}, v{vT+1}")
    e(f"v_lshl_add_u32 v{vT}, v{vT+2}, 6, v{vT}")
    e(f"v_and_b32 v{vT+2}, 3, v{vL}")
    e(f"v_lshl_add_u32 v{vWs}, v{vT+2}, 4, v{vT}")
    for n in range(1, 4): e(f"v_add_u32 v{vWs+n}, {n*16*3840}, v{vWs}")
    e(f"s_mul_i32 s{sXo}, s{sRow}, {128*1280}")
    e(f"s_lshl_b32 s{sWo}, s{sCol}, 8")
    e(f"s_lshl_b32 s{sM0}, s{sWave}, 10")
    e(f"s_and_b32 s{sT}, s{sRow}, 3")
    e(f"s_mul_i32 s{sT}, s{sT}, 5")
    e(f"s_lshr_b32 s{sT}, s{sT}, 1")
    e(f"s_lshl_b32 s{sT2}, s{sCol}, 2")
    e(f"s_add_u32 s{sT}, s{sT}, s{sT2}")
    e(f"s_mul_i32 s{sT2}, s{sT}, 0xcccd")
    e(f"s_lshr_b32 s{sT2}, s{sT2}, 19")
    e(f"s_mul_i32 s{sT2}, s{sT2}, 10")
    e(f"s_sub_u32 s{sRot}, s{sT}, s{sT2}")
    e(f"s_lshl_b32 s{sT}, s{sRot}, 7")
    e(f"s_add_u32 s{sXo}, s{sXo}, s{sT}")
    e(f"s_mul_i32 s{sT}, s{sRot}, {64*3840}")
    e(f"s_add_u32 s{sWo}, s{sWo}, s{sT}")
    e("s_waitcnt lgkmcnt(0)")
    e.srd(sX, 4, 2048 * 1280)
    e.srd(sW, 6, 640 * 3840)
    def dma():
        e(f"s_add_u32 s{sT}, s{sM0}, s{sT3}")
        for n in range(4):
            for (o, v, srd, so) in ((0, vXs, sX, sXo), (16384, vWs, sW, sWo)):
                e(f"s_add_u32 m0, s{sT}, {o + n*4096}")
                e(f"buffer_load_dwordx4 v{v+n}, s[{srd}:{srd+3}], s{so} offen lds")
        e(f"s_add_u32 s{sT3}, s{sT3}, 0x8000")
        e(f"s_and_b32 s{sT3}, s{sT3}, 0x1ffff")
        e(f"s_add_u32 s{sRot}, s{sRot}, 1")
        e(f"s_cmp_eq_u32 s{sRot}, 10")
        e(f"s_cselect_b32 s{sR1}, 1280, 0")
        e(f"s_cselect_b32 s{sR2}, {640*3840}, 0")
        e(f"s_add_u32 s{sXo}, s{sXo}, 128")
        e(f"s_add_u32 s{sWo}, s{sWo}, {64*3840}")
        e(f"s_sub_u32 s{sXo}, s{sXo}, s{sR1}")
        e(f"s_sub_u32 s{sWo}, s{sWo}, s{sR2}")
    SP = cfg.get("sp_w1", 0)
    if SP:
        e(f"s_mul_i32 s{sT}, s{sRow}, 15")
        e(f"s_add_u32 s{sT}, s{sT}, s{sCol}")
        e(f"s_lshl_b32 s{sT}, s{sT}, 2")
        e(f"s_add_u32 s{sT}, s{sT}, s{sWave}")
        e(f"s_mul_i32 s{sT}, s{sT}, 7424")
        e(f"s_min_u32 s{sT}, s{sT}, {2048*3456 - 7488}")
        e(f"s_add_u32 s40, s40, s{sT}")
        e(f"s_addc_u32 s41, s41, 0")
    e(f"s_mov_b32 s{sT3}, 0")
    dma()
    e(f"s_mov_b32 s{sT2}, 9")
    e.label(f"{name}_ll")
    dma()
    if SP:
        for n in range(13 // SP + (SP > 1)): e(f"s_load_dword s57, s[40:41], {64*SP*n}")
        e(f"s_add_u32 s40, s40, {13*64}")
        e(f"s_addc_u32 s41, s41, 0")
    e("s_waitcnt vmcnt(8)")
    e("s_barrier")
    e(f"s_sub_u32 s{sT2}, s{sT2}, 1")
    e(f"s_cmp_lg_u32 s{sT2}, 0")
    e(f"s_cbranch_scc1 {name}_ll")
    e.srd(sWS, 36, WS_USED)
    e.srd(sDbg, 54, 256)
    e(f"v_and_b32 v{vT+2}, 15, v{vL}")
    e(f"v_lshlrev_b32 v{vT+2}, 4, v{vT+2}")
    e(f"s_mov_b32 s{sR1}, 0x40000")
    e(f"buffer_load_dword v{vT+3}, v{vT+2}, s[{sDbg}:{sDbg+3}], 0 offen sc1")
    e("s_waitcnt vmcnt(1)")
    e("s_barrier")
    e(f"s_branch {name}_chk")
    e.label(f"{name}_poll")
    e(f"buffer_load_dword v{vT+3}, v{vT+2}, s[{sDbg}:{sDbg+3}], 0 offen sc1")
    e.label(f"{name}_chk")
    e("s_waitcnt vmcnt(0)")
    e(f"v_cmp_ne_u32 vcc, 1, v{vT+3}")
    e(f"s_cbranch_vccz {name}_got")
    e("s_sleep 2")
    e(f"s_sub_u32 s{sR1}, s{sR1}, 1")
    e(f"s_cmp_lg_u32 s{sR1}, 0")
    e(f"s_cbranch_scc1 {name}_poll")
    e.label(f"{name}_got")
    e(f"s_lshl_b32 s{sT}, s{sRow}, 10")
    e(f"s_lshl_b32 s{sT2}, s{sWave}, 8")
    e(f"s_add_u32 s{sT}, s{sT}, s{sT2}")
    e(f"s_add_u32 s{sT}, s{sT}, {RS_OFF}")
    e(f"v_lshlrev_b32 v{vT+2}, 3, v{vR}")
    e(f"buffer_load_dwordx2 {vr(vT+4,2)}, v{vT+2}, s[{sWS}:{sWS+3}], s{sT} offen sc1")
    e("s_barrier")
    e(f"s_lshl_b32 s{sT}, s{sWave}, 7")
    e(f"s_add_u32 s{sT}, s{sT}, {ST_M}")
    e(f"v_lshl_add_u32 v{vT}, v{vR}, 2, s{sT}")
    e("s_waitcnt vmcnt(0)")
    e(f"ds_write_b32 v{vT}, v{vT+4}")
    e(f"ds_write_b32 v{vT}, v{vT+5} offset:512")
    e("s_waitcnt lgkmcnt(0)")
    e("s_barrier")
    e(f"s_branch {name}_gemm")

    e.label(f"{name}_side")
    e("s_setprio 3")
    HX = 40; F = HX + 10
    e(f"s_sub_u32 s{sWave}, s{sWave}, 8")
    e(f"s_lshl_b32 s{sT}, s2, 3")
    e(f"s_lshl_b32 s{sT2}, s{sWave}, 1")
    e(f"s_add_u32 s{sT}, s{sT}, s{sT2}")
    e(f"s_mul_i32 s{sT}, s{sT}, 1280")
    e(f"v_mul_u32_u24 v{vT}, 1280, v{vH}")
    e(f"v_lshl_add_u32 v{vT+1}, v{vR}, 4, v{vT}")
    e(f"v_lshl_add_u32 v{vT+2}, v{vR}, 3, v{vT}")
    e("s_waitcnt lgkmcnt(0)")
    e.srd(sX, 4, 2048 * 1280)
    e.srd(sWS, 36, WS_USED)
    e(f"buffer_load_dwordx4 {vr(HX,4)}, v{vT+1}, s[{sX}:{sX+3}], s{sT} offen")
    e(f"buffer_load_dwordx4 {vr(HX+4,4)}, v{vT+1}, s[{sX}:{sX+3}], s{sT} offen offset:512")
    e(f"buffer_load_dwordx2 {vr(HX+8,2)}, v{vT+2}, s[{sX}:{sX+3}], s{sT} offen offset:1024")
    e(f"s_lshl_b32 s{sT}, s{sWave}, 1")
    e(f"v_add_u32 v4, s{sT}, v{vH}")
    e(f"v_mul_u32_u24 v4, 1344, v4")
    e(f"v_add_u32 v4, {HB}, v4")
    e(f"v_lshl_add_u32 v5, v{vR}, 3, v4")
    e(f"v_lshl_add_u32 v4, v{vR}, 4, v4")
    e(f"v_bfe_u32 v6, v{vL}, 2, 2")
    e(f"v_mul_u32_u24 v6, 1344, v6")
    e(f"v_lshrrev_b32 v7, 4, v{vL}")
    e(f"v_lshl_add_u32 v6, v7, 5, v6")
    e(f"v_and_b32 v7, 3, v{vL}")
    e(f"v_lshl_add_u32 v6, v7, 3, v6")
    e(f"v_add_u32 v6, {HB}, v6")
    e(f"v_lshlrev_b32 v8, 4, v{vL}")
    e(f"s_lshl_b32 s{sM0}, s{sWave}, 10")
    e(f"s_add_u32 s{sM0}, s{sM0}, 16384")
    RX, RS, RU = 84, 100, 108
    for i in range(8): e(f"v_mov_b32 v{RS+i}, 0")
    e(f"v_and_b32 v9, 15, v{vL}")
    e(f"v_lshlrev_b32 v9, 2, v9")
    e(f"v_add_u32 v9, {SY}, v9")
    e(f"ds_write_b32 v9, v{RS}")
    e(f"s_mov_b32 s{sR1}, 2")
    e("s_waitcnt vmcnt(0)")
    e.label(f"{name}_ln")
    e(f"v_mov_b32 v{vT}, 0"); e(f"v_mov_b32 v{vT+2}, 0")
    for i in range(10):
        e(f"v_dot2_f32_bf16 v{vT}, v{HX+i}, s{sOnes}, v{vT}")
        e(f"v_dot2_f32_bf16 v{vT+2}, v{HX+i}, v{HX+i}, v{vT+2}")
    a, b = Em(), Em()
    red32(a, vT, vT + 1); red32(b, vT + 2, vT + 3)
    un = []
    for i in range(10):
        un.append(f"v_lshlrev_b32 v{F+2*i}, 16, v{HX+i}")
        un.append(f"v_and_b32 v{F+2*i+1}, 0xffff0000, v{HX+i}")
    for k in range(7):
        for x in un[3*k:3*k+3]: e(x)
        e(a.l[k]); e(b.l[k])
    e(f"v_mul_f32 v{vT}, {fhex(1/640)}, v{vT}")
    e(f"v_mul_f32 v{vT+2}, {fhex(1/640)}, v{vT+2}")
    e(f"v_fma_f32 v{vT+2}, -v{vT}, v{vT}, v{vT+2}")
    e(f"v_max_f32 v{vT+2}, 0, v{vT+2}")
    e(f"v_add_f32 v{vT+2}, {fhex(EPS)}, v{vT+2}")
    e(f"v_rsq_f32 v{vT+2}, v{vT+2}")
    for i in range(10):
        e(f"v_pk_add_f32 {vr(F+2*i,2)}, {vr(F+2*i,2)}, {vr(vT,2)} op_sel_hi:[1,0] neg_lo:[0,1] neg_hi:[0,1]")
    for i in range(10):
        e(f"v_pk_mul_f32 {vr(F+2*i,2)}, {vr(F+2*i,2)}, {vr(vT+2,2)} op_sel_hi:[1,0]")
    for i in range(10):
        e(f"v_cvt_pk_bf16_f32 v{HX+i}, v{F+2*i}, v{F+2*i+1}")
    e(f"s_sub_u32 s{sR1}, s{sR1}, 1")
    e(f"s_cmp_lg_u32 s{sR1}, 0")
    e(f"s_cbranch_scc1 {name}_ln")
    e(f"ds_write_b128 v4, {vr(HX,4)}")
    e(f"ds_write_b128 v4, {vr(HX+4,4)} offset:512")
    e(f"ds_write_b64 v5, {vr(HX+8,2)} offset:1024")
    e("s_waitcnt lgkmcnt(0)")
    e(f"s_setprio {cfg.get('k1_sprio', 0)}")
    e("s_barrier")
    HT = 72
    for j in range(3):
        e(f"s_add_u32 s{sT}, s{sWave}, {4*j}")
        e(f"s_min_u32 s{sT}, s{sT}, 9")
        e(f"s_lshl_b32 s{sT2}, s{sT}, 7")
        e(f"v_add_u32 v{vT+j}, s{sT2}, v6")
        e(f"ds_read_b64_tr_b16 {vr(HT+4*j,2)}, v{vT+j}")
        e(f"ds_read_b64_tr_b16 {vr(HT+4*j+2,2)}, v{vT+j} offset:{4*1344}")
    def hstore():
        e(f"s_mul_i32 s{sR2}, s2, 10240")
        e(f"s_add_u32 s{sR2}, s{sR2}, {HT_OFF}")
        for j in range(3):
            e(f"s_add_u32 s{sT}, s{sWave}, {4*j}")
            e(f"s_min_u32 s{sT}, s{sT}, 9")
            e(f"s_lshl_b32 s{sT2}, s{sT}, 10")
            e(f"s_add_u32 s{sT2}, s{sT2}, s{sR2}")
            e(f"buffer_store_dwordx4 {vr(HT+4*j,4)}, v8, s[{sWS}:{sWS+3}], s{sT2} offen sc1")
    e(f"s_cmp_lg_u32 s{sCol}, 15")
    e(f"s_cbranch_scc1 {name}_cs0")
    e("s_waitcnt lgkmcnt(0)")
    hstore()
    e("s_waitcnt vmcnt(0)")
    e("s_barrier")
    e(f"s_branch {name}_attB")
    e.label(f"{name}_cs0")
    e(f"s_mov_b32 s{sT3}, 0")
    e(f"s_mov_b32 s{sR1}, 10")
    e.label(f"{name}_cs")
    e(f"s_add_u32 s{sT}, s{sM0}, s{sT3}")
    e(f"v_add_u32 v9, s{sT}, v8")
    for n in range(4): e(f"ds_read_b128 {vr(RX+4*n,4)}, v9 offset:{n*4096}")
    e(f"s_add_u32 s{sT3}, s{sT3}, 0x8000")
    e(f"s_and_b32 s{sT3}, s{sT3}, 0x1ffff")
    for n in range(4):
        e(f"s_waitcnt lgkmcnt({3-n})")
        for i in range(4):
            e(f"v_lshlrev_b32 v{RU+2*i}, 16, v{RX+4*n+i}")
            e(f"v_and_b32 v{RU+2*i+1}, 0xffff0000, v{RX+4*n+i}")
        for i in range(8): e(f"v_add_f32 v{RS+i}, v{RS+i}, v{RU+i}")
    e(f"s_cmp_lg_u32 s{sR1}, {10 - cfg.get('h_at', 7)}")
    e(f"s_cbranch_scc1 {name}_nh")
    hstore()
    e.label(f"{name}_nh")
    e(f"s_sub_u32 s{sR1}, s{sR1}, 1")
    e(f"s_cmp_eq_u32 s{sR1}, 0")
    e(f"s_cbranch_scc1 {name}_cse")
    e("s_barrier")
    e(f"s_branch {name}_cs")
    e.label(f"{name}_cse")
    e(f"v_bfe_u32 v{vT}, v{vL}, 2, 2")
    e(f"v_lshrrev_b32 v{vT+1}, 4, v{vL}")
    e(f"v_xor_b32 v{vT}, v{vT}, v{vT+1}")
    e(f"v_lshlrev_b32 v{vT}, 7, v{vT}")
    e(f"v_and_b32 v{vT+2}, 3, v{vL}")
    e(f"v_lshl_add_u32 v{vT}, v{vT+2}, 5, v{vT}")
    e(f"s_lshl_b32 s{sT}, s{sWave}, 11")
    e(f"s_add_u32 s{sT}, s{sT}, {HB}")
    e(f"v_lshl_add_u32 v{vT}, v{vT+1}, 9, v{vT}")
    e(f"v_add_u32 v{vT}, s{sT}, v{vT}")
    e(f"ds_write_b128 v{vT}, {vr(RS,4)}")
    e(f"ds_write_b128 v{vT}, {vr(RS+4,4)} offset:16")
    e(f"v_lshlrev_b32 v{vT+1}, 12, v{vH}")
    e(f"v_lshl_add_u32 v{vT+1}, v{vR}, 2, v{vT+1}")
    e(f"s_lshl_b32 s{sT}, s{sWave}, 7")
    e(f"s_add_u32 s{sT2}, s{sT}, {HB}")
    e(f"v_add_u32 v{vT+1}, s{sT2}, v{vT+1}")
    e(f"s_add_u32 s{sT2}, s{sT}, {ST_C}")
    e(f"v_lshl_add_u32 v{vT+2}, v{vR}, 2, s{sT2}")
    e("s_waitcnt lgkmcnt(0)")
    e("s_barrier")
    for i in range(8): e(f"ds_read_b32 v{RU+i}, v{vT+1} offset:{512*i}")
    e("s_waitcnt lgkmcnt(0)")
    for i in range(4): e(f"v_add_f32 v{RU+i}, v{RU+i}, v{RU+4+i}")
    e(f"v_add_f32 v{RU}, v{RU}, v{RU+1}"); e(f"v_add_f32 v{RU+2}, v{RU+2}, v{RU+3}")
    e(f"v_add_f32 v{RU}, v{RU}, v{RU+2}")
    xhalf(e, RU, RU + 1)
    e(f"ds_write_b32 v{vT+2}, v{RU}")
    e("s_waitcnt vmcnt(0) lgkmcnt(0)")
    e("s_barrier")
    e(f"s_branch {name}_attB")

    e.label(f"{name}_idle")
    e("s_load_dwordx2 s[42:43], s[0:1], 16")
    e(f"v_lshrrev_b32 v{vT}, 2, v{vL}")
    e(f"v_mul_u32_u24 v{vT+1}, 1280, v{vT}")
    e(f"v_and_b32 v{vT+2}, 3, v{vL}")
    e(f"v_lshl_add_u32 v{vT+1}, v{vT+2}, 4, v{vT+1}")
    e(f"s_lshl_b32 s{sT}, s{sRow}, 3")
    e(f"s_add_u32 s{sT}, s{sT}, s{sWave}")
    e(f"s_mul_i32 s{sT2}, s{sT}, {16*1280}")
    e("s_waitcnt lgkmcnt(0)")
    e.srd(sX, 4, 2048 * 1280)
    e.srd(sWS, 36, WS_USED)
    e.srd(sDbg, 54, 256)
    for i in range(20):
        e(f"buffer_load_dwordx4 {vr(64+4*i,4)}, v{vT+1}, s[{sX}:{sX+3}], s{sT2} offen offset:{64*i}")
    e(f"v_mov_b32 v{vT+4}, 0"); e(f"v_mov_b32 v{vT+5}, 0")
    for i in range(20):
        if i % 4 == 0: e(f"s_waitcnt vmcnt({16 - i})")
        for j in range(4):
            e(f"v_dot2_f32_bf16 v{vT+4}, v{64+4*i+j}, s{sOnes}, v{vT+4}")
            e(f"v_dot2_f32_bf16 v{vT+5}, v{64+4*i+j}, v{64+4*i+j}, v{vT+5}")
    for mod in ("quad_perm:[1,0,3,2]", "quad_perm:[2,3,0,1]"):
        for r in (vT + 4, vT + 5):
            e(f"v_add_f32_dpp v{r}, v{r}, v{r} {mod} row_mask:0xf bank_mask:0xf")
    e(f"v_mul_f32 v{vT+4}, {fhex(1/640)}, v{vT+4}")
    e(f"v_mul_f32 v{vT+5}, {fhex(1/640)}, v{vT+5}")
    e(f"v_fma_f32 v{vT+5}, -v{vT+4}, v{vT+4}, v{vT+5}")
    e(f"v_max_f32 v{vT+5}, 0, v{vT+5}")
    e(f"v_add_f32 v{vT+5}, {fhex(EPS)}, v{vT+5}")
    e(f"v_rsq_f32 v{vT+5}, v{vT+5}")
    e(f"v_lshlrev_b32 v{vT}, 3, v{vT}")
    e(f"s_lshl_b32 s{sT}, s{sT}, 7")
    e(f"s_add_u32 s{sT}, s{sT}, {RS_OFF}")
    e("s_mov_b32 exec_lo, 0x11111111"); e("s_mov_b32 exec_hi, 0x11111111")
    e(f"buffer_store_dwordx2 {vr(vT+4,2)}, v{vT}, s[{sWS}:{sWS+3}], s{sT} offen sc1")
    e("s_mov_b64 exec, -1")
    e(f"v_mov_b32 v{vT+2}, 0")
    e(f"v_lshrrev_b32 v{vT+1}, 4, v{vL}")
    e(f"v_min_u32 v{vT+1}, 2, v{vT+1}")
    e(f"v_lshlrev_b32 v{vT+3}, 4, v{vT+1}")
    e(f"v_sub_u32 v{vT+3}, v{vL}, v{vT+3}")
    e(f"v_lshlrev_b32 v{vT+3}, 7, v{vT+3}")
    e(f"v_lshl_add_u32 v{vT+3}, v{vT+1}, 15, v{vT+3}")
    e(f"v_lshrrev_b32 v{vT+1}, 1, v{vT+1}")
    e(f"v_add_u32 v{vT+1}, 11, v{vT+1}")
    e(f"v_mov_b32 v{vT+7}, s{sRow}")
    e(f"v_lshlrev_b32 v{vT+1}, v{vT+1}, v{vT+7}")
    e(f"v_add_u32 v{vT+3}, v{vT+3}, v{vT+1}")
    e(f"s_cmp_eq_u32 s{sWave}, 0")
    e(f"s_mov_b32 s{sT}, {OOB}")
    e(f"s_cselect_b32 s{sT}, {FL_Q}, s{sT}")
    e(f"buffer_store_dword v{vT+2}, v{vT+3}, s[{sWS}:{sWS+3}], s{sT} offen sc1")
    e.srd(48, 42, 640 * 1280)
    e(f"v_lshlrev_b32 v{vT+6}, 4, v{vL}")
    e(f"s_mul_i32 s{sT3}, s{sRow}, {40*1280}")
    e(f"s_lshl_b32 s{sM0}, s{sWave}, 10")
    e(f"s_add_u32 s{sT3}, s{sT3}, s{sM0}")
    e("s_waitcnt vmcnt(0)")
    e("s_barrier")
    e(f"s_lshl_b32 s{sT}, s{sRow}, 4")
    e(f"s_cmp_eq_u32 s{sWave}, 0")
    e(f"s_cselect_b32 s{sT}, s{sT}, {OOB}")
    e(f"v_mov_b32 v{vT}, 0")
    e(f"v_mov_b32 v{vT+1}, 1")
    e("s_mov_b64 exec, 1")
    e(f"buffer_store_dword v{vT+1}, v{vT}, s[{sDbg}:{sDbg+3}], s{sT} offen sc1")
    e("s_mov_b64 exec, -1")
    for n in range(7):
        e(f"s_add_u32 m0, s{sM0}, {n*8192}")
        e(f"buffer_load_dwordx4 v{vT+6}, s[48:51], s{sT3} offen lds")
        e(f"s_add_u32 s{sT3}, s{sT3}, 8192")
    e(f"v_bfe_u32 v{vT}, v{vL}, 2, 2")
    e(f"v_mul_u32_u24 v{vT}, 1280, v{vT}")
    e(f"v_lshrrev_b32 v{vT+1}, 4, v{vL}")
    e(f"v_lshl_add_u32 v{vT}, v{vT+1}, 5, v{vT}")
    e(f"v_and_b32 v{vT+1}, 3, v{vL}")
    e(f"v_lshl_add_u32 v{vT}, v{vT+1}, 3, v{vT}")
    e(f"s_lshr_b32 s{sT}, s{sRow}, 2")
    e(f"s_mul_i32 s{sT}, s{sT}, 20")
    e(f"s_and_b32 s{sT2}, s{sRow}, 3")
    e(f"s_add_u32 s{sR1}, s{sT}, s{sT2}")
    e(f"s_add_u32 s{sR1}, s{sR1}, 16")
    e(f"s_mul_i32 s{sR1}, s{sR1}, 10240")
    e(f"s_lshl_b32 s{sT2}, s{sT2}, 2")
    e(f"s_add_u32 s{sR2}, s{sT}, s{sT2}")
    e(f"s_mul_i32 s{sR2}, s{sR2}, 10240")
    gwait(e, sDbg, 0, 4, 16, 1, vT + 2)
    e("s_barrier")
    for j in range(2):
        e(f"s_add_u32 s{sT}, s{sWave}, {8*j}")
        e(f"s_min_u32 s{sT}, s{sT}, 9")
        e(f"s_lshl_b32 s{sT2}, s{sT}, 7")
        e(f"v_add_u32 v{vT+1}, s{sT2}, v{vT}")
        for o in range(5):
            r0, r1 = (20*(o >> 1) + 4*(o & 1), 20*(o >> 1) + 4*(o & 1) + 8) if o < 4 else (16, 36)
            e(f"ds_read_b64_tr_b16 {vr(64+20*j+4*o,2)}, v{vT+1} offset:{r0*1280}")
            e(f"ds_read_b64_tr_b16 {vr(64+20*j+4*o+2,2)}, v{vT+1} offset:{r1*1280}")
        e(f"s_lshl_b32 s{sT}, s{sT}, 10")
        e(f"s_add_u32 s{sT}, s{sT}, {WOT_OFF}")
        e("s_waitcnt lgkmcnt(0)")
        for o in range(5):
            if o < 4: e(f"s_add_u32 s{sT2}, s{sR2}, {o*10240}")
            else: e(f"s_mov_b32 s{sT2}, s{sR1}")
            e(f"s_add_u32 s{sT2}, s{sT2}, s{sT}")
            e(f"buffer_store_dwordx4 {vr(64+20*j+4*o,4)}, v{vT+6}, s[{sWS}:{sWS+3}], s{sT2} offen sc1")
        if j == 0:
            e(f"s_cmp_ge_u32 s{sWave}, 2")
            e(f"s_cbranch_scc1 {name}_rp")
    e.label(f"{name}_rp")
    lds_add(e, SY_ST, vT)
    e(f"s_lshl_b32 s{sXo}, s{sRow}, 4")
    e(f"s_add_u32 s{sXo}, s{sXo}, s{sCol}")
    e(f"s_lshl_b32 s{sXo}, s{sXo}, 7")
    e(f"s_add_u32 s{sXo}, s{sXo}, {FL_Q}")
    publish(e, SY_PQ, 8, sWS, sXo, vT)
    e("s_waitcnt vmcnt(0)" if cfg.get("st_pub") else ""); e.stamp(1)
    e(f"s_cmp_lt_u32 s{sWave}, 4")
    e(f"s_cbranch_scc1 {name}_attA")
    e(f"s_sub_u32 s{sWave}, s{sWave}, 4")
    e(f"s_branch {name}_gemm")

    e.label(f"{name}_comp")
    e(f"v_bfe_u32 v{vT}, v{vR}, 1, 3")
    e(f"v_xor_b32 v{vT}, v{vT}, v{vH}")
    e(f"v_lshlrev_b32 v{vT}, 4, v{vT}")
    e(f"v_lshl_add_u32 v{vT}, v{vR}, 7, v{vT}")
    e(f"s_lshl_b32 s{sT}, s{sWr}, 13")
    e(f"v_add_u32 v{vT}, s{sT}, v{vT}")
    for kk in range(4):
        e(f"v_xor_b32 v{vXa + kk}, {kk*32}, v{vT}")
        e(f"v_add_u32 v{vXa + 4 + kk}, 0x10000, v{vXa + kk}")
    e(f"v_bfe_u32 v{vT}, v{vL}, 2, 2")
    e(f"v_lshl_add_u32 v{vT+1}, v{vH}, 3, v{vT}")
    e(f"v_lshlrev_b32 v{vT+1}, 8, v{vT+1}")
    e(f"s_lshl_b32 s{sT}, s{sWc}, 1")
    e(f"v_xor_b32 v{vT}, s{sT}, v{vT}")
    e(f"v_lshl_add_u32 v{vT+1}, v{vT}, 6, v{vT+1}")
    e(f"v_bfe_u32 v{vT}, v{vL}, 4, 1")
    e(f"v_lshl_add_u32 v{vT+1}, v{vT}, 5, v{vT+1}")
    e(f"v_and_b32 v{vT}, 3, v{vL}")
    e(f"v_lshl_add_u32 v{vT+1}, v{vT}, 3, v{vT+1}")
    e(f"v_add_u32 v{vWa}, 16384, v{vT+1}")
    e(f"v_xor_b32 v{vWa+1}, 64, v{vWa}")
    e(f"v_add_u32 v{vWa+2}, 0x10000, v{vWa}")
    e(f"v_add_u32 v{vWa+3}, 0x10000, v{vWa+1}")
    e("s_waitcnt lgkmcnt(0)")
    e.srd(sWS, 36, WS_USED)

    def mainloop(isV):
        NB = 3
        def reads(j):
            if j >= 40: return [[], [], []]
            stage, kk, buf = j // 4, j % 4, j % NB
            slot = (stage % 4) * 32768
            hi = slot >= 65536
            off = slot - (65536 if hi else 0)
            X = [f"ds_read_b128 {vr(FR + buf*16 + tt*4, 4)}, v{vXa + (4 if hi else 0) + kk} offset:{off + tt*4096}" for tt in range(2)]
            W = [[f"ds_read_b64_tr_b16 {vr(FR + buf*16 + 8 + ct*4 + 2*s, 2)}, v{vWa + (2 if hi else 0) + ct} offset:{off + kk*4096 + s*1024}" for s in range(2)] for ct in range(2)]
            return [[X[0], X[1]], W[0], W[1]]
        e("s_barrier")
        for j in range(2):
            for g in reads(j):
                for x in g: e(x)
        for j in range(40):
            buf = j % NB
            def mf(tt, ct):
                acc = ACC + (tt*2 + ct) * 16
                x = vr(FR + buf*16 + tt*4, 4); w = vr(FR + buf*16 + 8 + ct*4, 4)
                A, B = (x, w) if isV else (w, x)
                e(f"v_mfma_f32_32x32x16_bf16 {vr(acc,16)}, {A}, {B}, {vr(acc,16) if j else 0}")
            nxt = reads(j + 2)
            e(f"s_waitcnt lgkmcnt({6 if j < 39 else 0})")
            mf(0, 0)
            if j % 4 == 2: e("s_barrier")
            for x in nxt[0]: e(x)
            mf(0, 1)
            for x in nxt[1]: e(x)
            mf(1, 0)
            for x in nxt[2]: e(x)
            mf(1, 1)
        e.stamp(1)
    def tokbase(tt, stride, base):
        e(f"s_lshl_b32 s{sT}, s{sRow}, 2")
        e(f"s_lshl_b32 s{sT2}, s{sWr}, 1")
        e(f"s_add_u32 s{sT}, s{sT}, s{sT2}")
        if tt: e(f"s_add_u32 s{sT}, s{sT}, 1")
        e(f"s_mul_i32 s{sT}, s{sT}, {stride}")
        e(f"s_add_u32 s{sT}, s{sT}, {base}")
    e(f"s_cmp_ge_u32 s{sCol}, 10")
    e(f"s_cbranch_scc1 {name}_v")
    e(f"s_cmp_ge_u32 s{sCol}, 5")
    e(f"s_cselect_b32 s{sScale}, 1.0, {fhex(math.log2(math.e) / math.sqrt(20.0))}")
    e(f"s_movk_i32 s{sStride}, 1280")
    e(f"s_cselect_b32 s{sStride}, 2560, s{sStride}")
    e(f"s_cselect_b32 s{sBase}, {KV_OFF}, {QF_OFF}")
    e(f"s_cselect_b32 s{sT}, 5, 0")
    e(f"s_sub_u32 s{sT}, s{sCol}, s{sT}")
    e(f"s_lshl_b32 s{sT}, s{sT}, 5")
    e(f"s_lshl_b32 s{sT2}, s{sWc}, 4")
    e(f"s_add_u32 s{sT}, s{sT}, s{sT2}")
    e(f"s_lshl_b32 s{sT3}, s{sStride}, 6")
    e(f"s_sub_u32 s{sT3}, s{sT3}, 1280")
    e(f"v_add_u32 v{vT}, s{sT}, v{vH}")
    e(f"v_lshlrev_b32 v{vT+2}, 3, v{vR}")
    for q in range(8):
        if q: e(f"v_add_u32 v{vT}, 2, v{vT}")
        e(f"v_mul_u32_u24 v{vT+1}, 0xcccd, v{vT}")
        e(f"v_lshrrev_b32 v{vT+1}, 18, v{vT+1}")
        e(f"v_mul_lo_u32 v{vT+1}, v{vT+1}, s{sT3}")
        e(f"v_lshl_add_u32 v{SO+q}, v{vT}, 8, v{vT+2}")
        e(f"v_add_u32 v{SO+q}, v{SO+q}, v{vT+1}")
    e(f"s_lshl_b32 s{sT}, s{sWr}, 8")
    e(f"s_add_u32 s{sT}, s{sT}, {ST_M}")
    e(f"v_lshl_add_u32 v12, v{vR}, 2, s{sT}")
    e(f"s_lshl_b32 s{sT}, s{sWc}, 8")
    e(f"s_add_u32 s{sT}, s{sT}, {ST_C}")
    e(f"v_lshl_add_u32 v13, v{vH}, 4, s{sT}")
    mainloop(False)
    CS = FR
    e("s_barrier")
    e(f"ds_read_b32 v{vT+4}, v12"); e(f"ds_read_b32 v{vT+5}, v12 offset:512")
    e(f"ds_read_b32 v{vT+6}, v12 offset:128"); e(f"ds_read_b32 v{vT+7}, v12 offset:640")
    for q in range(8): e(f"ds_read_b128 {vr(CS + q*4, 4)}, v13 offset:{q*32}")
    e("s_waitcnt lgkmcnt(4)")
    e(f"v_mul_f32 v{vT+5}, s{sScale}, v{vT+5}")
    e(f"v_mul_f32 v{vT+7}, s{sScale}, v{vT+7}")
    for ct in range(2):
        if ct: e("s_waitcnt lgkmcnt(0)")
        for tt in range(2):
            tokbase(tt, f"s{sStride}", f"s{sBase}")
            acc = ACC + (tt*2 + ct) * 16
            for i in range(0, 16, 2):
                e(f"v_pk_fma_f32 {vr(acc+i,2)}, {vr(vT+4+2*tt,2)}, {vr(CS+ct*16+i,2)}, {vr(acc+i,2)} op_sel_hi:[0,1,1] neg_lo:[1,0,0] neg_hi:[1,0,0]")
            for i in range(0, 16, 2):
                e(f"v_pk_mul_f32 {vr(acc+i,2)}, {vr(acc+i,2)}, {vr(vT+4+2*tt,2)} op_sel:[0,1] op_sel_hi:[1,1]")
            for q in range(4):
                e(f"v_cvt_pk_bf16_f32 v{acc+4*q}, v{acc+4*q}, v{acc+4*q+1}")
                e(f"v_cvt_pk_bf16_f32 v{acc+4*q+1}, v{acc+4*q+2}, v{acc+4*q+3}")
                e(f"buffer_store_dwordx2 {vr(acc+4*q,2)}, v{SO+ct*4+q}, s[{sWS}:{sWS+3}], s{sT} offen {ST}")
    e(f"s_branch {name}_cpub")
    e.label(f"{name}_v")
    e(f"s_sub_u32 s{sT}, s{sCol}, 10")
    e(f"s_lshl_b32 s{sT}, s{sT}, 7")
    e(f"s_lshl_b32 s{sT2}, s{sWc}, 6")
    e(f"s_add_u32 s{sT}, s{sT}, s{sT2}")
    e(f"s_mov_b32 s{sT3}, {64*2560 - 320}")
    e(f"v_add_u32 v{vT}, s{sT}, v{vR}")
    e(f"v_mul_u32_u24 v{vT+2}, 320, v{vH}")
    for ct in range(2):
        if ct: e(f"v_add_u32 v{vT}, 32, v{vT}")
        e(f"v_mul_u32_u24 v{vT+1}, 0xcccd, v{vT}")
        e(f"v_lshrrev_b32 v{vT+1}, 20, v{vT+1}")
        e(f"v_mul_lo_u32 v{vT+1}, v{vT+1}, s{sT3}")
        e(f"v_lshl_add_u32 v{SO+ct}, v{vT}, 4, v{vT+2}")
        e(f"v_add_u32 v{SO+ct}, v{SO+ct}, v{vT+1}")
    e(f"s_lshl_b32 s{sT}, s{sWr}, 8")
    e(f"s_add_u32 s{sT}, s{sT}, {ST_M}")
    e(f"v_lshl_add_u32 v12, v{vH}, 4, s{sT}")
    e(f"s_lshl_b32 s{sT}, s{sWc}, 8")
    e(f"s_add_u32 s{sT}, s{sT}, {ST_C}")
    e(f"v_lshl_add_u32 v13, v{vR}, 2, s{sT}")
    mainloop(True)
    RM, RR = FR, FR + 32
    e("s_barrier")
    e(f"ds_read_b32 v{vT+4}, v13"); e(f"ds_read_b32 v{vT+5}, v13 offset:128")
    for tt in range(2):
        if tt: e("s_waitcnt lgkmcnt(4)")
        for q in range(4):
            e(f"ds_read_b128 {vr(RM + tt*16 + q*4, 4)}, v12 offset:{tt*128 + q*32}")
            e(f"ds_read_b128 {vr(RR + tt*16 + q*4, 4)}, v12 offset:{512 + tt*128 + q*32}")
    for tt in range(2):
        e(f"s_waitcnt lgkmcnt({8 - 8*tt})")
        tokbase(tt, 2560, KV_OFF + 1280)
        for ct in range(2):
            acc = ACC + (tt*2 + ct) * 16
            for i in range(0, 16, 2):
                e(f"v_pk_fma_f32 {vr(acc+i,2)}, {vr(RM+tt*16+i,2)}, {vr(vT+4,2)}, {vr(acc+i,2)} op_sel:[0,{ct},0] op_sel_hi:[1,{ct},1] neg_lo:[1,0,0] neg_hi:[1,0,0]")
            for i in range(0, 16, 2):
                e(f"v_pk_mul_f32 {vr(acc+i,2)}, {vr(acc+i,2)}, {vr(RR+tt*16+i,2)}")
            for p in range(2):
                for j in range(4):
                    e(f"v_cvt_pk_bf16_f32 v{acc+8*p+j}, v{acc+8*p+2*j}, v{acc+8*p+2*j+1}")
                e(f"buffer_store_dwordx4 {vr(acc+8*p,4)}, v{SO+ct}, s[{sWS}:{sWS+3}], s{sT} offen offset:{640*p} sc1")
    e.label(f"{name}_cpub")
    lds_add(e, SY_ST, vT)
    e(f"s_lshl_b32 s{sXo}, s{sRow}, 4")
    e(f"s_add_u32 s{sXo}, s{sXo}, s{sCol}")
    e(f"s_lshl_b32 s{sXo}, s{sXo}, 7")
    e(f"s_add_u32 s{sXo}, s{sXo}, {FL_Q}")
    publish(e, SY_PQ, 4, sWS, sXo, vT)
    if cfg.get("st_pub"):
        e("s_waitcnt vmcnt(0)"); e.stamp(1)
```

```python
from common import *
from gemm16 import *
K2_LDS = 51200
NATT = 512
NMLP1 = 216
NMLP = 256
OOB = 0x7f000000

def gen_attn(e, top, name, cfg):
    ST = cfg.get("k2_store", "sc1")
    sWS = 8
    sWave, sHead, sQb, sKV, sT, sT2, sIt, sCur, sQo = 20, 21, 22, 23, 24, 25, 26, 27, 28
    sMV, sML, sMH = 30, 32, 34
    sOff, sRot, sLds, sCnt, sHb = 36, 37, 38, 39, 40
    vL, vR, vH = 1, 2, 3
    vK0, vK1, vV = 4, 5, 6
    vQ = vK1
    _ = 0
    vT = 7
    Q0 = 12
    Q1 = 28
    O = 36
    S = 100
    KV = 132
    def K0(b): return KV + 14*b
    def V0(b): return KV + 14*b + 4
    def V1(b): return KV + 14*b + 8
    def K1(b): return KV + 14*b + 12
    M = 160
    lK0, lK1, lV = 164, 165, 166
    lQ = lK1
    _ = 0
    srd = f"s[{sWS}:{sWS+3}]"
    sB0, sB1, sSy, sPub = 48, 49, 50, 51
    e.label(f"{top}_attA")
    e(f"s_mov_b32 s{sB0}, 0"); e(f"s_mov_b32 s{sB1}, 20480"); e(f"s_mov_b32 s{sSy}, {SY_A}"); e(f"s_mov_b32 s{sPub}, {SY_PA}")
    e(f"s_branch {name}_in")
    e.label(f"{top}_attB")
    e.stamp(1)
    e(f"s_mov_b32 s{sB0}, 40960"); e(f"s_mov_b32 s{sB1}, 102400"); e(f"s_mov_b32 s{sSy}, {SY_B}"); e(f"s_mov_b32 s{sPub}, {SY_PB}")
    e("s_add_u32 s2, s2, 256")
    e.label(f"{name}_in")
    SP2 = cfg.get("sp_w2", 0)
    if SP2:
        e("s_load_dwordx2 s[56:57], s[0:1], 48")
        e(f"s_lshl_b32 s{sT}, s2, 2")
        e(f"s_add_u32 s{sT}, s{sT}, s{sWave}")
        e(f"s_mul_i32 s{sT}, s{sT}, 3456")
        e("s_waitcnt lgkmcnt(0)")
        e(f"s_add_u32 s56, s56, s{sT}")
        e(f"s_addc_u32 s57, s57, 0")
    e.srd(sWS, 36, WS_USED)
    def ldsbase(dst, w):
        e(f"s_and_b32 s{dst}, s{w}, 1")
        e(f"s_mul_i32 s{dst}, s{dst}, 10240")
        e(f"s_add_u32 s{dst}, s{dst}, s{sB0}")
        e(f"s_lshr_b32 s{S_TMP}, s{w}, 1")
        e(f"s_mul_i32 s{S_TMP}, s{S_TMP}, s{sB1}")
        e(f"s_add_u32 s{dst}, s{dst}, s{S_TMP}")
    e(f"v_lshlrev_b32 v{vK0}, 4, v{vL}")
    e(f"v_lshlrev_b32 v{vQ}, 3, v{vL}")
    e(f"s_and_b32 s{sHead}, s2, 7")
    e(f"s_lshl_b32 s{sHead}, s{sHead}, 2")
    e(f"s_bfe_u32 s{sT}, s2, 0x20003")
    e(f"s_add_u32 s{sHead}, s{sHead}, s{sT}")
    e(f"s_lshr_b32 s{sQb}, s2, 5")
    e(f"s_mov_b32 s{sMV}, 0x000fffff"); e(f"s_mov_b32 s{sMV+1}, 0x000fffff")
    e(f"s_mov_b32 s{sML}, -1"); e(f"s_mov_b32 s{sML+1}, 0")
    e(f"s_mov_b32 s{sMH}, 0"); e(f"s_mov_b32 s{sMH+1}, -1")
    e(f"s_lshl_b32 s{sT}, s{sHead}, 6")
    e(f"s_lshl_b32 s{sT2}, s{sQb}, 2")
    e(f"s_add_u32 s{sT2}, s{sT2}, s{sT}")
    e(f"s_mul_i32 s{sQo}, s{sT2}, 1280")
    e(f"s_mul_i32 s{sHb}, s{sT}, 2560")
    e(f"s_add_u32 s{sHb}, s{sHb}, {KV_OFF}")
    e(f"s_mul_i32 s{sT}, s{sWave}, {16*2560}")
    e(f"s_add_u32 s{sKV}, s{sHb}, s{sT}")
    e(f"s_mul_i32 s{sT}, s{sQb}, 2560")
    e(f"s_add_u32 s{sCur}, s{sHb}, s{sT}")
    ldsbase(sLds, sWave)
    e(f"s_mov_b32 s{sRot}, s{sQb}")
    e(f"s_mov_b32 s{sCnt}, 0")
    for t in range(4):
        e(f"v_mov_b32 v{Q1+2*t}, 0"); e(f"v_mov_b32 v{Q1+2*t+1}, 0")
    e(f"v_mov_b32 v{K1(1)}, 0x3f803f80"); e(f"v_mov_b32 v{K1(1)+1}, 0x3f80")
    def loadK(b, soff, tag):
        e.vm(f"buffer_load_dwordx2 {vr(K0(b),2)}, v{vQ}, {srd}, s{soff} offen sc1", tag)
        e.vm(f"buffer_load_dwordx2 {vr(K0(b)+2,2)}, v{vQ}, {srd}, s{soff} offen offset:512 sc1", tag)
        e(f"s_mov_b64 exec, s[{sML}:{sML+1}]")
        e.vm(f"buffer_load_dwordx2 {vr(K1(b),2)}, v{vK1}, {srd}, s{soff} offen offset:1024 sc1", tag)
        e("s_mov_b64 exec, -1")
    def dma(slot, tag="d", skip=None):
        if skip:
            e(f"s_cmp_ge_u32 s{sCnt}, 16")
            e(f"s_cbranch_scc1 {skip}")
        e(f"s_mul_i32 s{sOff}, s{sRot}, 2560")
        e(f"s_add_u32 s{sOff}, s{sOff}, s{sKV}")
        e(f"s_add_u32 m0, s{sLds}, {slot*2560}")
        e(f"s_add_u32 s{sRot}, s{sRot}, 1")
        e.vm(f"buffer_load_dwordx4 v{vK0}, {srd}, s{sOff} offen sc1 lds", tag)
        e.vm(f"buffer_load_dwordx4 v{vK0}, {srd}, s{sOff} offen offset:1024 sc1 lds", tag)
        e(f"s_mov_b64 exec, s[{sML}:{sML+1}]")
        e.vm(f"buffer_load_dwordx4 v{vK0}, {srd}, s{sOff} offen offset:2048 sc1 lds", tag)
        e("s_mov_b64 exec, -1")
        e(f"s_and_b32 s{sRot}, s{sRot}, 15")
        e(f"s_add_u32 s{sCnt}, s{sCnt}, 1")
        if skip and SP2:
            e(f"s_cmp_ge_u32 s{sCnt}, 15")
            e(f"s_cbranch_scc1 {skip}")
            for n in range(6): e(f"s_load_dword s55, s[56:57], {64*n}")
            e("s_add_u32 s56, s56, 384")
            e("s_addc_u32 s57, s57, 0")
        if skip: e.label(skip)
    def ldsread(slot, b):
        o = slot * 2560
        e(f"ds_read2st64_b64 {vr(K0(b),4)}, v{lQ} offset0:{o//512} offset1:{o//512+1}")
        e(f"s_mov_b64 exec, s[{sML}:{sML+1}]")
        e(f"ds_read_b64 {vr(K1(b),2)}, v{lK1} offset:{o+1024}")
        e(f"s_mov_b64 exec, s[{sMV}:{sMV+1}]")
        e(f"ds_read_b128 {vr(V0(b),4)}, v{lV} offset:{o+1280}")
        e(f"ds_read_b128 {vr(V1(b),4)}, v{lV} offset:{o+1920}")
        e("s_mov_b64 exec, -1")
    def QK1(sb, t, kb): return f"v_mfma_f32_32x32x16_bf16 {vr(S+16*sb,16)}, {vr(K0(kb),4)}, {vr(Q0+4*t,4)}, 0"
    def QK2(sb, t, kb): return f"v_mfma_f32_32x32x8bf16_1k {vr(S+16*sb,16)}, {vr(K1(kb),2)}, {vr(Q1+2*t,2)}, {vr(S+16*sb,16)}"
    def PV1(sb, t, kb): return f"v_mfma_f32_32x32x16_bf16 {vr(O+16*t,16)}, {vr(V0(kb),4)}, {vr(S+16*sb,4)}, {vr(O+16*t,16)}"
    def PV2(sb, t, kb): return f"v_mfma_f32_32x32x16_bf16 {vr(O+16*t,16)}, {vr(V1(kb),4)}, {vr(S+16*sb+8,4)}, {vr(O+16*t,16)}"
    def tilemax(s, dst, first):
        if first:
            e(f"v_max3_f32 v{dst}, v{s}, v{s+1}, v{s+2}"); rest = list(range(3, 16))
        else:
            rest = list(range(16))
        while len(rest) >= 2:
            e(f"v_max3_f32 v{dst}, v{dst}, v{s+rest[0]}, v{s+rest[1]}"); rest = rest[2:]
        if rest: e(f"v_max_f32 v{dst}, v{dst}, v{s+rest[0]}")
    def setslots(t, m):
        e(f"v_sub_f32 v{vT}, 0, v{m}")
        e(f"v_cvt_pk_bf16_f32 v{vT+1}, v{vT}, v{vT}")
        e(f"v_and_b32 v{vT+2}, 0xffff0000, v{vT+1}")
        e(f"v_sub_f32 v{vT}, v{vT}, v{vT+2}")
        e(f"v_cvt_pk_bf16_f32 v{Q1+2*t}, v{vT+2}, v{vT}")
        e(f"v_and_b32 v{vT+2}, 0xffff0000, v{Q1+2*t}")
        e(f"v_sub_f32 v{vT}, v{vT}, v{vT+2}")
        e(f"v_cvt_pk_bf16_f32 v{Q1+2*t+1}, v{vT}, 0")
    e(f"v_lshrrev_b32 v{vH}, 5, v{vL}")
    e(f"v_mul_u32_u24 v{vV}, 320, v{vH}")
    e(f"v_lshl_add_u32 v{vV}, v{vR}, 4, v{vV}")
    e(f"v_add_u32 v{lK0}, s{sLds}, v{vK0}")
    e(f"v_add_u32 v{lK1}, s{sLds}, v{vK1}")
    e(f"v_add_u32 v{lV}, s{sLds}, v{vV}")
    e(f"v_cmp_eq_u32 vcc, 20, v{vR}")
    e(f"v_mov_b32 v{vT}, 0x3f803f80")
    e(f"v_mov_b32 v{K1(0)}, 0x3f803f80"); e(f"v_mov_b32 v{K1(0)+1}, 0x3f80")
    for b in range(2):
        for i in range(8):
            e(f"v_cndmask_b32 v{V0(b)+i}, 0, v{vT}, vcc")
    for i in range(4):
        e(f"v_mov_b32 v{S+16+8+i}, 0")
    e(f"s_lshr_b32 s{sT}, s2, 8")
    e(f"s_cmp_lg_u32 s{sT}, 1")
    e(f"s_cbranch_scc1 {name}_np")
    e(f"s_cmp_lg_u32 s{sWave}, 0")
    e(f"s_cbranch_scc1 {name}_np")
    lds_wait(e, SY_PQ, "s58", vT)
    e(f"s_mul_i32 s{sT}, s{sHead}, 20")
    e(f"v_bfe_u32 v{vT}, v{vL}, 4, 1")
    e(f"v_mul_u32_u24 v{vT}, 19, v{vT}")
    e(f"v_add_u32 v{vT}, s{sT}, v{vT}")
    e(f"v_lshrrev_b32 v{vT+2}, 7, v{vT}")
    e(f"v_mul_u32_u24 v{vT}, 5, v{vH}")
    e(f"v_add3_u32 v{vT}, v{vT}, v{vT+2}, 5")
    e(f"v_and_b32 v{vT+1}, 15, v{vL}")
    e(f"v_lshl_add_u32 v{vT}, v{vT+1}, 4, v{vT}")
    e(f"v_lshlrev_b32 v{vT}, 7, v{vT}")
    e(f"s_mov_b32 s{sT}, {FL_Q}")
    e(f"v_lshlrev_b32 v{vT+1}, 3, v{vH}")
    e(f"v_sub_u32 v{vT+1}, s{sQb}, v{vT+1}")
    e(f"v_lshl_add_u32 v{vT+2}, v{vT+1}, 4, v{vT+2}")
    e(f"v_lshlrev_b32 v{vT+2}, 7, v{vT+2}")
    gwait(e, sWS, f"s{sT}", None, 64, 1, vT, cfg.get("q_sleep", 2), second=vT + 2)
    lds_add(e, SY_READY, vT)
    e.label(f"{name}_np")
    lds_wait(e, SY_READY, 1, vT)
    e(f"s_setprio {cfg.get('attn_prio0', 3)}")
    e.stamp(2)
    e.vmq = []
    loadK(1, sCur, "q")
    for t in range(4):
        e(f"s_xor_b32 s{44+t}, s{sWave}, {t}")
        e(f"s_mul_i32 s{44+t}, s{44+t}, 1280")
        e(f"s_add_u32 s{44+t}, s{44+t}, s{sQo}")
        e.vm(f"buffer_load_dwordx2 {vr(Q0+4*t,2)}, v{vQ}, {srd}, s{44+t} offen sc1", "q")
        e.vm(f"buffer_load_dwordx2 {vr(Q0+4*t+2,2)}, v{vQ}, {srd}, s{44+t} offen offset:512 sc1", "q")
    e(f"s_mov_b64 exec, s[{sML}:{sML+1}]")
    for t in range(4):
        e.vm(f"buffer_load_dwordx2 {vr(Q1+2*t,2)}, v{vK1}, {srd}, s{44+t} offen offset:1024 sc1", "q")
    e("s_mov_b64 exec, -1")
    for s in range(4): dma(s, f"d{s}")
    lds_add(e, SY_LD, vT)
    e.vmwait("q")
    for t in range(4):
        e(f"v_mfma_f32_32x32x16_bf16 {vr(O+16*t,16)}, {vr(K0(1),4)}, {vr(Q0+4*t,4)}, 0")
    for t in range(4):
        e(f"v_mfma_f32_32x32x8bf16_1k {vr(O+16*t,16)}, {vr(K1(1),2)}, {vr(Q1+2*t,2)}, {vr(O+16*t,16)}")
    e.vmwait("d0")
    ldsread(0, 0)
    for t in range(4):
        tilemax(O + 16*t, M + t, True)
    for t in range(4):
        e(f"v_mov_b32 v{S+t}, v{M+t}")
    for t in range(4):
        e(f"v_permlane32_swap_b32 v{M+t}, v{S+t}")
    e(f"s_mov_b64 exec, s[{sMH}:{sMH+1}]")
    for t in range(4):
        e(f"v_max_f32 v{M+t}, v{M+t}, v{S+t}")
        setslots(t, M + t)
    e("s_mov_b64 exec, -1")
    e("s_waitcnt lgkmcnt(0)")
    e(QK1(0, 0, 0)); e(QK2(0, 0, 0))
    dma(0, "d4")
    for t in range(4):
        e(f"v_mfma_f32_32x32x8bf16_1k {vr(O+16*t,16)}, {vr(S+24,2)}, {vr(S+24,2)}, 0")
    e.stamp(3)
    e(f"s_mov_b32 s{sIt}, 4")
    AP = cfg.get("attn_prio", [3, 2, 1, 0])
    e(f"s_setprio {AP[0]}")
    e(".p2align 6")
    e.label(f"{name}_loop")
    for kt in range(4):
        kb = kt % 2
        for q in range(4):
            sb = q % 2; s = S + 16*sb
            ex = lambda i: f"v_exp_f32 v{s+i}, v{s+i}"
            cv = lambda i: f"v_cvt_pk_bf16_f32 v{s+(i//4)*8+i%4}, v{s+2*i}, v{s+2*i+1}"
            pq, pkb = (q - 1, kb) if q > 0 else (3, 1 - kb)
            nq, nkb = (q + 1, kb) if q < 3 else (0, 1 - kb)
            e(ex(0)); e(ex(1)); e(PV2(1 - sb, pq, pkb))
            if q == 1 and not cfg.get("attn_nolds"):
                if kt < 3:
                    e(f"s_cmp_eq_u32 s{sIt}, 1")
                    e(f"s_cbranch_scc0 {name}_w{kt}")
                    e(f"s_waitcnt vmcnt({6 - 3*kt})")
                    e.label(f"{name}_w{kt}")
                e("s_waitcnt vmcnt(9)")
                ldsread((kt + 1) % 4, 1 - kb)
            e(ex(2)); e(ex(3)); e(cv(0)); e(cv(1)); e(ex(4))
            if q == 3:
                e("s_waitcnt lgkmcnt(0)")
            e(QK1(1 - sb, nq, nkb))
            if q == 3 and not cfg.get("attn_nodma"):
                dma((kt + 1) % 4, skip=f"{name}_sk{kt}")
            e(ex(5)); e(ex(6)); e(ex(7)); e(cv(2)); e(cv(3)); e(ex(8))
            e(QK2(1 - sb, nq, nkb))
            e(ex(9)); e(ex(10)); e(ex(11)); e(cv(4)); e(cv(5)); e(ex(12)); e(ex(13))
            e(PV1(sb, q, kb))
            if kt == 3 and q == 3:
                if True:
                    e(f"s_cmp_eq_u32 s{sIt}, 4")
                    e(f"s_setprio {AP[1]}")
                    e(f"s_cbranch_scc1 {name}_pr")
                    e(f"s_cmp_eq_u32 s{sIt}, 3")
                    e(f"s_setprio {AP[2]}")
                    e(f"s_cbranch_scc1 {name}_pr")
                    e(f"s_setprio {AP[3]}")
                    e.label(f"{name}_pr")
                e(f"s_sub_u32 s{sIt}, s{sIt}, 1")
                e(f"s_cmp_lg_u32 s{sIt}, 0")
            e(ex(14)); e(ex(15)); e(cv(6)); e(cv(7))
    e(f"s_cbranch_scc1 {name}_loop")
    e(PV2(1, 3, 1))
    e("s_setprio 3")
    e.stamp(4)
    for t in range(1, 4):
        for j in range(3):
            e(f"ds_write_b128 v{lK0}, {vr(O+16*t+4*j,4)} offset:{(t-1)*3072 + j*1024}")
    for t in range(1, 4):
        e(f"s_xor_b32 s{sT2}, s{sWave}, {t}")
        ldsbase(sT, sT2)
        e(f"v_add_u32 v{M+t}, s{sT}, v{vK0}")
    e(f"s_lshl_b32 s{sIt}, s{sQb}, 2")
    e(f"s_add_u32 s{sIt}, s{sIt}, s{sWave}")
    e(f"s_lshl_b32 s{sIt}, s{sIt}, 8")
    e(f"s_lshl_b32 s{sRot}, s{sHead}, 14")
    e(f"s_add_u32 s{sRot}, s{sRot}, s{sIt}")
    e(f"s_add_u32 s{sRot}, s{sRot}, {OR_OFF}")
    e(f"s_lshl_b32 s{sCur}, s{sHead}, 16")
    e(f"s_lshl_b32 s{sIt}, s{sIt}, 1")
    e(f"s_add_u32 s{sCur}, s{sCur}, s{sIt}")
    e(f"s_add_u32 s{sCur}, s{sCur}, {O_OFF}")
    gbar(e, f"s{sSy}", vT)
    for t in range(1, 4):
        for j in (2, 0, 1):
            e(f"ds_read_b128 {vr(O+16*t+4*j,4)}, v{M+t} offset:{(t-1)*3072 + j*1024}")
    lds_add(e, SY_DONE, vT)
    for t in range(1, 4):
        e(f"s_waitcnt lgkmcnt({10 - 3*t})")
        for i in range(12):
            e(f"v_add_f32 v{O+i}, v{O+i}, v{O+16*t+i}")
    def bcast_l():
        e(f"v_mov_b32 v{vT+2}, v{O+8}")
        e(f"v_mov_b32 v{vT+3}, v{O+8}")
        e(f"v_permlane32_swap_b32 v{vT+2}, v{vT+3}")
    bcast_l()
    e(f"v_add_f32 v{vT+2}, |v{O}|, |v{O+1}|")
    for i in range(2, 12):
        e(f"v_add_f32 v{vT+2}, v{vT+2}, |v{O+i}|")
    e(f"v_mov_b32 v{vT+4}, 0x7f000000")
    e(f"v_cmp_nlt_f32 vcc, v{vT+2}, v{vT+4}")
    e(f"s_mov_b64 s[42:43], vcc")
    e(f"v_mov_b32 v{vT+4}, 0x5f800000")
    e(f"v_cmp_nle_f32 vcc, v{vT+3}, v{vT+4}")
    e(f"s_or_b64 s[42:43], s[42:43], vcc")
    e(f"v_cmp_nge_f32 vcc, v{vT+3}, 0.5")
    e(f"s_or_b64 s[42:43], s[42:43], vcc")
    if cfg.get("force_fallback"): e(f"s_branch {name}_fallback")
    e(f"s_cbranch_scc1 {name}_fallback")
    e.label(f"{name}_fin")
    e(f"v_rcp_f32 v{vT+3}, v{vT+3}")
    e(f"v_lshlrev_b32 v{vT}, 4, v{vR}")
    e(f"v_lshl_add_u32 v{vT+1}, v{vH}, 15, v{vT}")
    for i in range(12):
        e(f"v_mul_f32 v{O+i}, v{O+i}, v{vT+3}")
    for i in range(6):
        e(f"v_cvt_pk_bf16_f32 v{O+i}, v{O+2*i}, v{O+2*i+1}")
    e(f"buffer_store_dwordx4 {vr(O,4)}, v{vT+1}, {srd}, s{sCur} offen sc1")
    e(f"s_mov_b64 exec, s[{sML}:{sML+1}]")
    e(f"buffer_store_dwordx2 {vr(O+4,2)}, v{vQ}, {srd}, s{sRot} offen sc1")
    e.stamp(5)
    e(f"s_lshl_b32 s{sT}, s{sQb}, 5")
    e(f"s_add_u32 s{sT}, s{sT}, s{sHead}")
    e(f"s_lshl_b32 s{sT}, s{sT}, 7")
    e(f"s_add_u32 s{sT}, s{sT}, {FL_O}")
    publish(e, f"s{sPub}", 4, sWS, sT, vT)
    e.stamp_out(6, 1, sWS, sWave)
    e("s_endpgm")
    e.label(f"{name}_fallback")
    e(f"s_mul_i32 s{sT}, s{sWave}, 1280")
    e(f"s_add_u32 s{sT}, s{sT}, s{sQo}")
    e(f"v_mov_b32 v{Q1}, 0"); e(f"v_mov_b32 v{Q1+1}, 0")
    e(f"buffer_load_dwordx2 {vr(Q0,2)}, v{vQ}, {srd}, s{sT} offen sc1")
    e(f"buffer_load_dwordx2 {vr(Q0+2,2)}, v{vQ}, {srd}, s{sT} offen offset:512 sc1")
    e(f"s_mov_b64 exec, s[{sML}:{sML+1}]")
    e(f"buffer_load_dwordx2 {vr(Q1,2)}, v{vK1}, {srd}, s{sT} offen offset:1024 sc1")
    e("s_mov_b64 exec, -1")
    e(f"v_mov_b32 v{M}, 0xff800000")
    e(f"s_mov_b32 s{sOff}, s{sHb}")
    e(f"s_mov_b32 s{sIt}, 64")
    e.label(f"{name}_f1")
    loadK(0, sOff, "x")
    e("s_waitcnt vmcnt(0)")
    e(QK1(0, 0, 0)); e(QK2(0, 0, 0))
    tilemax(S, M, False)
    e(f"s_add_u32 s{sOff}, s{sOff}, 2560")
    e(f"s_sub_u32 s{sIt}, s{sIt}, 1")
    e(f"s_cmp_lg_u32 s{sIt}, 0")
    e(f"s_cbranch_scc1 {name}_f1")
    xhalf(e, M, vT, "v_max_f32")
    e(f"s_mov_b64 exec, s[{sMH}:{sMH+1}]")
    setslots(0, M)
    e("s_mov_b64 exec, -1")
    for i in range(16): e(f"v_mov_b32 v{O+i}, 0")
    e(f"s_mov_b32 s{sOff}, s{sHb}")
    e(f"s_mov_b32 s{sIt}, 64")
    e.label(f"{name}_f2")
    loadK(0, sOff, "x")
    e(f"s_mov_b64 exec, s[{sMV}:{sMV+1}]")
    e(f"buffer_load_dwordx4 {vr(V0(0),4)}, v{vV}, {srd}, s{sOff} offen offset:1280 sc1")
    e(f"buffer_load_dwordx4 {vr(V1(0),4)}, v{vV}, {srd}, s{sOff} offen offset:1920 sc1")
    e("s_mov_b64 exec, -1")
    e("s_waitcnt vmcnt(0)")
    e(QK1(0, 0, 0)); e(QK2(0, 0, 0))
    for i in range(16): e(f"v_exp_f32 v{S+i}, v{S+i}")
    for i in range(8): e(f"v_cvt_pk_bf16_f32 v{S+(i//4)*8+i%4}, v{S+2*i}, v{S+2*i+1}")
    e(PV1(0, 0, 0)); e(PV2(0, 0, 0))
    e(f"s_add_u32 s{sOff}, s{sOff}, 2560")
    e(f"s_sub_u32 s{sIt}, s{sIt}, 1")
    e(f"s_cmp_lg_u32 s{sIt}, 0")
    e(f"s_cbranch_scc1 {name}_f2")
    e("s_nop 15")
    bcast_l()
    e(f"s_branch {name}_fin")

def gen_mlp(e, top, name, cfg):
    sWS, sW, sB1 = 8, 12, 16
    sWave, sDt, sFt, sT, sT2, sIt, sPo, sWo, sM0, sPb, sWb, sKw, sKp, sN, sW2, sG = range(20, 36)
    vP, vWs, vB, vT = 1, 2, 3, 7
    ACC, WF, PF = 12, 92, 124
    g = G16(e, ACC, WF, PF, vP, vWs, vB, vT, sWave, sM0, sT)
    GB, GR = 65536, 16384
    bar = lambda: gbar(e, SY_G, 164)
    def pf_w(ptr, size, rs, colshift_code, qrows, first, nunits, lab):
        e.srd(44, ptr, size)
        colshift_code()
        e(f"s_lshr_b32 s{sKp}, s{sG}, 3")
        e(f"s_sub_u32 s{sKp}, s{sKp}, 27")
        e(f"s_lshl_b32 s{sKp}, s{sKp}, 2")
        e(f"s_add_u32 s{sKp}, s{sKp}, s{sWave}")
        e(f"s_add_u32 s{sKp}, s{sKp}, {first}")
        e(f"v_bfe_u32 v{vT}, v0, 3, 3")
        e(f"v_mul_u32_u24 v{vT}, {rs}, v{vT}")
        e(f"v_and_b32 v{vT+1}, 7, v0")
        e(f"v_lshl_add_u32 v{vT}, v{vT+1}, 7, v{vT}")
        e.label(lab)
        e(f"s_lshr_b32 s{sT}, s{sKp}, 4")
        e(f"s_lshl_b32 s{sT}, s{sT}, 2")
        e(f"s_and_b32 s{sT2}, s{sKp}, 3")
        e(f"s_add_u32 s{sT}, s{sT}, s{sT2}")
        e(f"s_lshl_b32 s{sT}, s{sT}, 3")
        e(f"s_bfe_u32 s{sT2}, s{sKp}, 0x20002")
        e(f"s_mul_i32 s{sT2}, s{sT2}, {qrows}")
        e(f"s_add_u32 s{sT}, s{sT}, s{sT2}")
        e(f"s_mul_i32 s{sT}, s{sT}, {rs}")
        e(f"s_add_u32 s{sT}, s{sT}, s{sKw}")
        e(f"buffer_load_dword v{PF}, v{vT}, s[44:47], s{sT} offen")
        e(f"s_waitcnt vmcnt({cfg.get('pf_depth', 2)})")
        e(f"s_add_u32 s{sKp}, s{sKp}, 20")
        e(f"s_cmp_lt_u32 s{sKp}, {nunits}")
        e(f"s_cbranch_scc1 {lab}")
    def pf_w1():
        def col():
            e(f"s_bfe_u32 s{sKw}, s{sG}, 0x20001")
            e(f"s_mul_i32 s{sKw}, s{sKw}, 27")
            e(f"s_lshr_b32 s{sKw}, s{sKw}, 2")
            e(f"s_lshl_b32 s{sKw}, s{sKw}, 7")
        pf_w(6, 2048 * 3456, 3456, col, 512, 16 * cfg.get("pf1_first", 4), 256, name + "_pf1")
    def pf_w2():
        def col():
            e(f"s_bfe_u32 s{sKw}, s{sG}, 0x20001")
            e(f"s_lshl_b32 s{sKw}, s{sKw}, 10")
        pf_w(42, 1728 * 4096, 4096, col, 440, 0, 16 * cfg.get("pf2_w2"), name + "_pf2")
    e.label(f"{top}_gemm")
    e(f"s_setprio {cfg.get('mlp_prio_pro', 0)}")
    e("s_load_dwordx2 s[6:7], s[0:1], 32")
    e("s_load_dwordx2 s[38:39], s[0:1], 40")
    e("s_load_dwordx2 s[42:43], s[0:1], 48")
    e("s_load_dwordx2 s[52:53], s[0:1], 0")
    e("s_load_dwordx4 s[48:51], s[0:1], 56")
    e.srd(sWS, 36, WS_USED)
    e(f"s_mov_b32 s{sG}, s2")
    e("s_add_u32 s2, s2, 512")
    g.setup_p(10240)
    e(f"s_mul_i32 s{sM0}, s{sWave}, {GR}")
    e(f"s_add_u32 s{sM0}, s{sM0}, {GB}")
    def wait_h():
        e(f"s_lshl_b32 s{sT}, s{sWave}, 13")
        e(f"s_add_u32 s{sT}, s{sT}, {FL_Q}")
        e("s_setprio 3")
        lds_wait(e, SY_READY, 1, 164)
        gwait(e, sWS, f"s{sT}", 7, 64, 1, 164)
        e(f"s_setprio {cfg.get('mlp_prio_ld', 0)}")
        bar()
    e(f"s_cmp_ge_u32 s{sG}, {NMLP1}")
    e(f"s_cbranch_scc1 {name}_skip1")
    e(f"s_and_b32 s{sT2}, s{sG}, 7")
    e(f"s_lshr_b32 s{sT}, s{sG}, 3")
    e(f"s_lshr_b32 s{sDt}, s{sT2}, 1")
    e(f"s_mul_i32 s{sDt}, s{sDt}, 27")
    e(f"s_add_u32 s{sT}, s{sT}, s{sDt}")
    e(f"s_lshr_b32 s{sFt}, s{sT}, 2")
    e(f"s_and_b32 s{sT}, s{sT}, 3")
    e(f"s_and_b32 s{sDt}, s{sT2}, 1")
    e(f"s_lshl_b32 s{sDt}, s{sDt}, 2")
    e(f"s_add_u32 s{sDt}, s{sDt}, s{sT}")
    e(f"s_lshl_b32 s{sKw}, s{sT}, 2")
    e(f"s_mul_i32 s{sT}, s{sFt}, 5")
    e(f"s_lshr_b32 s{sT}, s{sT}, 1")
    e(f"s_add_u32 s{sKw}, s{sKw}, s{sT}")
    e(f"s_and_b32 s{sKw}, s{sKw}, {15 if cfg.get('mlp_rot', 0) else 0}")
    e(f"s_mov_b32 s{sKp}, s{sKw}")
    e(f"s_mov_b32 s{sN}, 16")
    e(f"s_mul_i32 s{sPb}, s{sWave}, {64*10240}")
    e(f"s_mul_i32 s{sT}, s{sDt}, 1280")
    e(f"s_add_u32 s{sPb}, s{sPb}, s{sT}")
    e(f"s_add_u32 s{sPb}, s{sPb}, {HT_OFF}")
    g.setup_w(3456)
    e(f"s_mul_i32 s{sWb}, s{sWave}, {512*3456}")
    e(f"s_lshl_b32 s{sT}, s{sFt}, 7")
    e(f"s_add_u32 s{sWb}, s{sWb}, s{sT}")
    g.setup_tr()
    e("s_waitcnt lgkmcnt(0)")
    e.srd(sW, 6, 2048 * 3456)
    e.srd(sB1, 38, 1728 * 2)
    e(f"s_setprio {cfg.get('mlp_prio_ld', 0)}")
    e.vmq = []
    c1 = Stream(g, 16, sW, sWS, 3456, 40960, "sc1", True, sKw, sKp, sN, sWb, sPb, sWo, sPo, sW2, False)
    GS = cfg.get("gstart", 1)
    wait_h()
    if GS == 1: lds_wait(e, SY_LD, cfg.get("gld", 4), 164)
    if GS >= 2: lds_wait(e, SY_ST, 4, 164)
    if GS == 2:
        c1.preW()
        lds_wait(e, SY_LD, cfg.get("gld", 4), 164)
        c1.preP()
    else:
        for i in range(3):
            c1.advW(i)
            for n in range(4): c1.dmaW(i, n)
            if i < 2:
                c1.advP(i)
                for td in range(5): c1.ldP(i, td)
    if GS == 4: lds_wait(e, SY_LD, cfg.get("gld", 4), 164)
    e(f"s_lshl_b32 s{sT}, s{sWave}, 5")
    e(f"s_lshl_b32 s{sT2}, s{sFt}, 7")
    e(f"s_add_u32 s{sT}, s{sT}, s{sT2}")
    e(f"v_bfe_u32 v{vT}, v0, 4, 2")
    e(f"v_lshlrev_b32 v{vT}, 3, v{vT}")
    e.vm(f"buffer_load_dwordx2 v[10:11], v{vT}, s[{sB1}:{sB1+3}], s{sT} offen", "b")
    e.stamp(1)
    e(f"s_setprio {cfg.get('mlp_prio_loop', 2)}")
    c1.run()
    e(f"s_setprio {cfg.get('mlp_prio_epi', 3)}")
    e.stamp(2)
    g.reduce(GR, GB, bar)
    c0 = -2.0 * math.log2(math.e) * math.sqrt(2.0 / math.pi)
    cc = c0 * 0.044715
    e(f"s_mov_b32 s{sIt}, {fhex(cc)}")
    e(f"v_mov_b32 v{vT+1}, {fhex(c0)}")
    R = ACC; T = ACC + 20; BF = ACC + 40
    for j in range(2):
        e(f"v_lshlrev_b32 v{BF+2*j}, 16, v{10+j}")
        e(f"v_and_b32 v{BF+2*j+1}, 0xffff0000, v{10+j}")
    e(f"v_bfe_u32 v{vT}, v0, 5, 1")
    e(f"v_mul_u32_u24 v{vB}, 10240, v{vT}")
    e(f"v_and_b32 v{vT}, 15, v0")
    e(f"v_lshl_add_u32 v{vB}, v{vT}, 4, v{vB}")
    e(f"v_bfe_u32 v{vT}, v0, 4, 1")
    e(f"v_lshl_add_u32 v{vB}, v{vT}, 3, v{vB}")
    e(f"s_lshl_b32 s{sT}, s{sFt}, 2")
    e(f"s_add_u32 s{sT}, s{sT}, s{sWave}")
    e(f"s_mul_i32 s{sT}, s{sT}, 20480")
    e(f"s_mul_i32 s{sT2}, s{sDt}, 1280")
    e(f"s_add_u32 s{sT}, s{sT}, s{sT2}")
    e(f"s_add_u32 s{sT}, s{sT}, {U_OFF}")
    for lo, hi in ((0, 8), (8, 20)):
        rg = range(lo, hi)
        for i in rg: e(f"v_add_f32 v{R+i}, v{R+i}, v{BF+i%4}")
        for i in rg: e(f"v_mul_f32 v{T+i}, v{R+i}, v{R+i}")
        for i in rg: e(f"v_fma_f32 v{T+i}, v{T+i}, s{sIt}, v{vT+1}")
        for i in rg: e(f"v_mul_f32 v{T+i}, v{T+i}, v{R+i}")
        for i in rg: e(f"v_exp_f32 v{T+i}, v{T+i}")
        for i in rg: e(f"v_add_f32 v{T+i}, 1.0, v{T+i}")
        for i in rg: e(f"v_rcp_f32 v{T+i}, v{T+i}")
        for i in rg: e(f"v_mul_f32 v{R+i}, v{R+i}, v{T+i}")
        for td in range(lo // 4, hi // 4):
            e(f"v_cvt_pk_bf16_f32 v{R+4*td}, v{R+4*td}, v{R+4*td+1}")
            e(f"v_cvt_pk_bf16_f32 v{R+4*td+1}, v{R+4*td+2}, v{R+4*td+3}")
            e(f"buffer_store_dwordx2 {vr(R+4*td,2)}, v{vB}, s[{sWS}:{sWS+3}], s{sT} offen offset:{td*256} sc1")
    e("s_waitcnt vmcnt(0)")
    bar()
    e(f"s_cmp_lg_u32 s{sWave}, 0")
    e(f"s_cbranch_scc1 {name}_p2")
    e(f"s_lshl_b32 s{sT}, s{sDt}, 5")
    e(f"s_add_u32 s{sT}, s{sT}, s{sFt}")
    e(f"s_lshl_b32 s{sT}, s{sT}, 7")
    e(f"s_add_u32 s{sT}, s{sT}, {FL_U}")
    e(f"v_mov_b32 v{vT}, 0")
    e(f"v_mov_b32 v{vT+1}, 1")
    e("s_mov_b64 exec, 1")
    e(f"buffer_store_dword v{vT+1}, v{vT}, s[{sWS}:{sWS+3}], s{sT} offen sc1")
    e("s_mov_b64 exec, -1")
    e(f"s_branch {name}_p2")
    e.label(f"{name}_skip1")
    e(f"s_setprio {cfg.get('pf_prio', 0)}")
    e("s_waitcnt lgkmcnt(0)")
    wait_h()
    e(f"s_setprio {cfg.get('pf_prio', 0)}")
    lds_wait(e, SY_LD, 4, 164)
    e.stamp(1)
    if cfg.get("pf2_w1", 1): pf_w1()
    if cfg.get("pf2_w2", 0): pf_w2()
    e.stamp(2)
    e.label(f"{name}_p2")
    e.stamp(3)
    e.srd(sW, 42, 1728 * 4096)
    sSt = sFt
    e(f"s_bfe_u32 s{sSt}, s{sG}, 0x20001")
    e(f"s_lshl_b32 s{sSt}, s{sSt}, 3")
    e(f"s_bfe_u32 s{sT}, s{sG}, 0x30003")
    e(f"s_add_u32 s{sSt}, s{sSt}, s{sT}")
    e(f"s_and_b32 s{sDt}, s{sG}, 1")
    e(f"s_lshl_b32 s{sDt}, s{sDt}, 2")
    e(f"s_lshr_b32 s{sKp}, s{sG}, 6")
    e(f"s_add_u32 s{sDt}, s{sDt}, s{sKp}")
    e(f"s_cmp_ge_u32 s{sWave}, 2")
    e(f"s_cselect_b32 s{sN}, 13, 14")
    e(f"s_mul_i32 s{sT2}, s{sWave}, 14")
    e(f"s_cmp_eq_u32 s{sWave}, 3")
    e(f"s_cselect_b32 s{sIt}, 1, 0")
    e(f"s_sub_u32 s{sT2}, s{sT2}, s{sIt}")
    e(f"s_mul_i32 s{sKw}, s{sT}, 3")
    e(f"s_lshr_b32 s{sKw}, s{sKw}, 1")
    e(f"s_mul_i32 s{sT}, s{sKp}, 3")
    e(f"s_add_u32 s{sKw}, s{sKw}, s{sT}")
    e(f"s_cmp_ge_u32 s{sKw}, 13")
    e(f"s_cselect_b32 s{sT}, 13, 0")
    e(f"s_sub_u32 s{sKw}, s{sKw}, s{sT}")
    if not cfg.get("mlp_rot2", 1): e(f"s_mov_b32 s{sKw}, 0")
    e(f"s_mov_b32 s{sKp}, s{sKw}")
    e(f"s_mul_i32 s{sPb}, s{sT2}, 40960")
    e(f"s_mul_i32 s{sT}, s{sDt}, 1280")
    e(f"s_add_u32 s{sPb}, s{sPb}, s{sT}")
    e(f"s_add_u32 s{sPb}, s{sPb}, {U_OFF}")
    e(f"s_mul_i32 s{sWb}, s{sT2}, {32*4096}")
    e(f"s_lshl_b32 s{sT}, s{sSt}, 7")
    e(f"s_add_u32 s{sWb}, s{sWb}, s{sT}")
    g.setup_w(4096)
    e.vmq = []
    c2 = Stream(g, 14, sW, sWS, 4096, 40960, "sc1", False, sKw, sKp, sN, sWb, sPb, sWo, sPo, sW2, True)
    c2.preW()
    g.setup_tr()
    def poll(idx_sgpr, base, target, lab, wot=False):
        e(f"s_cmp_lg_u32 s{sWave}, 0")
        e(f"s_cbranch_scc1 {lab}_go")
        e(f"s_lshl_b32 s{sT}, s{idx_sgpr}, 12")
        e(f"s_add_u32 s{sT}, s{sT}, {base}")
        gwait(e, sWS, f"s{sT}", 7, target, 1, 164, cfg.get("poll_sleep", 3))
        e.label(f"{lab}_go")
        if wot:
            e(f"s_cmp_lg_u32 s{sWave}, 1")
            e(f"s_cbranch_scc1 {lab}_go2")
            e(f"s_mov_b32 s{sT}, {FL_Q + 15*128}")
            gwait(e, sWS, f"s{sT}", 11, 16, 1, 164)
            e.label(f"{lab}_go2")
        gbar(e, SY_G, 164, 2)
    if cfg.get("pf_wo", 1):
        e.srd(44, 52, 2048 * 1280)
        e(f"v_and_b32 v{vT+1}, 15, v0")
        e(f"v_mul_u32_u24 v{vT+1}, 1280, v{vT+1}")
        e(f"v_bfe_u32 v{vT+2}, v0, 4, 2")
        e(f"v_mul_u32_u24 v{vT+2}, 52, v{vT+2}")
        e(f"v_add_u32 v{vT+1}, v{vT+1}, v{vT+2}")
        e(f"s_lshl_b32 s{sT}, s{sSt}, 2")
        e(f"s_add_u32 s{sT}, s{sT}, s{sWave}")
        e(f"s_mul_i32 s{sT}, s{sT}, {16*1280}")
        e(f"s_mul_i32 s{sT2}, s{sDt}, 160")
        e(f"s_add_u32 s{sT}, s{sT}, s{sT2}")
        e(f"buffer_load_dword v{PF}, v{vT+1}, s[44:47], s{sT} offen")
    poll(sDt, FL_U, 27, name + "_u")
    e.stamp(4)
    c2.preP()
    e(f"s_setprio {cfg.get('mlp_prio_loop', 2)}")
    c2.run()
    e(f"s_setprio {cfg.get('mlp_prio_epi', 3)}")
    e.stamp(5)
    sX, sOUT, sAo, sOo, sRo, sXo, sQb = 44, 52, sWb, sPb, sPo, sWo, sN
    XR, OF, AF = PF, 32, 112
    vXo, vOp, vOr, vLa = vWs, vB, vB + 1, vB + 2
    e.srd(sX, 52, 2048 * 1280)
    e.srd(sB1, 48, 4096)
    e(f"v_and_b32 v{vT+1}, 15, v0")
    e(f"v_bfe_u32 v{vT}, v0, 4, 2")
    e(f"v_lshlrev_b32 v{vT+2}, 1, v{vT+1}")
    e(f"v_mul_u32_u24 v{vXo}, 1280, v{vT+1}")
    e(f"v_lshl_add_u32 v{vXo}, v{vT}, 3, v{vXo}")
    e(f"s_lshl_b32 s{sT}, s{sSt}, 2")
    e(f"s_add_u32 s{sT}, s{sT}, s{sWave}")
    e(f"s_lshl_b32 s{sOo}, s{sT}, 8")
    e(f"s_add_u32 s{sOo}, s{sOo}, {O_OFF}")
    e(f"s_lshl_b32 s{sRo}, s{sT}, 7")
    e(f"s_add_u32 s{sRo}, s{sRo}, {OR_OFF}")
    e(f"s_mul_i32 s{sXo}, s{sT}, {16*1280}")
    e(f"s_lshl_b32 s{sT2}, s{sT}, 5")
    e(f"s_mul_i32 s{sT}, s{sDt}, 160")
    e(f"s_add_u32 s{sXo}, s{sXo}, s{sT}")
    for td in range(5):
        e(f"buffer_load_dwordx2 {vr(XR+2*td,2)}, v{vXo}, s[{sX}:{sX+3}], s{sXo} offen offset:{td*32}")
    e(f"buffer_load_ushort v{XR+10}, v{vT+2}, s[{sB1}:{sB1+3}], s{sT2} offen")
    g.reduce(GR, GB, bar)
    bar()
    e(f"s_mul_i32 s{sAo}, s{sDt}, 1280")
    e(f"s_add_u32 s{sAo}, s{sAo}, {WOT_OFF}")
    e.vmq = []
    sA7 = [12, 13, 14, 15, 36, 37, 40]
    for n in range(7):
        e(f"s_add_u32 s{sT}, s{sWave}, {4*n}")
        if n == 6: e(f"s_min_u32 s{sT}, s{sT}, 24"); e(f"s_lshl_b32 s41, s{sT}, 10")
        e(f"s_mul_i32 s{sT2}, s{sT}, 52")
        e(f"s_lshr_b32 s{sT2}, s{sT2}, 8")
        e(f"s_mul_i32 s{sT2}, s{sT2}, {40960 - 1280}")
        e(f"s_lshl_b32 s{sT}, s{sT}, 8")
        e(f"s_add_u32 s{sT}, s{sT}, s{sT2}")
        e(f"s_add_u32 s{sA7[n]}, s{sT}, s{sAo}")
    e(f"s_lshl_b32 s{sM0}, s{sWave}, 10")
    def dmaA1(c, n):
        e(f"s_add_u32 m0, s{sM0 if n < 6 else 41}, {(GB if c < 2 else 0) + (c%2)*25600 + (n*4096 if n < 6 else 0)}")
        e.vm(f"buffer_load_dwordx4 v{vP}, s[{sWS}:{sWS+3}], s{sA7[n]} offen sc1 lds", f"a{c}")
        e(f"s_add_u32 s{sA7[n]}, s{sA7[n]}, {5*40960}")
    def dmaA(c):
        for n in range(7): dmaA1(c, n)
    dmaA(0); dmaA(1)
    e(f"v_mov_b32 v{vLa}, v{vT}")
    e(f"v_add_u32 v{vB+3}, {GB}, v{vT}")
    e(f"v_bfe_u32 v{vT}, v0, 4, 2")
    e(f"v_and_b32 v{vT+1}, 15, v0")
    e(f"v_lshlrev_b32 v{vOp}, 15, v{vT}")
    e(f"v_lshl_add_u32 v{vOr}, v{vT+1}, 3, v{vOp}")
    e(f"v_lshl_add_u32 v{vOp}, v{vT+1}, 4, v{vOp}")
    e.srd(sOUT, 50, 2048 * 1280)
    e(f"s_waitcnt vmcnt({len(e.vmq)})")
    X = OF
    e(f"v_lshlrev_b32 v{XR+10}, 16, v{XR+10}")
    for i in range(10):
        e(f"v_lshlrev_b32 v{X+2*i}, 16, v{XR+i}")
        e(f"v_and_b32 v{X+2*i+1}, 0xffff0000, v{XR+i}")
    for i in range(20): e(f"v_add_f32 v{ACC+i}, v{ACC+i}, v{XR+10}")
    for i in range(20): e(f"v_add_f32 v{ACC+i}, v{ACC+i}, v{X+i}")
    e(f"s_lshr_b32 s{sQb}, s{sSt}, 1")
    e.stamp(6)
    lds_wait(e, SY_DONE, 8, 164, 2)
    dmaA(2); dmaA(3)
    e("s_waitcnt vmcnt(0)")
    e.vmq = []
    poll(sQb, FL_O, 32, name + "_o")
    e.stamp(7)
    def ldo(k):
        if k % 5 < 4:
            e.vm(f"buffer_load_dwordx4 {vr(OF+4*k,4)}, v{vOp}, s[{sWS}:{sWS+3}], s{sOo} offen sc1", f"o{k}")
            e(f"s_add_u32 s{sOo}, s{sOo}, {4*32768}")
        else:
            e.vm(f"buffer_load_dwordx2 {vr(OF+4*k,2)}, v{vOr}, s[{sWS}:{sWS+3}], s{sRo} offen sc1", f"o{k}")
            e(f"s_add_u32 s{sRo}, s{sRo}, 16384")
            e.vm(f"buffer_load_dwordx2 {vr(OF+4*k+2,2)}, v{vOr}, s[{sWS}:{sWS+3}], s{sRo} offen sc1", f"o{k}")
            e(f"s_add_u32 s{sRo}, s{sRo}, {7*16384}")
    NPRE = cfg.get("p3_pre", 10)
    for k in range(NPRE): ldo(k)
    pend = [(lambda k=k: ldo(k)) for k in range(NPRE, 20)]
    NR = 14
    def rd(f):
        e(f"ds_read_b128 {vr(AF+4*(f%NR),4)}, v{vB+3 if f < 50 else vLa} offset:{(f%50)*1024}")
    nrd = 0
    for k in range(20):
        if k == 15:
            e(f"v_and_b32 v{vT}, 15, v0")
            e(f"v_mul_u32_u24 v{vOp}, 176, v{vT}")
            e(f"v_bfe_u32 v{vT}, v0, 4, 2")
            e(f"v_lshl_add_u32 v{vOp}, v{vT}, 3, v{vOp}")
            e(f"s_mul_i32 s{sT}, s{sWave}, 2816")
            e(f"s_add_u32 s{sT}, s{sT}, {GB + 51200}")
            e(f"v_add_u32 v{vOp}, s{sT}, v{vOp}")
            for n in range(3):
                e(f"v_and_b32 v{vT}, 63, v0")
                e(f"v_add_u32 v{vT}, {64*n}, v{vT}")
                e(f"v_mul_u32_u24 v{vT+1}, 0xcccd, v{vT}")
                e(f"v_lshrrev_b32 v{vT+1}, 19, v{vT+1}")
                e(f"v_lshlrev_b32 v{vT}, 4, v{vT}")
                e(f"v_mul_u32_u24 v{OF+4+n}, {1280-160}, v{vT+1}")
                e(f"v_add_u32 v{OF+4+n}, v{OF+4+n}, v{vT}")
                e(f"v_lshl_add_u32 v{OF+n}, v{vT+1}, 4, v{vT}")
                e(f"v_add_u32 v{OF+n}, s{sT}, v{OF+n}")
        while nrd < min(5*k + 9, 100): rd(nrd); nrd += 1
        e.vmwait(f"o{k}", f"lgkmcnt({nrd - 5*k - 5})")
        for td in range(5):
            f = 5*k + td
            a = vr(ACC + 4*td, 4)
            e(f"v_mfma_f32_16x16x32_bf16 {a}, {vr(AF+4*(f%NR),4)}, {vr(OF+4*k,4)}, {a}")
            if nrd < min(f + NR, 100): rd(nrd); nrd += 1
            if pend and td % 2 == 0: pend.pop(0)()
    for td in range(5):
        a = ACC + 4*td
        e(f"v_cvt_pk_bf16_f32 v{a}, v{a}, v{a+1}")
        e(f"v_cvt_pk_bf16_f32 v{a+1}, v{a+2}, v{a+3}")
        e(f"ds_write_b64 v{vOp}, {vr(a,2)} offset:{td*32}")
    e("s_waitcnt lgkmcnt(0)")
    for n in range(3): e(f"ds_read_b128 {vr(OF+16+4*n,4)}, v{OF+n}")
    for n in range(3):
        e(f"s_waitcnt lgkmcnt({2-n})")
        if n == 2: e("s_mov_b32 exec_hi, 0")
        e(f"buffer_store_dwordx4 {vr(OF+16+4*n,4)}, v{OF+4+n}, s[{sOUT}:{sOUT+3}], s{sXo} offen {cfg.get('out_store', '')}")
    e.stamp_out(8, 1, sWS, sWave)
    e("s_endpgm")

def gen_fused(name, cfg):
    import f1
    e = Em(cfg)
    f1.gen_p1(e, name, cfg)
    gen_attn(e, name, name + "_a", cfg)
    gen_mlp(e, name, name + "_m", cfg)
    e.label(f"{name}_end")
    e("s_endpgm")
    return e.l, dict(vgpr=168, grid=256, block=768, lds=163840)
```

```python
from common import *
OOB = 0x7f000000

class G16:
    def __init__(g, e, ACC, WF, PF, vP, vWs, vB, vT, sWave, sM0, sT):
        g.e, g.ACC, g.WF, g.PF, g.vP, g.vWs, g.vB, g.vT, g.sWave, g.sM0, g.sT = e, ACC, WF, PF, vP, vWs, vB, vT, sWave, sM0, sT
    def acc(g, t, td): return g.ACC + (t*5 + td)*4
    def setup_p(g, octstride):
        e, vT = g.e, g.vT
        e(f"v_bfe_u32 v{vT}, v0, 4, 2")
        e(f"v_mul_u32_u24 v{g.vP}, {octstride}, v{vT}")
        e(f"v_and_b32 v{vT}, 15, v0")
        e(f"v_lshl_add_u32 v{g.vP}, v{vT}, 4, v{g.vP}")
    def setup_w(g, rowstride):
        e, vT = g.e, g.vT
        e(f"v_bfe_u32 v{vT}, v0, 5, 1")
        e(f"v_bfe_u32 v{vT+1}, v0, 3, 2")
        e(f"v_lshl_add_u32 v{vT}, v{vT}, 3, v{vT+1}")
        e(f"v_mul_u32_u24 v{g.vWs}, {rowstride}, v{vT}")
        e(f"v_bfe_u32 v{vT}, v0, 4, 2")
        e(f"v_lshlrev_b32 v{vT}, 1, v{vT}")
        e(f"v_and_b32 v{vT+1}, 7, v0")
        e(f"v_xor_b32 v{vT}, v{vT}, v{vT+1}")
        e(f"v_lshl_add_u32 v{g.vWs}, v{vT}, 4, v{g.vWs}")
    def setup_tr(g):
        e, vT, vB = g.e, g.vT, g.vB
        e(f"v_bfe_u32 v{vT}, v0, 2, 4")
        e(f"v_lshlrev_b32 v{vB}, 7, v{vT}")
        e(f"v_bfe_u32 v{vT}, v0, 3, 2")
        e(f"v_xor_b32 v{vT}, s{g.sWave}, v{vT}")
        e(f"v_lshl_add_u32 v{vB}, v{vT}, 5, v{vB}")
        e(f"v_and_b32 v{vT}, 3, v0")
        e(f"v_lshl_add_u32 v{vB}, v{vT}, 3, v{vB}")
        e(f"v_add_u32 v{vB}, s{g.sM0}, v{vB}")
        for t in range(1, 4): e(f"v_xor_b32 v{vB+t}, {32*t}, v{vB}")
    def reduce(g, region=12288, base=0, bar=None):
        e, vT, vB, sT = g.e, g.vT, g.vB, g.sT
        e(f"v_and_b32 v{vT}, 63, v0")
        e(f"v_lshlrev_b32 v{vT}, 4, v{vT}")
        e(f"v_add_u32 v{vB}, s{g.sM0}, v{vT}")
        e(f"s_xor_b32 s{sT}, s{g.sWave}, 1")
        e(f"s_mul_i32 s{sT}, s{sT}, {region}")
        if base: e(f"s_add_u32 s{sT}, s{sT}, {base}")
        e(f"v_add_u32 v{vB+1}, s{sT}, v{vT}")
        e(f"s_xor_b32 s{sT}, s{g.sWave}, 3")
        e(f"s_mul_i32 s{sT}, s{sT}, {region}")
        if base: e(f"s_add_u32 s{sT}, s{sT}, {base}")
        e(f"v_add_u32 v{vB+2}, s{sT}, v{vT}")
        for k, t in enumerate((1, 3)):
            for td in range(5):
                e(f"ds_write_b128 v{vB}, {vr(g.acc(t,td),4)} offset:{(k*5+td)*1024}")
        if bar: bar()
        else: e("s_waitcnt lgkmcnt(0)"); e("s_barrier")
        for k, t in ((1, 3), (0, 1)):
            for td in range(5):
                e(f"ds_read_b128 {vr(g.acc(t,td),4)}, v{vB+1} offset:{(k*5+td)*1024}")
        e("s_waitcnt lgkmcnt(5)")
        for i in range(20): e(f"v_add_f32 v{g.acc(2,0)+i}, v{g.acc(2,0)+i}, v{g.acc(3,0)+i}")
        e("s_waitcnt lgkmcnt(0)")
        for td in range(5):
            e(f"ds_write_b128 v{vB+1}, {vr(g.acc(2,td),4)} offset:{td*1024}")
        for i in range(20): e(f"v_add_f32 v{g.acc(0,0)+i}, v{g.acc(0,0)+i}, v{g.acc(1,0)+i}")
        if bar: bar()
        else: e("s_waitcnt lgkmcnt(0)"); e("s_barrier")
        for td in range(5):
            e(f"ds_read_b128 {vr(g.acc(1,td),4)}, v{vB+2} offset:{td*1024}")
        e("s_waitcnt lgkmcnt(0)")
        for i in range(20): e(f"v_add_f32 v{g.acc(0,0)+i}, v{g.acc(0,0)+i}, v{g.acc(1,0)+i}")

class Stream:
    def __init__(c, g, n, srdW, srdP, rowstride, pstep, pflags, w_is_A, sKw, sKp, sN, sWb, sPb, sWo, sPo, sW2, maybe_short):
        c.__dict__.update(locals()); c.e = g.e
    def _adv(c, sK, sO, sB, step, idx):
        e = c.e
        e(f"s_mul_i32 s{sO}, s{sK}, {step}")
        e(f"s_add_u32 s{sO}, s{sO}, s{sB}")
        if c.maybe_short and idx == c.n - 1:
            e(f"s_cmp_lt_u32 s{c.sN}, {c.n}")
            e(f"s_cselect_b32 s{sO}, {OOB}, s{sO}")
        e(f"s_add_u32 s{sK}, s{sK}, 1")
        e(f"s_cmp_eq_u32 s{sK}, s{c.sN}")
        e(f"s_cselect_b32 s{sK}, 0, s{sK}")
    def advW(c, i): c._adv(c.sKw, c.sWo, c.sWb, 32*c.rowstride, i)
    def advP(c, i): c._adv(c.sKp, c.sPo, c.sPb, c.pstep, i)
    def dmaW(c, i, n):
        e, g = c.e, c.g
        e(f"s_add_u32 m0, s{g.sM0}, {(i % 3)*4096 + n*1024}")
        row = 16*(n & 1) + 4*(n >> 1)
        so = c.sWo
        if row: e(f"s_add_u32 s{c.sW2}, s{c.sWo}, {row*c.rowstride}"); so = c.sW2
        e.vm(f"buffer_load_dwordx4 v{g.vWs}, s[{c.srdW}:{c.srdW+3}], s{so} offen lds", f"w{i}")
    def ldP(c, i, td):
        g = c.g
        c.e.vm(f"buffer_load_dwordx4 {vr(g.PF+(i%2)*20+td*4,4)}, v{g.vP}, s[{c.srdP}:{c.srdP+3}], s{c.sPo} offen offset:{td*256} {c.pflags}", f"p{i}_{td}")
    def reads(c, i):
        g = c.g
        return [f"ds_read_b64_tr_b16 {vr(g.WF+(i%2)*16+t*4+2*s,2)}, v{g.vB+t} offset:{(i%3)*4096 + s*2048}" for t in range(4) for s in range(2)]
    def preW(c):
        for i in range(3):
            c.advW(i)
            for n in range(4): c.dmaW(i, n)
    def preP(c):
        for i in range(2):
            c.advP(i)
            for td in range(5): c.ldP(i, td)
    def run(c):
        e, g = c.e, c.g
        e.vmwait("w0")
        for x in c.reads(0): e(x)
        if 3 < c.n:
            e("s_waitcnt lgkmcnt(0)")
            c.advW(3)
            for n in range(4): c.dmaW(3, n)
        for i in range(c.n):
            rd = []
            if i + 1 < c.n:
                e.vmwait([f"w{i+1}", f"p{i}_0"], "lgkmcnt(0)")
                rd = c.reads(i + 1)
            else:
                e.vmwait(f"p{i}_0", "lgkmcnt(0)")
            doP, doW = i + 2 < c.n, i + 4 < c.n
            if doP: c.advP(i + 2)
            for td in range(5):
                if td: e.vmwait(f"p{i}_{td}")
                if td == 2 and doW:
                    e("s_waitcnt lgkmcnt(0)")
                    c.advW(i + 4)
                for t in range(4):
                    w, p, a = vr(g.WF+(i%2)*16+t*4, 4), vr(g.PF+(i%2)*20+td*4, 4), vr(g.acc(t, td), 4)
                    A, B = (w, p) if c.w_is_A else (p, w)
                    e(f"v_mfma_f32_16x16x32_bf16 {a}, {A}, {B}, {a if i else 0}")
                    if td == 0 and rd:
                        e(rd.pop(0)); e(rd.pop(0))
                    if doW and ((td == 2 and t == 1) or (td == 3 and t in (0, 2)) or (td == 4 and t == 1)):
                        c.dmaW(i + 4, {(2,1):0, (3,0):1, (3,2):2, (4,1):3}[(td, t)])
                if doP: c.ldP(i + 2, td)
```

```python
from common import *
HB = 131072
ST_M = HB + 8 * 1344
ST_R = ST_M + 512
ST_C = ST_R + 512
K1_LDS = ST_C + 512
EPS = 1e-5
OOB = 0x7f000000

def gen_p1(e, name, cfg):
    ST = "sc1"
    sX, sW, sWS, sDbg = 8, 12, 16, 44
    sWave, sRow, sCol, sXo, sWo, sM0, sT, sOnes, sWr, sWc = 20, 21, 22, 23, 24, 25, 26, 27, 28, 29
    sScale, sStride, sBase, sT2, sT3, sRot, sR1, sR2 = 30, 31, 32, 33, 34, 35, 38, 39
    vL, vR, vH = 1, 2, 3
    vXa, vWa, SO, vT = 4, 20, 24, 32
    ACC, FR = 40, 104
    e("s_cmp_ge_u32 s2, 256")
    e(f"s_cbranch_scc1 {name}_end")
    e.stamp(0)
    e("s_load_dwordx4 s[4:7], s[0:1], 0")
    e("s_load_dwordx2 s[36:37], s[0:1], 80")
    e("s_load_dwordx2 s[54:55], s[0:1], 72")
    if cfg.get("pf_code", 1):
        touch_code(e, name, "code_end", 0, 164, 40, name + "_pc0")
    e(f"v_and_b32 v{vL}, 63, v0")
    e(f"v_lshrrev_b32 v{vT}, 6, v0")
    e(f"v_and_b32 v{vR}, 31, v0")
    e(f"v_readfirstlane_b32 s{sWave}, v{vT}")
    e(f"v_lshrrev_b32 v{vH}, 5, v{vL}")
    e("s_and_b32 s3, s2, 7")
    e(f"s_lshr_b32 s{sT}, s2, 3")
    e(f"s_lshr_b32 s{sRow}, s3, 1")
    e(f"s_lshl_b32 s{sRow}, s{sRow}, 2")
    e(f"s_and_b32 s{sT2}, s{sT}, 3")
    e(f"s_add_u32 s{sRow}, s{sRow}, s{sT2}")
    e(f"s_and_b32 s{sCol}, s3, 1")
    e(f"s_lshl_b32 s{sCol}, s{sCol}, 3")
    e(f"s_lshr_b32 s{sT2}, s{sT}, 2")
    e(f"s_add_u32 s{sCol}, s{sCol}, s{sT2}")
    e(f"s_bfe_u32 s{sWr}, s{sWave}, 0x10001")
    e(f"s_and_b32 s{sWc}, s{sWave}, 1")
    e(f"s_mov_b32 s{sOnes}, 0x3f803f80")
    e(f"s_mov_b32 s{S_BAR}, 0")
    e(f"s_cmp_eq_u32 s{sCol}, 15")
    e(f"s_cselect_b32 s58, 8, {4 if cfg.get('late_poll', 1) else 0}")
    e(f"s_cmp_ge_u32 s{sWave}, 8")
    e(f"s_cbranch_scc1 {name}_side")
    e(f"s_cmp_eq_u32 s{sCol}, 15")
    e(f"s_cbranch_scc1 {name}_idle")
    e(f"s_cmp_lt_u32 s{sWave}, 4")
    e(f"s_cbranch_scc1 {name}_comp")

    vXs, vWs = 4, 8
    e(f"s_sub_u32 s{sWave}, s{sWave}, 4")
    e("s_load_dwordx2 s[40:41], s[0:1], 32")
    e(f"v_lshrrev_b32 v{vT}, 3, v{vL}")
    e(f"s_lshl_b32 s{sT}, s{sWave}, 3")
    e(f"v_add_u32 v{vT}, s{sT}, v{vT}")
    e(f"v_mul_u32_u24 v{vT}, 1280, v{vT}")
    e(f"v_lshrrev_b32 v{vT+1}, 4, v{vL}")
    e(f"s_lshl_b32 s{sT}, s{sWc}, 2")
    e(f"v_add_u32 v{vT+2}, s{sT}, v{vT+1}")
    e(f"v_and_b32 v{vT+3}, 7, v{vL}")
    e(f"v_xor_b32 v{vT+2}, v{vT+2}, v{vT+3}")
    e(f"v_lshl_add_u32 v{vXs}, v{vT+2}, 4, v{vT}")
    for n in range(1, 4): e(f"v_add_u32 v{vXs+n}, {n*32*1280}, v{vXs}")
    e(f"s_lshl_b32 s{sT}, s{sWave}, 2")
    e(f"v_add_u32 v{vT}, s{sT}, v{vT+1}")
    e(f"v_mul_u32_u24 v{vT}, 3840, v{vT}")
    e(f"v_bfe_u32 v{vT+2}, v{vL}, 2, 2")
    e(f"v_xor_b32 v{vT+2}, v{vT+2}, v{vT+1}")
    e(f"v_lshl_add_u32 v{vT}, v{vT+2}, 6, v{vT}")
    e(f"v_and_b32 v{vT+2}, 3, v{vL}")
    e(f"v_lshl_add_u32 v{vWs}, v{vT+2}, 4, v{vT}")
    for n in range(1, 4): e(f"v_add_u32 v{vWs+n}, {n*16*3840}, v{vWs}")
    e(f"s_mul_i32 s{sXo}, s{sRow}, {128*1280}")
    e(f"s_lshl_b32 s{sWo}, s{sCol}, 8")
    e(f"s_lshl_b32 s{sM0}, s{sWave}, 10")
    e(f"s_and_b32 s{sT}, s{sRow}, 3")
    e(f"s_mul_i32 s{sT}, s{sT}, 5")
    e(f"s_lshr_b32 s{sT}, s{sT}, 1")
    e(f"s_lshl_b32 s{sT2}, s{sCol}, 2")
    e(f"s_add_u32 s{sT}, s{sT}, s{sT2}")
    e(f"s_mul_i32 s{sT2}, s{sT}, 0xcccd")
    e(f"s_lshr_b32 s{sT2}, s{sT2}, 19")
    e(f"s_mul_i32 s{sT2}, s{sT2}, 10")
    e(f"s_sub_u32 s{sRot}, s{sT}, s{sT2}")
    e(f"s_lshl_b32 s{sT}, s{sRot}, 7")
    e(f"s_add_u32 s{sXo}, s{sXo}, s{sT}")
    e(f"s_mul_i32 s{sT}, s{sRot}, {64*3840}")
    e(f"s_add_u32 s{sWo}, s{sWo}, s{sT}")
    e("s_waitcnt lgkmcnt(0)")
    e.srd(sX, 4, 2048 * 1280)
    e.srd(sW, 6, 640 * 3840)
    def dma():
        e(f"s_add_u32 s{sT}, s{sM0}, s{sT3}")
        for n in range(4):
            for (o, v, srd, so) in ((0, vXs, sX, sXo), (16384, vWs, sW, sWo)):
                e(f"s_add_u32 m0, s{sT}, {o + n*4096}")
                e(f"buffer_load_dwordx4 v{v+n}, s[{srd}:{srd+3}], s{so} offen lds")
        e(f"s_add_u32 s{sT3}, s{sT3}, 0x8000")
        e(f"s_and_b32 s{sT3}, s{sT3}, 0x1ffff")
        e(f"s_add_u32 s{sRot}, s{sRot}, 1")
        e(f"s_cmp_eq_u32 s{sRot}, 10")
        e(f"s_cselect_b32 s{sR1}, 1280, 0")
        e(f"s_cselect_b32 s{sR2}, {640*3840}, 0")
        e(f"s_add_u32 s{sXo}, s{sXo}, 128")
        e(f"s_add_u32 s{sWo}, s{sWo}, {64*3840}")
        e(f"s_sub_u32 s{sXo}, s{sXo}, s{sR1}")
        e(f"s_sub_u32 s{sWo}, s{sWo}, s{sR2}")
    SP = cfg.get("sp_w1", 0)
    if SP:
        e(f"s_mul_i32 s{sT}, s{sRow}, 15")
        e(f"s_add_u32 s{sT}, s{sT}, s{sCol}")
        e(f"s_lshl_b32 s{sT}, s{sT}, 2")
        e(f"s_add_u32 s{sT}, s{sT}, s{sWave}")
        e(f"s_mul_i32 s{sT}, s{sT}, 7424")
        e(f"s_min_u32 s{sT}, s{sT}, {2048*3456 - 7488}")
        e(f"s_add_u32 s40, s40, s{sT}")
        e(f"s_addc_u32 s41, s41, 0")
    e(f"s_mov_b32 s{sT3}, 0")
    dma()
    e(f"s_mov_b32 s{sT2}, 9")
    e.label(f"{name}_ll")
    dma()
    if SP:
        for n in range(13 // SP + (SP > 1)): e(f"s_load_dword s57, s[40:41], {64*SP*n}")
        e(f"s_add_u32 s40, s40, {13*64}")
        e(f"s_addc_u32 s41, s41, 0")
    e("s_waitcnt vmcnt(8)")
    e("s_barrier")
    e(f"s_sub_u32 s{sT2}, s{sT2}, 1")
    e(f"s_cmp_lg_u32 s{sT2}, 0")
    e(f"s_cbranch_scc1 {name}_ll")
    e.srd(sWS, 36, WS_USED)
    e.srd(sDbg, 54, 256)
    e(f"v_and_b32 v{vT+2}, 15, v{vL}")
    e(f"v_lshlrev_b32 v{vT+2}, 4, v{vT+2}")
    e(f"s_mov_b32 s{sR1}, 0x40000")
    e(f"buffer_load_dword v{vT+3}, v{vT+2}, s[{sDbg}:{sDbg+3}], 0 offen sc1")
    e("s_waitcnt vmcnt(1)")
    e("s_barrier")
    e(f"s_branch {name}_chk")
    e.label(f"{name}_poll")
    e(f"buffer_load_dword v{vT+3}, v{vT+2}, s[{sDbg}:{sDbg+3}], 0 offen sc1")
    e.label(f"{name}_chk")
    e("s_waitcnt vmcnt(0)")
    e(f"v_cmp_ne_u32 vcc, 1, v{vT+3}")
    e(f"s_cbranch_vccz {name}_got")
    e("s_sleep 2")
    e(f"s_sub_u32 s{sR1}, s{sR1}, 1")
    e(f"s_cmp_lg_u32 s{sR1}, 0")
    e(f"s_cbranch_scc1 {name}_poll")
    e.label(f"{name}_got")
    e(f"s_lshl_b32 s{sT}, s{sRow}, 10")
    e(f"s_lshl_b32 s{sT2}, s{sWave}, 8")
    e(f"s_add_u32 s{sT}, s{sT}, s{sT2}")
    e(f"s_add_u32 s{sT}, s{sT}, {RS_OFF}")
    e(f"v_lshlrev_b32 v{vT+2}, 3, v{vR}")
    e(f"buffer_load_dwordx2 {vr(vT+4,2)}, v{vT+2}, s[{sWS}:{sWS+3}], s{sT} offen sc1")
    e("s_barrier")
    e(f"s_lshl_b32 s{sT}, s{sWave}, 7")
    e(f"s_add_u32 s{sT}, s{sT}, {ST_M}")
    e(f"v_lshl_add_u32 v{vT}, v{vR}, 2, s{sT}")
    e("s_waitcnt vmcnt(0)")
    e(f"ds_write_b32 v{vT}, v{vT+4}")
    e(f"ds_write_b32 v{vT}, v{vT+5} offset:512")
    e("s_waitcnt lgkmcnt(0)")
    e("s_barrier")
    e(f"s_branch {name}_gemm")

    e.label(f"{name}_side")
    e("s_setprio 3")
    HX = 40; F = HX + 10
    e(f"s_sub_u32 s{sWave}, s{sWave}, 8")
    e(f"s_lshl_b32 s{sT}, s2, 3")
    e(f"s_lshl_b32 s{sT2}, s{sWave}, 1")
    e(f"s_add_u32 s{sT}, s{sT}, s{sT2}")
    e(f"s_mul_i32 s{sT}, s{sT}, 1280")
    e(f"v_mul_u32_u24 v{vT}, 1280, v{vH}")
    e(f"v_lshl_add_u32 v{vT+1}, v{vR}, 4, v{vT}")
    e(f"v_lshl_add_u32 v{vT+2}, v{vR}, 3, v{vT}")
    e("s_waitcnt lgkmcnt(0)")
    e.srd(sX, 4, 2048 * 1280)
    e.srd(sWS, 36, WS_USED)
    e(f"buffer_load_dwordx4 {vr(HX,4)}, v{vT+1}, s[{sX}:{sX+3}], s{sT} offen")
    e(f"buffer_load_dwordx4 {vr(HX+4,4)}, v{vT+1}, s[{sX}:{sX+3}], s{sT} offen offset:512")
    e(f"buffer_load_dwordx2 {vr(HX+8,2)}, v{vT+2}, s[{sX}:{sX+3}], s{sT} offen offset:1024")
    e(f"s_lshl_b32 s{sT}, s{sWave}, 1")
    e(f"v_add_u32 v4, s{sT}, v{vH}")
    e(f"v_mul_u32_u24 v4, 1344, v4")
    e(f"v_add_u32 v4, {HB}, v4")
    e(f"v_lshl_add_u32 v5, v{vR}, 3, v4")
    e(f"v_lshl_add_u32 v4, v{vR}, 4, v4")
    e(f"v_bfe_u32 v6, v{vL}, 2, 2")
    e(f"v_mul_u32_u24 v6, 1344, v6")
    e(f"v_lshrrev_b32 v7, 4, v{vL}")
    e(f"v_lshl_add_u32 v6, v7, 5, v6")
    e(f"v_and_b32 v7, 3, v{vL}")
    e(f"v_lshl_add_u32 v6, v7, 3, v6")
    e(f"v_add_u32 v6, {HB}, v6")
    e(f"v_lshlrev_b32 v8, 4, v{vL}")
    e(f"s_lshl_b32 s{sM0}, s{sWave}, 10")
    e(f"s_add_u32 s{sM0}, s{sM0}, 16384")
    RX, RS, RU = 84, 100, 108
    for i in range(8): e(f"v_mov_b32 v{RS+i}, 0")
    e(f"v_and_b32 v9, 15, v{vL}")
    e(f"v_lshlrev_b32 v9, 2, v9")
    e(f"v_add_u32 v9, {SY}, v9")
    e(f"ds_write_b32 v9, v{RS}")
    e(f"s_mov_b32 s{sR1}, 2")
    e("s_waitcnt vmcnt(0)")
    e.label(f"{name}_ln")
    e(f"v_mov_b32 v{vT}, 0"); e(f"v_mov_b32 v{vT+2}, 0")
    for i in range(10):
        e(f"v_dot2_f32_bf16 v{vT}, v{HX+i}, s{sOnes}, v{vT}")
        e(f"v_dot2_f32_bf16 v{vT+2}, v{HX+i}, v{HX+i}, v{vT+2}")
    a, b = Em(), Em()
    red32(a, vT, vT + 1); red32(b, vT + 2, vT + 3)
    un = []
    for i in range(10):
        un.append(f"v_lshlrev_b32 v{F+2*i}, 16, v{HX+i}")
        un.append(f"v_and_b32 v{F+2*i+1}, 0xffff0000, v{HX+i}")
    for k in range(7):
        for x in un[3*k:3*k+3]: e(x)
        e(a.l[k]); e(b.l[k])
    e(f"v_mul_f32 v{vT}, {fhex(1/640)}, v{vT}")
    e(f"v_mul_f32 v{vT+2}, {fhex(1/640)}, v{vT+2}")
    e(f"v_fma_f32 v{vT+2}, -v{vT}, v{vT}, v{vT+2}")
    e(f"v_max_f32 v{vT+2}, 0, v{vT+2}")
    e(f"v_add_f32 v{vT+2}, {fhex(EPS)}, v{vT+2}")
    e(f"v_rsq_f32 v{vT+2}, v{vT+2}")
    for i in range(10):
        e(f"v_pk_add_f32 {vr(F+2*i,2)}, {vr(F+2*i,2)}, {vr(vT,2)} op_sel_hi:[1,0] neg_lo:[0,1] neg_hi:[0,1]")
    for i in range(10):
        e(f"v_pk_mul_f32 {vr(F+2*i,2)}, {vr(F+2*i,2)}, {vr(vT+2,2)} op_sel_hi:[1,0]")
    for i in range(10):
        e(f"v_cvt_pk_bf16_f32 v{HX+i}, v{F+2*i}, v{F+2*i+1}")
    e(f"s_sub_u32 s{sR1}, s{sR1}, 1")
    e(f"s_cmp_lg_u32 s{sR1}, 0")
    e(f"s_cbranch_scc1 {name}_ln")
    e(f"ds_write_b128 v4, {vr(HX,4)}")
    e(f"ds_write_b128 v4, {vr(HX+4,4)} offset:512")
    e(f"ds_write_b64 v5, {vr(HX+8,2)} offset:1024")
    e("s_waitcnt lgkmcnt(0)")
    e(f"s_setprio {cfg.get('k1_sprio', 0)}")
    e("s_barrier")
    HT = 72
    for j in range(3):
        e(f"s_add_u32 s{sT}, s{sWave}, {4*j}")
        e(f"s_min_u32 s{sT}, s{sT}, 9")
        e(f"s_lshl_b32 s{sT2}, s{sT}, 7")
        e(f"v_add_u32 v{vT+j}, s{sT2}, v6")
        e(f"ds_read_b64_tr_b16 {vr(HT+4*j,2)}, v{vT+j}")
        e(f"ds_read_b64_tr_b16 {vr(HT+4*j+2,2)}, v{vT+j} offset:{4*1344}")
    def hstore():
        e(f"s_mul_i32 s{sR2}, s2, 10240")
        e(f"s_add_u32 s{sR2}, s{sR2}, {HT_OFF}")
        for j in range(3):
            e(f"s_add_u32 s{sT}, s{sWave}, {4*j}")
            e(f"s_min_u32 s{sT}, s{sT}, 9")
            e(f"s_lshl_b32 s{sT2}, s{sT}, 10")
            e(f"s_add_u32 s{sT2}, s{sT2}, s{sR2}")
            e(f"buffer_store_dwordx4 {vr(HT+4*j,4)}, v8, s[{sWS}:{sWS+3}], s{sT2} offen sc1")
    e(f"s_cmp_lg_u32 s{sCol}, 15")
    e(f"s_cbranch_scc1 {name}_cs0")
    e("s_waitcnt lgkmcnt(0)")
    hstore()
    e("s_waitcnt vmcnt(0)")
    e("s_barrier")
    e(f"s_branch {name}_attB")
    e.label(f"{name}_cs0")
    e(f"s_mov_b32 s{sT3}, 0")
    e(f"s_mov_b32 s{sR1}, 10")
    e.label(f"{name}_cs")
    e(f"s_add_u32 s{sT}, s{sM0}, s{sT3}")
    e(f"v_add_u32 v9, s{sT}, v8")
    for n in range(4): e(f"ds_read_b128 {vr(RX+4*n,4)}, v9 offset:{n*4096}")
    e(f"s_add_u32 s{sT3}, s{sT3}, 0x8000")
    e(f"s_and_b32 s{sT3}, s{sT3}, 0x1ffff")
    for n in range(4):
        e(f"s_waitcnt lgkmcnt({3-n})")
        for i in range(4):
            e(f"v_lshlrev_b32 v{RU+2*i}, 16, v{RX+4*n+i}")
            e(f"v_and_b32 v{RU+2*i+1}, 0xffff0000, v{RX+4*n+i}")
        for i in range(8): e(f"v_add_f32 v{RS+i}, v{RS+i}, v{RU+i}")
    e(f"s_cmp_lg_u32 s{sR1}, {10 - cfg.get('h_at', 7)}")
    e(f"s_cbranch_scc1 {name}_nh")
    hstore()
    e.label(f"{name}_nh")
    e(f"s_sub_u32 s{sR1}, s{sR1}, 1")
    e(f"s_cmp_eq_u32 s{sR1}, 0")
    e(f"s_cbranch_scc1 {name}_cse")
    e("s_barrier")
    e(f"s_branch {name}_cs")
    e.label(f"{name}_cse")
    e(f"v_bfe_u32 v{vT}, v{vL}, 2, 2")
    e(f"v_lshrrev_b32 v{vT+1}, 4, v{vL}")
    e(f"v_xor_b32 v{vT}, v{vT}, v{vT+1}")
    e(f"v_lshlrev_b32 v{vT}, 7, v{vT}")
    e(f"v_and_b32 v{vT+2}, 3, v{vL}")
    e(f"v_lshl_add_u32 v{vT}, v{vT+2}, 5, v{vT}")
    e(f"s_lshl_b32 s{sT}, s{sWave}, 11")
    e(f"s_add_u32 s{sT}, s{sT}, {HB}")
    e(f"v_lshl_add_u32 v{vT}, v{vT+1}, 9, v{vT}")
    e(f"v_add_u32 v{vT}, s{sT}, v{vT}")
    e(f"ds_write_b128 v{vT}, {vr(RS,4)}")
    e(f"ds_write_b128 v{vT}, {vr(RS+4,4)} offset:16")
    e(f"v_lshlrev_b32 v{vT+1}, 12, v{vH}")
    e(f"v_lshl_add_u32 v{vT+1}, v{vR}, 2, v{vT+1}")
    e(f"s_lshl_b32 s{sT}, s{sWave}, 7")
    e(f"s_add_u32 s{sT2}, s{sT}, {HB}")
    e(f"v_add_u32 v{vT+1}, s{sT2}, v{vT+1}")
    e(f"s_add_u32 s{sT2}, s{sT}, {ST_C}")
    e(f"v_lshl_add_u32 v{vT+2}, v{vR}, 2, s{sT2}")
    e("s_waitcnt lgkmcnt(0)")
    e("s_barrier")
    for i in range(8): e(f"ds_read_b32 v{RU+i}, v{vT+1} offset:{512*i}")
    e("s_waitcnt lgkmcnt(0)")
    for i in range(4): e(f"v_add_f32 v{RU+i}, v{RU+i}, v{RU+4+i}")
    e(f"v_add_f32 v{RU}, v{RU}, v{RU+1}"); e(f"v_add_f32 v{RU+2}, v{RU+2}, v{RU+3}")
    e(f"v_add_f32 v{RU}, v{RU}, v{RU+2}")
    xhalf(e, RU, RU + 1)
    e(f"ds_write_b32 v{vT+2}, v{RU}")
    e("s_waitcnt vmcnt(0) lgkmcnt(0)")
    e("s_barrier")
    e(f"s_branch {name}_attB")

    e.label(f"{name}_idle")
    e("s_load_dwordx2 s[42:43], s[0:1], 16")
    e(f"v_lshrrev_b32 v{vT}, 2, v{vL}")
    e(f"v_mul_u32_u24 v{vT+1}, 1280, v{vT}")
    e(f"v_and_b32 v{vT+2}, 3, v{vL}")
    e(f"v_lshl_add_u32 v{vT+1}, v{vT+2}, 4, v{vT+1}")
    e(f"s_lshl_b32 s{sT}, s{sRow}, 3")
    e(f"s_add_u32 s{sT}, s{sT}, s{sWave}")
    e(f"s_mul_i32 s{sT2}, s{sT}, {16*1280}")
    e("s_waitcnt lgkmcnt(0)")
    e.srd(sX, 4, 2048 * 1280)
    e.srd(sWS, 36, WS_USED)
    e.srd(sDbg, 54, 256)
    for i in range(20):
        e(f"buffer_load_dwordx4 {vr(64+4*i,4)}, v{vT+1}, s[{sX}:{sX+3}], s{sT2} offen offset:{64*i}")
    e(f"v_mov_b32 v{vT+4}, 0"); e(f"v_mov_b32 v{vT+5}, 0")
    for i in range(20):
        if i % 4 == 0: e(f"s_waitcnt vmcnt({16 - i})")
        for j in range(4):
            e(f"v_dot2_f32_bf16 v{vT+4}, v{64+4*i+j}, s{sOnes}, v{vT+4}")
            e(f"v_dot2_f32_bf16 v{vT+5}, v{64+4*i+j}, v{64+4*i+j}, v{vT+5}")
    for mod in ("quad_perm:[1,0,3,2]", "quad_perm:[2,3,0,1]"):
        for r in (vT + 4, vT + 5):
            e(f"v_add_f32_dpp v{r}, v{r}, v{r} {mod} row_mask:0xf bank_mask:0xf")
    e(f"v_mul_f32 v{vT+4}, {fhex(1/640)}, v{vT+4}")
    e(f"v_mul_f32 v{vT+5}, {fhex(1/640)}, v{vT+5}")
    e(f"v_fma_f32 v{vT+5}, -v{vT+4}, v{vT+4}, v{vT+5}")
    e(f"v_max_f32 v{vT+5}, 0, v{vT+5}")
    e(f"v_add_f32 v{vT+5}, {fhex(EPS)}, v{vT+5}")
    e(f"v_rsq_f32 v{vT+5}, v{vT+5}")
    e(f"v_lshlrev_b32 v{vT}, 3, v{vT}")
    e(f"s_lshl_b32 s{sT}, s{sT}, 7")
    e(f"s_add_u32 s{sT}, s{sT}, {RS_OFF}")
    e("s_mov_b32 exec_lo, 0x11111111"); e("s_mov_b32 exec_hi, 0x11111111")
    e(f"buffer_store_dwordx2 {vr(vT+4,2)}, v{vT}, s[{sWS}:{sWS+3}], s{sT} offen sc1")
    e("s_mov_b64 exec, -1")
    e(f"v_mov_b32 v{vT+2}, 0")
    e(f"v_lshrrev_b32 v{vT+1}, 4, v{vL}")
    e(f"v_min_u32 v{vT+1}, 2, v{vT+1}")
    e(f"v_lshlrev_b32 v{vT+3}, 4, v{vT+1}")
    e(f"v_sub_u32 v{vT+3}, v{vL}, v{vT+3}")
    e(f"v_lshlrev_b32 v{vT+3}, 7, v{vT+3}")
    e(f"v_lshl_add_u32 v{vT+3}, v{vT+1}, 15, v{vT+3}")
    e(f"v_lshrrev_b32 v{vT+1}, 1, v{vT+1}")
    e(f"v_add_u32 v{vT+1}, 11, v{vT+1}")
    e(f"v_mov_b32 v{vT+7}, s{sRow}")
    e(f"v_lshlrev_b32 v{vT+1}, v{vT+1}, v{vT+7}")
    e(f"v_add_u32 v{vT+3}, v{vT+3}, v{vT+1}")
    e(f"s_cmp_eq_u32 s{sWave}, 0")
    e(f"s_mov_b32 s{sT}, {OOB}")
    e(f"s_cselect_b32 s{sT}, {FL_Q}, s{sT}")
    e(f"buffer_store_dword v{vT+2}, v{vT+3}, s[{sWS}:{sWS+3}], s{sT} offen sc1")
    e.srd(48, 42, 640 * 1280)
    e(f"v_lshlrev_b32 v{vT+6}, 4, v{vL}")
    e(f"s_mul_i32 s{sT3}, s{sRow}, {40*1280}")
    e(f"s_lshl_b32 s{sM0}, s{sWave}, 10")
    e(f"s_add_u32 s{sT3}, s{sT3}, s{sM0}")
    e("s_waitcnt vmcnt(0)")
    e("s_barrier")
    e(f"s_lshl_b32 s{sT}, s{sRow}, 4")
    e(f"s_cmp_eq_u32 s{sWave}, 0")
    e(f"s_cselect_b32 s{sT}, s{sT}, {OOB}")
    e(f"v_mov_b32 v{vT}, 0")
    e(f"v_mov_b32 v{vT+1}, 1")
    e("s_mov_b64 exec, 1")
    e(f"buffer_store_dword v{vT+1}, v{vT}, s[{sDbg}:{sDbg+3}], s{sT} offen sc1")
    e("s_mov_b64 exec, -1")
    for n in range(7):
        e(f"s_add_u32 m0, s{sM0}, {n*8192}")
        e(f"buffer_load_dwordx4 v{vT+6}, s[48:51], s{sT3} offen lds")
        e(f"s_add_u32 s{sT3}, s{sT3}, 8192")
    e(f"v_bfe_u32 v{vT}, v{vL}, 2, 2")
    e(f"v_mul_u32_u24 v{vT}, 1280, v{vT}")
    e(f"v_lshrrev_b32 v{vT+1}, 4, v{vL}")
    e(f"v_lshl_add_u32 v{vT}, v{vT+1}, 5, v{vT}")
    e(f"v_and_b32 v{vT+1}, 3, v{vL}")
    e(f"v_lshl_add_u32 v{vT}, v{vT+1}, 3, v{vT}")
    e(f"s_lshr_b32 s{sT}, s{sRow}, 2")
    e(f"s_mul_i32 s{sT}, s{sT}, 20")
    e(f"s_and_b32 s{sT2}, s{sRow}, 3")
    e(f"s_add_u32 s{sR1}, s{sT}, s{sT2}")
    e(f"s_add_u32 s{sR1}, s{sR1}, 16")
    e(f"s_mul_i32 s{sR1}, s{sR1}, 10240")
    e(f"s_lshl_b32 s{sT2}, s{sT2}, 2")
    e(f"s_add_u32 s{sR2}, s{sT}, s{sT2}")
    e(f"s_mul_i32 s{sR2}, s{sR2}, 10240")
    gwait(e, sDbg, 0, 4, 16, 1, vT + 2)
    e("s_barrier")
    for j in range(2):
        e(f"s_add_u32 s{sT}, s{sWave}, {8*j}")
        e(f"s_min_u32 s{sT}, s{sT}, 9")
        e(f"s_lshl_b32 s{sT2}, s{sT}, 7")
        e(f"v_add_u32 v{vT+1}, s{sT2}, v{vT}")
        for o in range(5):
            r0, r1 = (20*(o >> 1) + 4*(o & 1), 20*(o >> 1) + 4*(o & 1) + 8) if o < 4 else (16, 36)
            e(f"ds_read_b64_tr_b16 {vr(64+20*j+4*o,2)}, v{vT+1} offset:{r0*1280}")
            e(f"ds_read_b64_tr_b16 {vr(64+20*j+4*o+2,2)}, v{vT+1} offset:{r1*1280}")
        e(f"s_lshl_b32 s{sT}, s{sT}, 10")
        e(f"s_add_u32 s{sT}, s{sT}, {WOT_OFF}")
        e("s_waitcnt lgkmcnt(0)")
        for o in range(5):
            if o < 4: e(f"s_add_u32 s{sT2}, s{sR2}, {o*10240}")
            else: e(f"s_mov_b32 s{sT2}, s{sR1}")
            e(f"s_add_u32 s{sT2}, s{sT2}, s{sT}")
            e(f"buffer_store_dwordx4 {vr(64+20*j+4*o,4)}, v{vT+6}, s[{sWS}:{sWS+3}], s{sT2} offen sc1")
        if j == 0:
            e(f"s_cmp_ge_u32 s{sWave}, 2")
            e(f"s_cbranch_scc1 {name}_rp")
    e.label(f"{name}_rp")
    lds_add(e, SY_ST, vT)
    e(f"s_lshl_b32 s{sXo}, s{sRow}, 4")
    e(f"s_add_u32 s{sXo}, s{sXo}, s{sCol}")
    e(f"s_lshl_b32 s{sXo}, s{sXo}, 7")
    e(f"s_add_u32 s{sXo}, s{sXo}, {FL_Q}")
    publish(e, SY_PQ, 8, sWS, sXo, vT)
    e("s_waitcnt vmcnt(0)" if cfg.get("st_pub") else ""); e.stamp(1)
    e(f"s_cmp_lt_u32 s{sWave}, 4")
    e(f"s_cbranch_scc1 {name}_attA")
    e(f"s_sub_u32 s{sWave}, s{sWave}, 4")
    e(f"s_branch {name}_gemm")

    e.label(f"{name}_comp")
    e(f"v_bfe_u32 v{vT}, v{vR}, 1, 3")
    e(f"v_xor_b32 v{vT}, v{vT}, v{vH}")
    e(f"v_lshlrev_b32 v{vT}, 4, v{vT}")
    e(f"v_lshl_add_u32 v{vT}, v{vR}, 7, v{vT}")
    e(f"s_lshl_b32 s{sT}, s{sWr}, 13")
    e(f"v_add_u32 v{vT}, s{sT}, v{vT}")
    for kk in range(4):
        e(f"v_xor_b32 v{vXa + kk}, {kk*32}, v{vT}")
        e(f"v_add_u32 v{vXa + 4 + kk}, 0x10000, v{vXa + kk}")
    e(f"v_bfe_u32 v{vT}, v{vL}, 2, 2")
    e(f"v_lshl_add_u32 v{vT+1}, v{vH}, 3, v{vT}")
    e(f"v_lshlrev_b32 v{vT+1}, 8, v{vT+1}")
    e(f"s_lshl_b32 s{sT}, s{sWc}, 1")
    e(f"v_xor_b32 v{vT}, s{sT}, v{vT}")
    e(f"v_lshl_add_u32 v{vT+1}, v{vT}, 6, v{vT+1}")
    e(f"v_bfe_u32 v{vT}, v{vL}, 4, 1")
    e(f"v_lshl_add_u32 v{vT+1}, v{vT}, 5, v{vT+1}")
    e(f"v_and_b32 v{vT}, 3, v{vL}")
    e(f"v_lshl_add_u32 v{vT+1}, v{vT}, 3, v{vT+1}")
    e(f"v_add_u32 v{vWa}, 16384, v{vT+1}")
    e(f"v_xor_b32 v{vWa+1}, 64, v{vWa}")
    e(f"v_add_u32 v{vWa+2}, 0x10000, v{vWa}")
    e(f"v_add_u32 v{vWa+3}, 0x10000, v{vWa+1}")
    if cfg.get("tlb", 0):
        e("s_load_dwordx2 s[40:41], s[0:1], 32")
        e("s_load_dwordx2 s[42:43], s[0:1], 48")
        e("s_load_dwordx2 s[44:45], s[0:1], 64")
    e("s_waitcnt lgkmcnt(0)")
    e.srd(sWS, 36, WS_USED)
    if cfg.get("tlb", 0):
        sh = cfg["tlb"]
        e(f"v_lshlrev_b32 v{vT}, {sh}, v0")
        e(f"buffer_load_dword v165, v{vT}, s[{sWS}:{sWS+3}], 0 offen sc1")
        for p, size in ((40, 2048*3456), (42, 1728*4096), (44, 2048*1280)):
            e.srd(48, p, size)
            e(f"buffer_load_dword v165, v{vT}, s[48:51], 0 offen sc1")

    def mainloop(isV):
        NB = 3
        def reads(j):
            if j >= 40: return [[], [], []]
            stage, kk, buf = j // 4, j % 4, j % NB
            slot = (stage % 4) * 32768
            hi = slot >= 65536
            off = slot - (65536 if hi else 0)
            X = [f"ds_read_b128 {vr(FR + buf*16 + tt*4, 4)}, v{vXa + (4 if hi else 0) + kk} offset:{off + tt*4096}" for tt in range(2)]
            W = [[f"ds_read_b64_tr_b16 {vr(FR + buf*16 + 8 + ct*4 + 2*s, 2)}, v{vWa + (2 if hi else 0) + ct} offset:{off + kk*4096 + s*1024}" for s in range(2)] for ct in range(2)]
            return [[X[0], X[1]], W[0], W[1]]
        e("s_barrier")
        for j in range(2):
            for g in reads(j):
                for x in g: e(x)
        for j in range(40):
            buf = j % NB
            def mf(tt, ct):
                acc = ACC + (tt*2 + ct) * 16
                x = vr(FR + buf*16 + tt*4, 4); w = vr(FR + buf*16 + 8 + ct*4, 4)
                A, B = (x, w) if isV else (w, x)
                e(f"v_mfma_f32_32x32x16_bf16 {vr(acc,16)}, {A}, {B}, {vr(acc,16) if j else 0}")
            nxt = reads(j + 2)
            e(f"s_waitcnt lgkmcnt({6 if j < 39 else 0})")
            mf(0, 0)
            if j % 4 == 2: e("s_barrier")
            for x in nxt[0]: e(x)
            mf(0, 1)
            for x in nxt[1]: e(x)
            mf(1, 0)
            for x in nxt[2]: e(x)
            mf(1, 1)
        e.stamp(1)
    def tokbase(tt, stride, base):
        e(f"s_lshl_b32 s{sT}, s{sRow}, 2")
        e(f"s_lshl_b32 s{sT2}, s{sWr}, 1")
        e(f"s_add_u32 s{sT}, s{sT}, s{sT2}")
        if tt: e(f"s_add_u32 s{sT}, s{sT}, 1")
        e(f"s_mul_i32 s{sT}, s{sT}, {stride}")
        e(f"s_add_u32 s{sT}, s{sT}, {base}")
    e(f"s_cmp_ge_u32 s{sCol}, 10")
    e(f"s_cbranch_scc1 {name}_v")
    e(f"s_cmp_ge_u32 s{sCol}, 5")
    e(f"s_cselect_b32 s{sScale}, 1.0, {fhex(math.log2(math.e) / math.sqrt(20.0))}")
    e(f"s_movk_i32 s{sStride}, 1280")
    e(f"s_cselect_b32 s{sStride}, 2560, s{sStride}")
    e(f"s_cselect_b32 s{sBase}, {KV_OFF}, {QF_OFF}")
    e(f"s_cselect_b32 s{sT}, 5, 0")
    e(f"s_sub_u32 s{sT}, s{sCol}, s{sT}")
    e(f"s_lshl_b32 s{sT}, s{sT}, 5")
    e(f"s_lshl_b32 s{sT2}, s{sWc}, 4")
    e(f"s_add_u32 s{sT}, s{sT}, s{sT2}")
    e(f"s_lshl_b32 s{sT3}, s{sStride}, 6")
    e(f"s_sub_u32 s{sT3}, s{sT3}, 1280")
    e(f"v_add_u32 v{vT}, s{sT}, v{vH}")
    e(f"v_lshlrev_b32 v{vT+2}, 3, v{vR}")
    for q in range(8):
        if q: e(f"v_add_u32 v{vT}, 2, v{vT}")
        e(f"v_mul_u32_u24 v{vT+1}, 0xcccd, v{vT}")
        e(f"v_lshrrev_b32 v{vT+1}, 18, v{vT+1}")
        e(f"v_mul_lo_u32 v{vT+1}, v{vT+1}, s{sT3}")
        e(f"v_lshl_add_u32 v{SO+q}, v{vT}, 8, v{vT+2}")
        e(f"v_add_u32 v{SO+q}, v{SO+q}, v{vT+1}")
    e(f"s_lshl_b32 s{sT}, s{sWr}, 8")
    e(f"s_add_u32 s{sT}, s{sT}, {ST_M}")
    e(f"v_lshl_add_u32 v12, v{vR}, 2, s{sT}")
    e(f"s_lshl_b32 s{sT}, s{sWc}, 8")
    e(f"s_add_u32 s{sT}, s{sT}, {ST_C}")
    e(f"v_lshl_add_u32 v13, v{vH}, 4, s{sT}")
    mainloop(False)
    CS = FR
    e("s_barrier")
    e(f"ds_read_b32 v{vT+4}, v12"); e(f"ds_read_b32 v{vT+5}, v12 offset:512")
    e(f"ds_read_b32 v{vT+6}, v12 offset:128"); e(f"ds_read_b32 v{vT+7}, v12 offset:640")
    for q in range(8): e(f"ds_read_b128 {vr(CS + q*4, 4)}, v13 offset:{q*32}")
    e("s_waitcnt lgkmcnt(4)")
    e(f"v_mul_f32 v{vT+5}, s{sScale}, v{vT+5}")
    e(f"v_mul_f32 v{vT+7}, s{sScale}, v{vT+7}")
    for ct in range(2):
        if ct: e("s_waitcnt lgkmcnt(0)")
        for tt in range(2):
            tokbase(tt, f"s{sStride}", f"s{sBase}")
            acc = ACC + (tt*2 + ct) * 16
            for i in range(0, 16, 2):
                e(f"v_pk_fma_f32 {vr(acc+i,2)}, {vr(vT+4+2*tt,2)}, {vr(CS+ct*16+i,2)}, {vr(acc+i,2)} op_sel_hi:[0,1,1] neg_lo:[1,0,0] neg_hi:[1,0,0]")
            for i in range(0, 16, 2):
                e(f"v_pk_mul_f32 {vr(acc+i,2)}, {vr(acc+i,2)}, {vr(vT+4+2*tt,2)} op_sel:[0,1] op_sel_hi:[1,1]")
            for q in range(4):
                e(f"v_cvt_pk_bf16_f32 v{acc+4*q}, v{acc+4*q}, v{acc+4*q+1}")
                e(f"v_cvt_pk_bf16_f32 v{acc+4*q+1}, v{acc+4*q+2}, v{acc+4*q+3}")
                e(f"buffer_store_dwordx2 {vr(acc+4*q,2)}, v{SO+ct*4+q}, s[{sWS}:{sWS+3}], s{sT} offen {ST}")
    e(f"s_branch {name}_cpub")
    e.label(f"{name}_v")
    e(f"s_sub_u32 s{sT}, s{sCol}, 10")
    e(f"s_lshl_b32 s{sT}, s{sT}, 7")
    e(f"s_lshl_b32 s{sT2}, s{sWc}, 6")
    e(f"s_add_u32 s{sT}, s{sT}, s{sT2}")
    e(f"s_mov_b32 s{sT3}, {64*2560 - 320}")
    e(f"v_add_u32 v{vT}, s{sT}, v{vR}")
    e(f"v_mul_u32_u24 v{vT+2}, 320, v{vH}")
    for ct in range(2):
        if ct: e(f"v_add_u32 v{vT}, 32, v{vT}")
        e(f"v_mul_u32_u24 v{vT+1}, 0xcccd, v{vT}")
        e(f"v_lshrrev_b32 v{vT+1}, 20, v{vT+1}")
        e(f"v_mul_lo_u32 v{vT+1}, v{vT+1}, s{sT3}")
        e(f"v_lshl_add_u32 v{SO+ct}, v{vT}, 4, v{vT+2}")
        e(f"v_add_u32 v{SO+ct}, v{SO+ct}, v{vT+1}")
    e(f"s_lshl_b32 s{sT}, s{sWr}, 8")
    e(f"s_add_u32 s{sT}, s{sT}, {ST_M}")
    e(f"v_lshl_add_u32 v12, v{vH}, 4, s{sT}")
    e(f"s_lshl_b32 s{sT}, s{sWc}, 8")
    e(f"s_add_u32 s{sT}, s{sT}, {ST_C}")
    e(f"v_lshl_add_u32 v13, v{vR}, 2, s{sT}")
    mainloop(True)
    RM, RR = FR, FR + 32
    e("s_barrier")
    e(f"ds_read_b32 v{vT+4}, v13"); e(f"ds_read_b32 v{vT+5}, v13 offset:128")
    for tt in range(2):
        if tt: e("s_waitcnt lgkmcnt(4)")
        for q in range(4):
            e(f"ds_read_b128 {vr(RM + tt*16 + q*4, 4)}, v12 offset:{tt*128 + q*32}")
            e(f"ds_read_b128 {vr(RR + tt*16 + q*4, 4)}, v12 offset:{512 + tt*128 + q*32}")
    for tt in range(2):
        e(f"s_waitcnt lgkmcnt({8 - 8*tt})")
        tokbase(tt, 2560, KV_OFF + 1280)
        for ct in range(2):
            acc = ACC + (tt*2 + ct) * 16
            for i in range(0, 16, 2):
                e(f"v_pk_fma_f32 {vr(acc+i,2)}, {vr(RM+tt*16+i,2)}, {vr(vT+4,2)}, {vr(acc+i,2)} op_sel:[0,{ct},0] op_sel_hi:[1,{ct},1] neg_lo:[1,0,0] neg_hi:[1,0,0]")
            for i in range(0, 16, 2):
                e(f"v_pk_mul_f32 {vr(acc+i,2)}, {vr(acc+i,2)}, {vr(RR+tt*16+i,2)}")
            for p in range(2):
                for j in range(4):
                    e(f"v_cvt_pk_bf16_f32 v{acc+8*p+j}, v{acc+8*p+2*j}, v{acc+8*p+2*j+1}")
                e(f"buffer_store_dwordx4 {vr(acc+8*p,4)}, v{SO+ct}, s[{sWS}:{sWS+3}], s{sT} offen offset:{640*p} sc1")
    e.label(f"{name}_cpub")
    lds_add(e, SY_ST, vT)
    e(f"s_lshl_b32 s{sXo}, s{sRow}, 4")
    e(f"s_add_u32 s{sXo}, s{sXo}, s{sCol}")
    e(f"s_lshl_b32 s{sXo}, s{sXo}, 7")
    e(f"s_add_u32 s{sXo}, s{sXo}, {FL_Q}")
    publish(e, SY_PQ, 4, sWS, sXo, vT)
    if cfg.get("st_pub"):
        e("s_waitcnt vmcnt(0)"); e.stamp(1)
```
